```python
import torch

def _softmax(x, axis=-1):
    return torch.softmax(x, dim=axis)

def _gelu(x):
    return torch.nn.functional.gelu(x, approximate='tanh')

def _silu(x):
    return torch.nn.functional.silu(x)

def _sigmoid(x):
    return torch.sigmoid(x)

def _layernorm(x, axis=-1, eps=1e-05):
    m = x.mean(dim=axis, keepdim=True)
    v = x.var(dim=axis, keepdim=True, unbiased=False)
    return (x - m) / torch.sqrt(v + eps)

def _scatter_add(tgt, idx, src, axis=0):
    return tgt.clone().index_add_(axis, idx, src)

def _segment_sum(src, seg, n):
    out = torch.zeros((n,) + src.shape[1:], dtype=src.dtype)
    return out.index_add_(0, seg, src)

def _pad(x, pw):
    flat = tuple((v for pair in reversed(pw) for v in pair))
    return torch.nn.functional.pad(x, flat)
kernel_name = 'adaLN_cond__ssm_conv_h3__swiglu_ffn__prompt'

def setup_inputs():

    _w = lambda a: (lambda t: t.to(torch.bfloat16) if t.is_floating_point() else t)(torch.as_tensor(a))

    def _A_setup():
        B, S, D = (1, 2048, 448)
        ks = 4
        return {'q': _w((lambda *s: torch.randn(*s, dtype=torch.bfloat16) * 0.05)(B, S, D)), 'k': _w((lambda *s: torch.randn(*s, dtype=torch.bfloat16) * 1.6)(B, S, D)), 'v': _w((lambda *s: torch.randn(*s, dtype=torch.bfloat16) * 1.6)(B, S, D)), 'shift_k': _w((lambda *s: torch.randn(*s, dtype=torch.bfloat16) * 1.6)(D, ks) * 0.5), 'ssm_k': _w((lambda *s: torch.randn(*s, dtype=torch.bfloat16) * 1.6)(D, S) * (1.0 / S ** 0.5)), 'ssm_D': _w((lambda *s: torch.randn(*s, dtype=torch.bfloat16) * 1.6)(D))}
    _A_in = _A_setup()

    def _B_setup():
        B, S, D, F = (1, 2048, 448, 1792)
        return {'x': _w((lambda *s: torch.randn(*s, dtype=torch.bfloat16) * 0.05)(B, S, D)), 'w_gate': _w((lambda *s: torch.randn(*s, dtype=torch.bfloat16) * 0.1)(D, F)), 'w_up': _w((lambda *s: torch.randn(*s, dtype=torch.bfloat16) * 0.1)(D, F)), 'w_down': _w((lambda *s: torch.randn(*s, dtype=torch.bfloat16) * 0.1)(F, D))}
    _B_in = _B_setup()
    return {'A_q': _A_in['q'], 'A_k': _A_in['k'], 'A_v': _A_in['v'], 'A_shift_k': _A_in['shift_k'], 'A_ssm_k': _A_in['ssm_k'], 'A_ssm_D': _A_in['ssm_D'], 'B_x': _B_in['x'], 'B_w_gate': _B_in['w_gate'], 'B_w_up': _B_in['w_up'], 'B_w_down': _B_in['w_down'], 'c': _w((lambda *s: torch.randn(*s, dtype=torch.bfloat16) * 0.2)(1, 448) * 8.0), 'w_mod': _w((lambda *s: torch.randn(*s, dtype=torch.bfloat16) * 0.2)(448, 6 * 448) * 448 ** (-0.5) * 8.0)}

def reference(A_q, A_k, A_v, A_shift_k, A_ssm_k, A_ssm_D, B_x, B_w_gate, B_w_up, B_w_down, c, w_mod):

    def _A_ref(q, k, v, shift_k, ssm_k, ssm_D):
        B, S, D = q.shape
        ks = shift_k.shape[-1]
        k_pad = _pad(k, ((0, 0), (ks - 1, 0), (0, 0)))
        k_shift = torch.zeros_like(k)
        for t in range(ks):
            k_shift = k_shift + k_pad[:, t:t + S, :] * shift_k[:, ks - 1 - t][None, None, :]
        kv = k_shift * v
        L = 2 * S
        kv_pad = _pad(kv, ((0, 0), (0, S), (0, 0)))
        kf_pad = _pad(ssm_k, ((0, 0), (0, S)))
        kv_f = (lambda x, axes=(-2, -1): torch.fft.rfft2(x.float(), dim=axes))(kv_pad[:, None, :, :], axes=(1, 2))
        kf_f = (lambda x, axes=(-2, -1): torch.fft.rfft2(x.float(), dim=axes))(kf_pad[:, None, :], axes=(1, 2))
        kf_f = (lambda x, *d: x.permute(*d))(kf_f, 1, 2, 0)
        y_f = kv_f * kf_f[None, :, :, :]
        y = (lambda x, s, axes=(-2, -1): torch.fft.irfft2(x, s=s, dim=axes).to(torch.bfloat16))(y_f, (1, L), axes=(1, 2))[:, 0, :S, :]
        y = y + kv * ssm_D[None, None, :]
        return q * y

    def _B_ref(x, w_gate, w_up, w_down):
        g = _silu(x @ w_gate)
        u = x @ w_up
        return g * u @ w_down
    x = A_q
    mod = (_silu(c) @ w_mod).reshape(c.shape[0], 6, 1, -1)
    sa, ca, ga, sb, cb, gb = (mod[:, 0].clone(), mod[:, 1].clone(), mod[:, 2].clone(), mod[:, 3].clone(), mod[:, 4].clone(), mod[:, 5].clone())
    h = _layernorm(x, axis=-1) * (1 + ca) + sa
    x = x + ga * _A_ref(h, A_k, A_v, A_shift_k, A_ssm_k, A_ssm_D)
    h = _layernorm(x, axis=-1) * (1 + cb) + sb
    x = x + gb * _B_ref(h, B_w_gate, B_w_up, B_w_down)
    return x
```

```python
import re

class R:
    __slots__ = ("k", "n", "c")
    def __init__(self, k, n, c=1):
        self.k = k; self.n = n; self.c = c
    def __str__(self):
        if self.c == 1: return f"{self.k}{self.n}"
        return f"{self.k}[{self.n}:{self.n+self.c-1}]"
    def regs(self):
        return [(self.k, self.n + i) for i in range(self.c)]
    def __getitem__(self, i):
        if isinstance(i, slice):
            a = i.start or 0; b = i.stop if i.stop is not None else self.c
            return R(self.k, self.n + a, b - a)
        assert 0 <= i < self.c
        return R(self.k, self.n + i, 1)

def V(n, c=1): return R("v", n, c)
def S(n, c=1): return R("s", n, c)
def A(n, c=1): return R("a", n, c)
class Sp(R):
    def __init__(self, name): self.k = name; self.n = 0; self.c = 1
    def __str__(self): return self.k
    def regs(self): return [(self.k, 0)]
VCC = Sp("vcc"); EXEC = Sp("exec"); M0 = Sp("m0")

class Neg:
    def __init__(self, r): self.r = r
    def __str__(self): return f"-{self.r}"
    def regs(self): return self.r.regs()

TRANS = ("v_exp_f32", "v_log_f32", "v_rcp_f32", "v_rsq_f32", "v_sqrt_f32", "v_sin_f32", "v_cos_f32")

class Inst:
    __slots__ = ("op", "ops", "mods", "w", "r", "kind", "text", "passes", "srcc", "srcab")

class Prog:
    def __init__(self):
        self.items = []
        self.vm_issued = 0; self.vm_done = 0
        self.lg_issued = 0; self.lg_done = 0
        self.maxv = -1; self.maxa = -1; self.maxs = -1

    def raw(self, s):
        self.items.append(s)

    def label(self, name):
        self.items.append(("label", name))

    def comment(self, s):
        self.items.append("    ; " + s)

    def I(self, op, *ops, mods=""):
        it = Inst(); it.op = op; it.ops = ops; it.mods = mods
        it.passes = 0; it.srcc = []; it.srcab = []
        def rg(x): return x.regs() if hasattr(x, "regs") else []
        w = []; r = []
        if op.startswith("v_mfma"):
            it.kind = "mfma"
            it.passes = 8 if "32x32" in op else 4
            w = rg(ops[0]); it.srcab = rg(ops[1]) + rg(ops[2]); it.srcc = rg(ops[3]); r = it.srcab + it.srcc
        elif op.startswith("v_cmp"):
            it.kind = "valu"; w = rg(ops[0]); r = sum((rg(x) for x in ops[1:]), [])
        elif op.startswith("v_permlane") and "swap" in op:
            it.kind = "valu"; w = rg(ops[0]) + rg(ops[1]); r = list(w)
        elif op.startswith("v_"):
            it.kind = "valu"; w = rg(ops[0]); r = sum((rg(x) for x in ops[1:]), [])
            if op.startswith(("v_fmac", "v_dot2c", "v_pk_fmac")) or "_dpp" in op or "dpp" in mods or "row_" in mods or "quad_perm" in mods:
                r += rg(ops[0])
            if op in ("v_add_co_u32", "v_addc_co_u32", "v_sub_co_u32"):
                w += rg(ops[1])
            if op == "v_cndmask_b32" and len(ops) == 3:
                r += VCC.regs()
        elif op.startswith("ds_read") or op.startswith("ds_bpermute") or op.startswith("ds_swizzle"):
            it.kind = "ds"; w = rg(ops[0]); r = sum((rg(x) for x in ops[1:]), [])
        elif op.startswith("ds_"):
            it.kind = "ds"; r = sum((rg(x) for x in ops), [])
        elif op.startswith(("buffer_load", "global_load")):
            it.kind = "vmem"
            if "lds" in mods.split() or "_lds_" in op:
                r = sum((rg(x) for x in ops), []) + M0.regs(); it.kind = "vmem_lds"
            else:
                w = rg(ops[0]); r = sum((rg(x) for x in ops[1:]), [])
        elif op.startswith(("buffer_store", "global_store", "buffer_atomic", "global_atomic")):
            it.kind = "vmem_st"; r = sum((rg(x) for x in ops), [])
        elif op.startswith("s_load") or op.startswith("s_memtime") or op.startswith("s_memreal"):
            it.kind = "smem"; w = rg(ops[0]); r = sum((rg(x) for x in ops[1:]), [])
        elif op.startswith(("s_cmp", "s_cbranch", "s_branch", "s_waitcnt", "s_barrier", "s_nop", "s_endpgm", "s_setprio", "s_sleep")):
            it.kind = "sctl"; r = sum((rg(x) for x in ops), [])
        elif op.startswith("s_"):
            it.kind = "salu"; w = rg(ops[0]); r = sum((rg(x) for x in ops[1:]), [])
            if "saveexec" in op: w += EXEC.regs()
        else:
            raise ValueError(op)
        it.w = w; it.r = r
        for (k, n) in w + r:
            if k == "v": self.maxv = max(self.maxv, n)
            elif k == "a": self.maxa = max(self.maxa, n)
            elif k == "s": self.maxs = max(self.maxs, n)
        txt = op + " " + ", ".join(str(x) for x in ops)
        if mods: txt += " " + mods
        it.text = "    " + txt
        self.items.append(it)
        if it.kind in ("vmem", "vmem_lds", "vmem_st"):
            self.vm_issued += 1; return self.vm_issued
        if it.kind == "ds":
            self.lg_issued += 1; return self.lg_issued
        return None

    def wait_vm(self, ticket):
        if ticket is None or ticket <= self.vm_done: return
        n = self.vm_issued - ticket
        assert n <= 63, n
        self.I("s_waitcnt", f"vmcnt({n})"); self.vm_done = ticket

    def wait_lg(self, ticket):
        if ticket is None or ticket <= self.lg_done: return
        n = self.lg_issued - ticket
        assert n <= 15, n
        self.I("s_waitcnt", f"lgkmcnt({n})"); self.lg_done = ticket

    def wait_all(self):
        self.I("s_waitcnt", "vmcnt(0) lgkmcnt(0)"); self.vm_done = self.vm_issued; self.lg_done = self.lg_issued
    def wait_lg0(self):
        self.I("s_waitcnt", "lgkmcnt(0)"); self.lg_done = self.lg_issued
    def wait_vm0(self):
        self.I("s_waitcnt", "vmcnt(0)"); self.vm_done = self.vm_issued

    def reset_counters(self):
        self.vm_issued = self.vm_done = 0; self.lg_issued = self.lg_done = 0

    def finalize(self):
        out = []
        hist = []
        pos = 0
        lastw = {}
        lastc = {}
        laststore = {}
        for it in self.items:
            if isinstance(it, str):
                out.append(it); continue
            if isinstance(it, tuple):
                out.append(f"{it[1]}:"); continue
            need = 0
            def req(p, n):
                nonlocal need
                d = n - (pos - p - 1)
                if d > need: need = d
            isdpp = ("row_" in it.mods or "quad_perm" in it.mods or "wave_" in it.mods)
            for rgs in it.r:
                if rgs in lastw:
                    p, pi = lastw[rgs]
                    if pi.kind == "valu":
                        if rgs[0] in ("v", "a"):
                            if it.kind == "mfma": req(p, 2)
                            if isdpp: req(p, 2)
                            if it.op.startswith(("v_readlane", "v_readfirstlane")): req(p, 1)
                            if it.op.startswith("v_permlane"): req(p, 2)
                            if pi.op.startswith("v_dot"):
                                if it.op == pi.op and len(it.ops) == 4 and hasattr(it.ops[3], "regs") and rgs in it.ops[3].regs() and not any(rgs in x.regs() for x in it.ops[1:3] if hasattr(x, "regs")): pass
                                else: req(p, 3)
                            if pi.op in TRANS and it.op not in TRANS: req(p, 1)
                            if pi.op in TRANS and it.op in TRANS: req(p, 1)
                        else:
                            if it.kind == "valu": req(p, 4 if it.op.startswith(("v_readlane", "v_writelane")) else 2)
                            if it.kind.startswith("vmem"): req(p, 5)
                            if it.kind in ("salu", "sctl", "smem"): req(p, 2)
                    elif pi.kind == "mfma":
                        big = 12 if pi.passes == 8 else 8
                        if it.kind == "mfma":
                            if rgs in it.srcab: req(p, big)
                            elif it.srcc == pi.w and it.passes == pi.passes: pass
                            else: req(p, 10 if pi.passes == 8 else 6)
                        else:
                            req(p, big)
                    elif pi.kind == "salu":
                        if rgs == ("m0", 0) and it.kind in ("vmem_lds",): req(p, 1)
            for rgs in it.w:
                if rgs in lastw:
                    p, pi = lastw[rgs]
                    if pi.op.startswith("v_dot") and it.op != pi.op: req(p, 3)
                    if pi.kind == "mfma" and it.kind != "mfma":
                        req(p, 12 if pi.passes == 8 else 8)
                    if pi.kind == "mfma" and it.kind == "mfma" and not (it.srcc == pi.w and it.w == pi.w):
                        req(p, 12 if pi.passes == 8 else 8)
                if rgs in lastc and it.kind != "mfma":
                    p, ps = lastc[rgs]; req(p, 7 if ps == 8 else 3)
                if rgs in laststore and it.kind != "mfma":
                    req(laststore[rgs], 2)
            if it.kind == "mfma" and ("exec", 0) in lastw and lastw[("exec", 0)][1].kind == "valu":
                req(lastw[("exec", 0)][0], 4)
            while need > 0:
                k = min(need, 16)
                out.append(f"    s_nop {k-1}"); pos += k; need -= k
            out.append(it.text)
            for rgs in it.w: lastw[rgs] = (pos, it)
            if it.kind == "mfma":
                for rgs in it.srcc: lastc[rgs] = (pos, it.passes)
            if it.kind == "vmem_st" and ("x4" in it.op or "x3" in it.op):
                for rgs in it.ops[0].regs() if it.op.startswith("buffer") else it.ops[1].regs(): laststore[rgs] = pos
            if it.op == "s_nop": pos += int(it.ops[0]) + 1
            else: pos += 1
        return "\n".join(out) + "\n"

def kernel_header(name):
    return f""".globl {name}
.p2align 8
.type {name},@function
{name}:
"""

def kernel_desc(name, nv, na, ns, extra=""):
    acc = max(4, (nv + 3) // 4 * 4)
    tot = acc + na if na > 0 else nv
    return f""".section .rodata,"a"
.p2align 6
.amdhsa_kernel {name}
  .amdhsa_next_free_vgpr {tot}
  .amdhsa_next_free_sgpr {ns}
  .amdhsa_accum_offset {acc}
  .amdhsa_group_segment_fixed_size 0
  .amdhsa_kernarg_size 120
  .amdhsa_user_sgpr_count 2
  .amdhsa_user_sgpr_kernarg_segment_ptr 1
  .amdhsa_system_sgpr_workgroup_id_x 1
{extra}.end_amdhsa_kernel
.text
"""
```

```python
import sys, os
from asmgen import *

S_TOK = 2048; D = 448; F = 1792
ROWB = D * 2
TBB = D * 16
ARR = S_TOK * D * 2
WS_KV = 0x000000
WS_X = 0x200000
WS_X1 = 0x400000
WS_ST1 = 0x600000
WS_MOD = 0x610000
MODP = 2688 * 4
WS_CS = 0x620000
WS_BI = 0x640000
WS_ACT = 0x800000
WS_WP = 0x1000000
WS_WD = 0x1400000
WS_SIZE = 0x1400000 + 1792 * 448 * 2
ST_WT = os.environ.get('ST_WT', 'sc1')

P_Q, P_K, P_V, P_SH, P_SK, P_SD, P_BX, P_WG, P_WU, P_WD, P_C, P_WM, P_OUT, P_DBG, P_WS = [16 + 2 * i for i in range(15)]

STAMP = int(os.environ.get('STAMP', '0'))
WS_DBG = 0x700000
def stamp(p, k, wait=True):
    if not STAMP: return
    p.I("s_memtime", S(76 + 2 * k, 2))
    if wait:
        p.I("s_waitcnt", "lgkmcnt(0)"); p.lg_done = p.lg_issued
def stamp_out(p, n, sws, kern):
    if not STAMP: return
    for k in range(n): p.I("v_mov_b32", V(8 + k), S(76 + 2 * k))
    for k in range(n, 8): p.I("v_mov_b32", V(8 + k), 0)
    p.I("v_lshrrev_b32", V(16), 6, V(0)); p.I("v_lshlrev_b32", V(16), 5, V(16))
    p.I("s_lshl_b32", S(74), S(2), 8); p.I("s_add_u32", S(74), S(74), WS_DBG + kern * 0x20000)
    p.I("v_and_b32", V(17), 63, V(0)); p.I("v_cmp_eq_u32", VCC, 0, V(17))
    p.I("s_and_saveexec_b64", S(72, 2), VCC)
    p.I("buffer_store_dwordx4", V(8, 4), V(16), sws, S(74), mods="offen")
    p.I("buffer_store_dwordx4", V(12, 4), V(16), sws, S(74), mods="offen offset:16")
    p.I("s_mov_b64", EXEC, S(72, 2))

STAMP_GROUPS = {0: [(0, 88), (88, 312), (312, 440)], 1: [(0, 224)], 2: [(0, 256)], 3: [(0, 224)]}
def load_kernargs(p):
    p.I("s_load_dwordx16", S(16, 16), S(0, 2), 0)
    p.I("s_load_dwordx8", S(32, 8), S(0, 2), 64)
    p.I("s_load_dwordx4", S(40, 4), S(0, 2), 96)
    p.I("s_load_dwordx2", S(44, 2), S(0, 2), 112)

def srd(p, dst, ptr, size, off=0):
    if isinstance(off, int) and off == 0:
        p.I("s_mov_b32", S(dst), S(ptr)); p.I("s_mov_b32", S(dst + 1), S(ptr + 1))
    else:
        p.I("s_add_u32", S(dst), S(ptr), off); p.I("s_addc_u32", S(dst + 1), S(ptr + 1), 0)
    p.I("s_mov_b32", S(dst + 2), size); p.I("s_mov_b32", S(dst + 3), 0x20000)
    return S(dst, 4)

def unpack(p, dst_pair, src, smask):
    p.I("v_lshlrev_b32", dst_pair[0], 16, src)
    p.I("v_and_b32", dst_pair[1], smask, src)

def rnd_pair(p, pair, tmp, smask):
    p.I("v_cvt_pk_bf16_f32", tmp, pair[0], pair[1])
    unpack(p, pair, tmp, smask)

def rnd1(p, r, smask=None):
    p.I("v_cvt_pk_bf16_f32", r, r, r)
    p.I("v_lshlrev_b32", r, 16, r)

def xrow_sum(p, x, t):
    p.I("v_mov_b32", t, x); p.I("v_permlane16_swap_b32", t, x); p.I("v_add_f32", x, x, t)
    p.I("v_mov_b32", t, x); p.I("v_permlane32_swap_b32", t, x); p.I("v_add_f32", x, x, t)

def wave_sum_multi(p, xs, ts):
    for m in ("quad_perm:[1,0,3,2]", "quad_perm:[2,3,0,1]", "row_half_mirror", "row_mirror"):
        for x in xs:
            p.I("v_add_f32_dpp", x, x, x, mods=m + " row_mask:0xf bank_mask:0xf")
    for swap in ("v_permlane16_swap_b32", "v_permlane32_swap_b32"):
        for x, t in zip(xs, ts): p.I("v_mov_b32", t, x)
        for x, t in zip(xs, ts): p.I(swap, t, x)
        for x, t in zip(xs, ts): p.I("v_add_f32", x, x, t)

def gemv64(p, wsrd, rowbytes, colbyte_s, ncoef, coef_fn, out_fn, tag, swsx, fl=''):
    SM = S(6)
    stamp(p, 1, False)
    p.I("s_mov_b32", SM, 0xffff0000)
    vco = V(1); vrg = V(2); voff = V(3)
    p.I("v_and_b32", vco, 7, V(0))
    p.I("v_lshrrev_b32", vrg, 3, V(0))
    p.I("s_mov_b32", S(7), rowbytes)
    p.I("v_mul_lo_u32", voff, vrg, S(7))
    p.I("v_lshl_add_u32", voff, vco, 4, voff)
    W = [V(8 + 4 * i, 4) for i in range(7)]
    tk = []
    tc = coef_fn[0](p, vrg)
    for i in range(7):
        p.I("s_add_u32", S(8), colbyte_s, i * 32 * rowbytes)
        tk.append(p.I("buffer_load_dwordx4", W[i], voff, wsrd, S(8), mods="offen " + fl))
    coefs = coef_fn[1](p, tc)
    stamp(p, 2, False)
    ACC = [V(108 + 8 * c, 8) for c in range(ncoef)]
    for c in range(ncoef):
        for j in range(8): p.I("v_mov_b32", ACC[c][j], 0)
    for i in range(7):
        U = V(124 + 8 * (i & 1), 8)
        p.wait_vm(tk[i])
        for j in range(4): unpack(p, U[2 * j:2 * j + 2], W[i][j], SM)
        for c in range(ncoef):
            for j in range(8):
                p.I("v_fmac_f32", ACC[c][j], coefs[c][i], U[j])
    stamp(p, 3, False)
    allacc = [ACC[c][j] for c in range(ncoef) for j in range(8)]
    for x in allacc:
        p.I("v_add_f32_dpp", x, x, x, mods="row_ror:8 row_mask:0xf bank_mask:0xf")
    T = [V(8 + i) for i in range(len(allacc))]
    for swap in ("v_permlane16_swap_b32", "v_permlane32_swap_b32"):
        for x, t in zip(allacc, T): p.I("v_mov_b32", t, x)
        for x, t in zip(allacc, T): p.I(swap, t, x)
        for x, t in zip(allacc, T): p.I("v_add_f32", x, x, t)
    vw = V(4); va = V(5)
    p.I("v_lshrrev_b32", vw, 6, V(0))
    p.I("v_lshlrev_b32", va, 8, vw)
    p.I("v_lshl_add_u32", va, vco, 5, va)
    p.I("v_and_b32", V(6), 63, V(0))
    p.I("v_cmp_gt_u32", VCC, 8, V(6))
    p.I("s_and_saveexec_b64", S(10, 2), VCC)
    for c in range(ncoef):
        p.I("ds_write_b128", va, ACC[c][0:4], mods=f"offset:{c*1024}")
        p.I("ds_write_b128", va, ACC[c][4:8], mods=f"offset:{c*1024+16}")
    p.I("s_mov_b64", EXEC, S(10, 2))
    p.wait_lg0()
    p.I("s_barrier")
    stamp(p, 4)
    stamp_out(p, 5, swsx, 0 if tag == "k1mod" else 1)
    p.I("v_readfirstlane_b32", S(10), vw)
    p.I("s_cmp_lg_u32", S(10), 0)
    p.I("s_cbranch_scc1", f"L_{tag}_done")
    p.I("v_lshlrev_b32", va, 2, V(0))
    res = []
    for c in range(ncoef):
        Rr = V(8 + 4 * c, 4)
        for w in range(4):
            p.I("ds_read_b32", Rr[w], va, mods=f"offset:{c*1024 + w*256}")
        res.append(Rr)
    p.wait_lg0()
    for c in range(ncoef):
        Rr = res[c]
        p.I("v_add_f32", Rr[0], Rr[0], Rr[1]); p.I("v_add_f32", Rr[2], Rr[2], Rr[3]); p.I("v_add_f32", Rr[0], Rr[0], Rr[2])
    out_fn(p, [r[0] for r in res], va)
    p.label(f"L_{tag}_done")
    p.I("s_endpgm")

NMOD = 88; NTR = 224; NST = 128
NT_IN = os.environ.get('NT_IN', 'nt')
def gen_k1():
    p = Prog()
    load_kernargs(p)
    stamp(p, 0, False)
    p.I("s_cmp_lt_u32", S(2), NMOD)
    p.I("s_cbranch_scc1", "L_k1_mod")
    p.I("s_sub_u32", S(3), S(2), NMOD)
    p.I("s_cmp_ge_u32", S(3), NTR)
    p.I("s_cbranch_scc1", "L_k1_stats")
    p.I("s_mul_hi_u32", S(4), S(3), 613566757)
    p.I("s_mul_i32", S(5), S(4), 7); p.I("s_sub_u32", S(5), S(3), S(5))
    SM = S(6)
    p.I("s_mov_b32", SM, 0xffff0000)
    p.I("s_mul_i32", S(7), S(4), 64 * ROWB); p.I("s_lshl_b32", S(8), S(5), 7); p.I("s_add_u32", S(7), S(7), S(8))
    vo = V(1); vo2 = V(2); voh = V(3); vsh = V(4); vcp = V(5); vtg = V(6)
    p.I("v_and_b32", vcp, 31, V(0)); p.I("v_lshrrev_b32", vtg, 5, V(0))
    p.I("v_mul_u32_u24", vo, 8 * ROWB, vtg); p.I("v_lshl_add_u32", vo, vcp, 2, vo); p.I("v_add_u32", vo, S(7), vo)
    p.I("v_add_u32", vo2, 4480, vo)
    p.I("v_subrev_u32", voh, 2688, vo)
    p.I("s_lshl_b32", S(8), S(5), 9)
    p.I("v_lshl_add_u32", vsh, vcp, 4, S(8))
    p.I("s_waitcnt", "lgkmcnt(0)")
    sq = srd(p, 48, P_Q, ARR); sk = srd(p, 52, P_K, ARR); sv = srd(p, 56, P_V, ARR)
    ssh = srd(p, 60, P_SH, D * 8); sws = srd(p, 64, P_WS, WS_SIZE)
    stamp(p, 1, False)
    KR = [V(8 + j) for j in range(11)]
    VR = [V(20 + j) for j in range(8)]
    QR = [V(28 + j) for j in range(8)]
    SH = V(36, 4)
    def rowload(dst, srdx, j, fl):
        if j < 5: return p.I("buffer_load_dword", dst, vo, srdx, 0, mods=f"offen offset:{j*896} {fl}")
        return p.I("buffer_load_dword", dst, vo2, srdx, 0, mods=f"offen offset:{(j-5)*896} {fl}")
    tsh = p.I("buffer_load_dwordx4", SH, vsh, ssh, 0, mods="offen")
    tk = []
    for j in range(3): tk.append(p.I("buffer_load_dword", KR[j], voh, sk, 0, mods=f"offen offset:{j*896} {NT_IN}"))
    for j in range(8): tk.append(rowload(KR[3 + j], sk, j, NT_IN))
    tv = [rowload(VR[j], sv, j, NT_IN) for j in range(8)]
    tq = [rowload(QR[j], sq, j, "") for j in range(8)]
    vlw = V(40); vlr = V(41); vgo = V(42); vt = V(43)
    p.I("v_and_b32", vt, 7, vcp); p.I("v_xor_b32", vt, vt, vtg)
    p.I("v_lshlrev_b32", vlw, 8, vcp); p.I("v_lshl_add_u32", vlw, vt, 4, vlw)
    p.I("v_lshrrev_b32", vt, 4, V(0)); p.I("v_xor_b32", vt, vt, V(0)); p.I("v_and_b32", vt, 7, vt)
    p.I("v_lshrrev_b32", vlr, 3, V(0)); p.I("v_lshlrev_b32", vgo, 12, vlr)
    p.I("v_lshlrev_b32", vlr, 7, vlr); p.I("v_lshl_add_u32", vlr, vt, 4, vlr)
    p.I("v_and_b32", vt, 7, V(0)); p.I("v_lshl_add_u32", vgo, vt, 4, vgo)
    p.I("s_lshl_b32", S(7), S(5), 18); p.I("s_lshl_b32", S(8), S(4), 7); p.I("s_add_u32", S(7), S(7), S(8))
    stamp(p, 2, False)
    Wt = [V(48 + 2 * t, 2) for t in range(4)]
    p.wait_vm(tsh)
    p.I("v_lshlrev_b32", Wt[0][0], 16, SH[0]); p.I("v_and_b32", Wt[1][0], SM, SH[0])
    p.I("v_lshlrev_b32", Wt[2][0], 16, SH[1]); p.I("v_and_b32", Wt[3][0], SM, SH[1])
    p.I("v_lshlrev_b32", Wt[0][1], 16, SH[2]); p.I("v_and_b32", Wt[1][1], SM, SH[2])
    p.I("v_lshlrev_b32", Wt[2][1], 16, SH[3]); p.I("v_and_b32", Wt[3][1], SM, SH[3])
    KF = [V(56 + 2 * j, 2) for j in range(11)]
    p.wait_vm(tk[-1])
    stamp(p, 3, False)
    for j in range(11): unpack(p, KF[j], KR[j], SM)
    ACC = [V(78 + 2 * s, 2) for s in range(8)]
    PR = [V(94 + 2 * s, 2) for s in range(8)]
    TM = [V(110 + s) for s in range(8)]
    for s in range(8): p.I("v_pk_mul_f32", ACC[s], KF[s], Wt[3])
    for s in range(8): p.I("v_cvt_pk_bf16_f32", TM[s], ACC[s][0], ACC[s][1])
    for s in range(8): unpack(p, ACC[s], TM[s], SM)
    for step in (1, 2, 3):
        for s in range(8): p.I("v_pk_mul_f32", PR[s], KF[s + step], Wt[3 - step])
        for s in range(8): p.I("v_cvt_pk_bf16_f32", TM[s], PR[s][0], PR[s][1])
        for s in range(8): unpack(p, PR[s], TM[s], SM)
        for s in range(8): p.I("v_pk_add_f32", ACC[s], ACC[s], PR[s])
        for s in range(8): p.I("v_cvt_pk_bf16_f32", TM[s], ACC[s][0], ACC[s][1])
        for s in range(8): unpack(p, ACC[s], TM[s], SM)
    stamp(p, 4, False)
    p.wait_vm(tv[-1])
    for s in range(8): unpack(p, PR[s], VR[s], SM)
    for s in range(8): p.I("v_pk_mul_f32", ACC[s], ACC[s], PR[s])
    G = [V(8, 4), V(12, 4)]
    for ch in range(2):
        for e2 in range(4):
            p.I("v_cvt_pk_bf16_f32", G[ch][e2], ACC[7 - 2 * e2][ch], ACC[6 - 2 * e2][ch])
    p.I("ds_write_b128", vlw, G[0]); p.I("ds_write_b128", vlw, G[1], mods="offset:128")
    p.I("s_mov_b32", S(9), 0x05040100); p.I("s_mov_b32", S(10), 0x07060302)
    XG = [V(20, 4), V(24, 4)]
    p.wait_vm(tq[-1])
    for e2 in range(4):
        p.I("v_perm_b32", XG[0][e2], QR[2 * e2 + 1], QR[2 * e2], S(9))
        p.I("v_perm_b32", XG[1][e2], QR[2 * e2 + 1], QR[2 * e2], S(10))
    p.I("ds_write_b128", vlw, XG[0], mods="offset:8192"); p.I("ds_write_b128", vlw, XG[1], mods="offset:8320")
    p.wait_lg0()
    stamp(p, 5)
    p.I("s_barrier")
    O = [V(56 + 4 * i, 4) for i in range(4)]
    to = [p.I("ds_read_b128", O[i], vlr, mods=f"offset:{4096*i}") for i in range(4)]
    for i in range(4):
        p.I("s_add_u32", S(8), S(7), (WS_X if i >= 2 else WS_KV) + (i & 1) * 32 * 4096)
        p.wait_lg(to[i])
        p.I("buffer_store_dwordx4", O[i], vgo, sws, S(8), mods="offen")
    stamp(p, 6)
    if STAMP:
        p.wait_vm0(); stamp(p, 7)
    stamp_out(p, 8, sws, 0)
    p.I("s_endpgm")
    p.label("L_k1_stats")
    p.reset_counters()
    p.I("s_sub_u32", S(3), S(3), NTR)
    p.I("s_cmp_ge_u32", S(3), NST)
    p.I("s_cbranch_scc1", "L_k1_exit")
    SM = S(6)
    p.I("s_mov_b32", SM, 0xffff0000)
    vlane = V(6); vst = V(5)
    p.I("v_and_b32", vlane, 63, V(0))
    p.I("v_lshrrev_b32", vst, 6, V(0))
    p.I("v_mul_u32_u24", vst, 4 * ROWB, vst)
    p.I("v_lshl_add_u32", vst, vlane, 4, vst)
    p.I("s_mul_i32", S(4), S(3), 16 * ROWB)
    p.I("v_cmp_gt_u32", S(14, 2), 56, vlane)
    p.I("s_mov_b64", S(10, 2), EXEC)
    p.I("s_waitcnt", "lgkmcnt(0)")
    sq = srd(p, 48, P_Q, ARR); sws = srd(p, 64, P_WS, WS_SIZE)
    stamp(p, 1, False)
    XS = [V(8 + 4 * i, 4) for i in range(4)]
    SU = [V(24 + i) for i in range(4)]; TT = [V(28 + i) for i in range(4)]; VA = [V(32 + i) for i in range(4)]
    for i in range(4): p.I("v_mov_b32", SU[i], 0); p.I("v_mov_b32", VA[i], 0)
    p.I("s_mov_b32", S(7), 0x3f803f80)
    p.I("s_mov_b64", EXEC, S(14, 2))
    tx = [p.I("buffer_load_dwordx4", XS[i], vst, sq, S(4), mods=f"offen offset:{i*896}") for i in range(4)]
    for i in range(4):
        p.wait_vm(tx[i])
        for j in range(4): p.I("v_dot2_f32_bf16", SU[i], XS[i][j], S(7), SU[i])
    stamp(p, 2, False)
    p.I("s_mov_b64", EXEC, S(10, 2))
    wave_sum_multi(p, SU, TT)
    p.I("s_mov_b32", S(8), 0x3b124925)
    for i in range(4): p.I("v_mul_f32", SU[i], S(8), SU[i])
    p.I("s_mov_b64", EXEC, S(14, 2))
    for i in range(4):
        U = V(40 + 8 * i, 8)
        for j in range(4): unpack(p, U[2 * j:2 * j + 2], XS[i][j], SM)
        for j in range(8): p.I("v_sub_f32", U[j], U[j], SU[i])
    for j in range(8):
        for i in range(4):
            U = V(40 + 8 * i, 8)
            p.I("v_fmac_f32", VA[i], U[j], U[j])
    p.I("s_mov_b64", EXEC, S(10, 2))
    wave_sum_multi(p, VA, TT)
    O = V(36, 4)
    p.I("s_mov_b32", S(9), 0x3727c5ac)
    for i in range(4): p.I("v_mul_f32", VA[i], S(8), VA[i])
    for i in range(4): rnd1(p, VA[i])
    for i in range(4): p.I("v_add_f32", VA[i], S(9), VA[i])
    for i in range(4): rnd1(p, VA[i])
    for i in range(4): p.I("v_sqrt_f32", VA[i], VA[i])
    for i in range(4): p.I("v_cvt_pk_bf16_f32", O[i], SU[i], VA[i])
    p.I("v_lshrrev_b32", V(1), 6, V(0))
    p.I("v_lshlrev_b32", V(1), 4, V(1))
    p.I("s_lshl_b32", S(4), S(3), 6)
    p.I("s_add_u32", S(4), S(4), WS_ST1)
    p.I("v_cmp_eq_u32", VCC, 0, vlane)
    p.I("s_and_saveexec_b64", S(10, 2), VCC)
    p.I("buffer_store_dwordx4", O, V(1), sws, S(4), mods="offen")
    p.I("s_mov_b64", EXEC, S(10, 2))
    stamp(p, 3)
    stamp_out(p, 4, sws, 0)
    p.label("L_k1_exit")
    p.I("s_endpgm")
    p.label("L_k1_mod")
    p.reset_counters()
    p.I("s_cmp_ge_u32", S(2), 84)
    p.I("s_cbranch_scc1", "L_k1_exit")
    p.I("s_lshr_b32", S(3), S(2), 1); p.I("s_and_b32", S(5), S(2), 1)
    p.I("s_waitcnt", "lgkmcnt(0)")
    swm = srd(p, 48, P_WM, D * 6 * D * 2); sc = srd(p, 52, P_C, D * 2); sws = srd(p, 64, P_WS, WS_SIZE)
    p.I("s_lshl_b32", S(4), S(3), 7); p.I("s_mul_i32", S(12), S(5), 224 * 6 * D * 2); p.I("s_add_u32", S(4), S(4), S(12))
    p.I("s_mul_i32", S(12), S(5), 448)
    def coef_ld(p, vrg):
        C = [V(64 + i) for i in range(7)]
        p.I("v_lshlrev_b32", V(92), 1, vrg)
        return [p.I("buffer_load_ushort", C[i], V(92), sc, S(12), mods=f"offen offset:{i*64}") for i in range(7)]
    def coef(p, t):
        C = [V(64 + i) for i in range(7)]; E = [V(78 + i) for i in range(7)]
        p.I("s_mov_b32", S(9), 0xbfb8aa3b)
        p.wait_vm(t[-1])
        for i in range(7): p.I("v_lshlrev_b32", C[i], 16, C[i])
        for i in range(7): p.I("v_mul_f32", E[i], S(9), C[i])
        for i in range(7): p.I("v_exp_f32", E[i], E[i])
        for i in range(7): p.I("v_add_f32", E[i], 1.0, E[i])
        for i in range(7): p.I("v_rcp_f32", E[i], E[i])
        for i in range(7): p.I("v_mul_f32", C[i], C[i], E[i])
        for i in range(7): rnd1(p, C[i])
        return [C]
    def outf(p, res, va):
        p.I("s_lshl_b32", S(4), S(3), 8); p.I("s_mul_i32", S(12), S(5), MODP); p.I("s_add_u32", S(4), S(4), S(12))
        p.I("s_add_u32", S(4), S(4), WS_MOD)
        p.I("buffer_store_dword", res[0], va, sws, S(4), mods="offen")
    gemv64(p, swm, 6 * D * 2, S(4), 1, (coef_ld, coef), outf, "k1mod", sws, NT_IN)
    return p

KC0 = 0; KCS = 4160; KCC = 4 * KCS
KV0 = 2 * KCC; KVC = 5120
P0 = KV0 + 2 * KVC; PS = 9216
SIDE0 = P0 + 4 * PS
K2_LDS = SIDE0 + 2048
NCONV = 224; NSIDE = 56
import os
INTERLEAVE = int(os.environ.get('INTERLEAVE', '1'))
def gen_k2():
    p = Prog()
    load_kernargs(p)
    stamp(p, 0, False)
    p.I("s_mov_b32", S(71), S(2))
    p.I("s_cmp_ge_u32", S(71), NCONV)
    p.I("s_cbranch_scc1", "L_k2_exit")
    SM = S(6)
    p.I("s_mov_b32", SM, 0xffff0000)
    p.I("s_and_b32", S(3), S(71), 7); p.I("s_mul_i32", S(3), S(3), 28); p.I("s_lshr_b32", S(4), S(71), 3)
    p.I("s_add_u32", S(3), S(3), S(4))
    vlane = V(1); vw = V(2)
    p.I("v_and_b32", vlane, 63, V(0))
    p.I("v_lshrrev_b32", vw, 6, V(0))
    p.I("v_readfirstlane_b32", S(4), vw)
    p.I("s_cmp_ge_u32", S(4), 4)
    p.I("s_cbranch_scc1", "L_k2_side")
    p.I("s_lshr_b32", S(5), S(4), 1)
    p.I("s_and_b32", S(7), S(4), 1)
    p.I("s_lshl_b32", S(8), S(3), 1); p.I("s_add_u32", S(8), S(8), S(5))
    p.I("s_waitcnt", "lgkmcnt(0)")
    ssk = srd(p, 48, P_SK, ARR); sws = srd(p, 52, P_WS, WS_SIZE)
    stamp(p, 1, False)
    p.I("s_lshl_b32", S(9), S(3), 3)
    p.I("s_add_u32", S(9), S(9), WS_MOD)
    p.I("s_add_u32", S(56), S(P_WS), S(9)); p.I("s_addc_u32", S(57), S(P_WS + 1), 0)
    p.I("s_load_dwordx2", S(60, 2), S(56, 2), 0 * D * 4)
    p.I("s_load_dwordx2", S(62, 2), S(56, 2), 1 * D * 4)
    p.I("s_load_dwordx2", S(64, 2), S(56, 2), 2 * D * 4)
    p.I("s_load_dwordx2", S(92, 2), S(56, 2), MODP + 0 * D * 4)
    p.I("s_load_dwordx2", S(94, 2), S(56, 2), MODP + 1 * D * 4)
    p.I("s_load_dwordx2", S(96, 2), S(56, 2), MODP + 2 * D * 4)
    p.I("s_lshl_b32", S(9), S(3), 2)
    p.I("s_add_u32", S(58), S(P_SD), S(9)); p.I("s_addc_u32", S(59), S(P_SD + 1), 0)
    p.I("s_load_dword", S(66), S(58, 2), 0)
    p.I("s_lshl_b32", S(10), S(8), 12)
    KW = [V(88 + 6 * i, 6) for i in range(2)]
    vkl = V(3)
    p.I("s_lshl_b32", S(12), S(7), 11)
    p.I("v_lshl_add_u32", vkl, vlane, 4, S(12))
    tkw = []
    for i in range(2):
        p.I("buffer_load_dwordx4", KW[i][0:4], vkl, ssk, S(10), mods=f"offen offset:{1024*i} {NT_IN}")
        tkw.append(p.I("buffer_load_dwordx2", KW[i][4:6], vkl, ssk, S(10), mods=f"offen offset:{1024*i+16} {NT_IN}"))
    vd = V(32); vd2 = V(33); vd3 = V(34)
    p.I("v_and_b32", vd, 15, vlane); p.I("v_lshlrev_b32", vd, 6, vd)
    p.I("v_lshrrev_b32", vd2, 4, vlane); p.I("v_lshl_add_u32", vd, vd2, 4, vd)
    p.I("s_lshl_b32", S(12), S(7), 11); p.I("s_add_u32", S(12), S(12), S(10))
    p.I("s_mul_i32", S(14), S(5), KVC); p.I("s_add_u32", S(14), S(14), KV0)
    p.I("s_lshl_b32", S(15), S(7), 11); p.I("s_add_u32", S(15), S(15), S(14))
    for qq in range(2):
        p.I("s_add_u32", M0, S(15), 1024 + qq * 1024)
        p.I("s_add_u32", S(13), S(12), WS_KV + qq * 1024)
        tdma = p.I("buffer_load_dwordx4", vd, sws, S(13), mods="offen lds")
    p.I("s_mul_i32", S(15), S(5), KCC); p.I("s_mul_i32", S(12), S(7), 2 * KCS); p.I("s_add_u32", S(15), S(15), S(12))
    XG = [V(8, 4), V(12, 4)]; SP = V(16, 8)
    vxo = V(6); vso = V(7)
    p.I("s_lshl_b32", S(11), S(3), 13)
    p.I("v_lshl_add_u32", vxo, V(0), 4, S(11))
    p.I("v_lshlrev_b32", vso, 5, V(0))
    p.I("s_mov_b32", S(12), WS_X); p.I("s_mov_b32", S(13), WS_ST1); p.I("s_mov_b32", S(70), WS_X + 4096)
    tx = [p.I("buffer_load_dwordx4", XG[i], vxo, sws, S(12) if i == 0 else S(70), mods="offen") for i in range(2)]
    tst = [p.I("buffer_load_dwordx4", SP[4 * i:4 * i + 4], vso, sws, S(13), mods=f"offen offset:{16*i}") for i in range(2)]
    stamp(p, 2, False)
    Z = V(36, 4); va = V(35); vb = V(40)
    for i in range(4): p.I("v_mov_b32", Z[i], 0)
    p.I("s_lshl_b32", S(12), S(7), 9); p.I("s_add_u32", S(12), S(12), S(14))
    p.I("v_lshl_add_u32", va, vlane, 4, S(12))
    p.I("v_bfe_u32", vb, vlane, 2, 2); p.I("v_mul_u32_u24", vb, KCS, vb)
    p.I("v_and_b32", V(41), 3, vlane); p.I("v_lshl_add_u32", vb, V(41), 4, vb); p.I("v_add_u32", vb, S(15), vb)
    p.I("v_cmp_gt_u32", VCC, 32, vlane)
    p.I("v_cndmask_b32", va, vb, va, VCC)
    p.I("s_lshl_b32", S(13), S(7), 4); p.I("s_sub_u32", S(13), 48, S(13))
    p.I("v_cmp_gt_u32", VCC, S(13), vlane)
    p.I("s_and_saveexec_b64", S(68, 2), VCC)
    p.I("ds_write_b128", va, Z)
    p.I("s_mov_b64", EXEC, S(68, 2))
    vcw = V(35)
    p.I("s_mul_i32", S(12), S(5), KCC)
    p.I("v_add_u32", vcw, S(12), vkl)
    for i in range(2):
        AL = V(100 + 6 * i, 6)
        p.wait_vm(tkw[i])
        if i == 0: stamp(p, 3, False)
        for j in range(5): p.I("v_alignbit_b32", AL[j], KW[i][j + 1], KW[i][j], 16)
        C2 = V(112, 4); C3 = V(116, 4)
        for j in range(4): p.I("v_mov_b32", C2[j], KW[i][j + 1]); p.I("v_mov_b32", C3[j], AL[j + 1])
        o = KC0 + 64 + 1024 * i
        p.I("ds_write_b128", vcw, KW[i][0:4], mods=f"offset:{o}")
        p.I("ds_write_b128", vcw, AL[0:4], mods=f"offset:{o + KCS}")
        p.I("ds_write_b128", vcw, C2, mods=f"offset:{o + 2*KCS}")
        p.I("ds_write_b128", vcw, C3, mods=f"offset:{o + 3*KCS}")
    FX = V(4, 2)
    p.I("v_readfirstlane_b32", S(68), KW[0][0]); p.I("v_readfirstlane_b32", S(69), KW[0][1])
    p.I("v_lshlrev_b32", vb, 4, vlane); p.I("v_sub_u32", vb, 48, vb)
    p.I("v_mul_u32_u24", va, KCS, vlane); p.I("v_add_u32", va, S(12), va)
    p.I("v_mov_b32", FX[0], S(68)); p.I("v_mov_b32", FX[1], S(69))
    p.I("v_lshlrev_b64", FX, vb, FX)
    p.I("v_lshlrev_b64", FX, 16, FX)
    p.I("s_lshl_b32", S(13), S(7), 2); p.I("s_sub_u32", S(13), 4, S(13))
    p.I("v_cmp_gt_u32", VCC, S(13), vlane)
    p.I("s_and_saveexec_b64", S(68, 2), VCC)
    p.I("ds_write_b64", va, FX, mods="offset:56")
    p.I("s_mov_b64", EXEC, S(68, 2))
    vA = V(42); vB = V(43); vi = V(44); vq = V(45); vt = V(46)
    p.I("v_and_b32", vi, 15, vlane); p.I("v_lshrrev_b32", vq, 4, vlane)
    p.I("v_add_u32", vt, 1, vi)
    p.I("v_and_b32", vA, 3, vt); p.I("v_mul_u32_u24", vA, KCS, vA)
    p.I("v_and_b32", vt, 28, vt); p.I("v_lshl_add_u32", vA, vt, 1, vA)
    p.I("v_lshlrev_b32", vt, 4, vq); p.I("v_sub_u32", vA, vA, vt)
    p.I("s_mul_i32", S(12), S(5), KCC); p.I("s_lshl_b32", S(13), S(7), 9); p.I("s_add_u32", S(12), S(12), S(13))
    p.I("s_add_u32", S(12), S(12), KC0 + 48)
    p.I("v_add_u32", vA, S(12), vA)
    VB = [V(24 + r) for r in range(8)]
    p.I("s_lshl_b32", S(12), S(7), 3); p.I("s_sub_u32", S(12), 16, S(12))
    p.I("v_lshl_add_u32", vB, vq, 8, S(14))
    for r in range(8):
        p.I("v_add_u32", vt, S(12), vi)
        if r: p.I("v_subrev_u32", vt, r, vt)
        p.I("v_and_b32", VB[r], 15, vt); p.I("v_lshl_add_u32", VB[r], VB[r], 4, vB)
        p.I("v_lshrrev_b32", vt, 4, vt); p.I("v_lshl_add_u32", VB[r], vt, 10, VB[r])
    ACC = [[A(8 * j + 4 * m, 4) for m in range(2)] for j in range(4)]
    for i in range(32): p.I("v_accvgpr_write_b32", A(i), 0)
    CA1 = V(48, 2); SA = V(50, 2); GA = V(52, 2); DD = V(54, 2)
    p.I("s_waitcnt", "lgkmcnt(0)"); p.lg_done = p.lg_issued
    for c in range(2):
        p.I("v_mov_b32", CA1[c], S(62 + c)); p.I("v_mov_b32", SA[c], S(60 + c)); p.I("v_mov_b32", GA[c], S(64 + c))
        p.I("v_add_f32", CA1[c], S(94 + c), CA1[c]); p.I("v_add_f32", SA[c], S(92 + c), SA[c]); p.I("v_add_f32", GA[c], S(96 + c), GA[c])
    rnd_pair(p, CA1, V(56), SM); rnd_pair(p, SA, V(57), SM); rnd_pair(p, GA, V(58), SM)
    for c in range(2): p.I("v_add_f32", CA1[c], 1.0, CA1[c])
    rnd_pair(p, CA1, V(56), SM)
    p.I("v_mov_b32", V(56), S(66)); unpack(p, DD, V(56), SM)
    X = [V(120 + 2 * i, 2) for i in range(8)]; H = [V(136 + 2 * i, 2) for i in range(8)]; TM = [V(152 + i) for i in range(8)]
    fill = []
    def FL(*a, **k): fill.append((a, k))
    for i in range(8):
        for c in range(2):
            if i % 2 == 0: FL("v_lshlrev_b32", X[i][c], 16, XG[c][i // 2])
            else: FL("v_and_b32", X[i][c], SM, XG[c][i // 2])
    ST = V(160, 16)
    for i in range(8):
        FL("v_lshlrev_b32", ST[2 * i], 16, SP[i]); FL("v_and_b32", ST[2 * i + 1], SM, SP[i])
    for i in range(8): FL("v_rcp_f32", ST[2 * i + 1], ST[2 * i + 1])
    def frnd(Rs):
        for i in range(8): FL("v_cvt_pk_bf16_f32", TM[i], Rs[i][0], Rs[i][1])
        for i in range(8):
            FL("v_lshlrev_b32", Rs[i][0], 16, TM[i]); FL("v_and_b32", Rs[i][1], SM, TM[i])
    for i in range(8):
        for c in range(2): FL("v_sub_f32", H[i][c], X[i][c], ST[2 * i])
    frnd(H)
    for i in range(8):
        for c in range(2): FL("v_mul_f32", H[i][c], H[i][c], ST[2 * i + 1])
    frnd(H)
    for i in range(8):
        for c in range(2): FL("v_mul_f32", H[i][c], H[i][c], CA1[c])
    frnd(H)
    for i in range(8):
        for c in range(2): FL("v_add_f32", H[i][c], H[i][c], SA[c])
    frnd(H)
    stamp(p, 4)
    p.wait_vm(tdma)
    stamp(p, 5)
    p.I("s_barrier")
    stamp(p, 6)
    BB = [[V(56 + 16 * s_ + 4 * t, 4) for t in range(4)] for s_ in range(2)]
    AR = [V(88 + 4 * i, 4) for i in range(8)]
    loads = []; mf = []
    acount = 0
    for rp in range(8):
        bs = BB[rp & 1]
        bidx = {}
        def addB(t):
            loads.append(("b128", bs[t], VB[rp], 1024 * t, ("B", rp, t))); bidx[t] = len(loads) - 1
        first = True
        for ip in range(4):
            for m in range(2):
                ar = AR[acount % 8]; acount += 1
                off = 64 * rp + 1024 * ip + 32 * m
                if first: addB(0)
                loads.append(("b64", ar[0:2], vA, off, None)); loads.append(("b64", ar[2:4], vA, off + 8, None))
                aidx = len(loads) - 1
                if first:
                    addB(1); addB(2); addB(3); first = False
                for j in range(ip, 4):
                    mf.append((ACC[j][m], ar, bs[j - ip], max(aidx, bidx[j - ip])))
    LOOK = 13
    tick = {}
    lastuse = {}
    for mi, (acc, a_, b_, need) in enumerate(mf):
        for rr in a_.regs() + b_.regs(): lastuse.setdefault(rr, []).append((mi, need))
    def issue(li, mi_done):
        kind, dst, va_, off, _ = loads[li]
        for rr in dst.regs():
            for (mi, need) in lastuse[rr]:
                if need < li and mi >= mi_done:
                    raise AssertionError(("WAR", li, mi, rr))
        tick[li] = p.I("ds_read_b128" if kind == "b128" else "ds_read_b64", dst, va_, mods=f"offset:{off}")
    nl = 0
    while nl < LOOK: issue(nl, 0); nl += 1
    p.wait_vm(tst[-1])
    fi = 0
    for mi, (acc, a_, b_, need) in enumerate(mf):
        assert need < nl
        p.wait_lg(tick[need])
        p.I("v_mfma_f32_16x16x32_bf16", acc, a_, b_, acc)
        if nl < len(loads): issue(nl, mi + 1); nl += 1
        if INTERLEAVE and fi < len(fill): a, k = fill[fi]; p.I(*a, **k); fi += 1
    while fi < len(fill): a, k = fill[fi]; p.I(*a, **k); fi += 1
    stamp(p, 7)
    vp = V(42)
    p.I("v_mul_u32_u24", vp, 144, vi); p.I("v_lshl_add_u32", vp, vq, 4, vp)
    p.I("s_mul_i32", S(12), S(4), PS); p.I("s_add_u32", S(12), S(12), P0)
    p.I("v_add_u32", vp, S(12), vp)
    for j in range(4):
        for m in range(2):
            p.I("ds_write_b128", vp, ACC[j][m], mods=f"offset:{2304*j + 64*m}")
    vk = V(43); vr = V(44)
    p.I("v_and_b32", vk, 3, V(0)); p.I("v_lshlrev_b32", vk, 8, vk)
    p.I("v_bfe_u32", vr, V(0), 2, 4); p.I("v_lshl_add_u32", vk, vr, 4, vk)
    p.I("v_lshrrev_b32", vr, 6, V(0)); p.I("v_lshl_add_u32", vk, vr, 10, vk)
    p.I("v_lshrrev_b32", vr, 2, V(0))
    p.I("v_lshlrev_b32", vr, 4, vr); p.I("v_lshl_add_u32", vr, V(0), 5, vr)
    p.I("v_add_u32", vr, P0, vr)
    KG = [V(56, 4), V(60, 4)]
    tkg = [p.I("ds_read_b128", KG[c], vk, mods=f"offset:{KV0 + c*KVC + 1024}") for c in range(2)]
    KVF = [V(64 + 2 * i, 2) for i in range(8)]
    p.wait_lg(tkg[-1])
    for c in range(2):
        for e2 in range(4):
            p.I("v_lshlrev_b32", KVF[7 - 2 * e2][c], 16, KG[c][e2]); p.I("v_and_b32", KVF[6 - 2 * e2][c], SM, KG[c][e2])
    def rnd8(Rs):
        for i in range(8): p.I("v_cvt_pk_bf16_f32", TM[i], Rs[i][0], Rs[i][1])
        for i in range(8): unpack(p, Rs[i], TM[i], SM)
    for i in range(8): p.I("v_pk_mul_f32", KVF[i], KVF[i], DD)
    rnd8(KVF)
    p.wait_lg0()
    p.I("s_barrier")
    PP = [[V(80 + 16 * c + 8 * h, 8) for h in range(2)] for c in range(2)]
    tp = {}
    for c in range(2):
        for h in range(2):
            for k_ in range(2):
                tp[(c, h, k_)] = p.I("ds_read_b128", PP[c][h][4 * k_:4 * k_ + 4], vr, mods=f"offset:{(2*c+h)*PS + 16*k_}")
    Y = [V(8 + 2 * i, 2) for i in range(8)]
    for c in range(2):
        p.wait_lg(tp[(c, 1, 1)])
        for i in range(8): p.I("v_add_f32", Y[i][c], PP[c][0][i], PP[c][1][i])
    rnd8(Y)
    for i in range(8): p.I("v_pk_add_f32", Y[i], Y[i], KVF[i])
    rnd8(Y)
    for i in range(8): p.I("v_pk_mul_f32", Y[i], Y[i], H[i])
    rnd8(Y)
    for i in range(8): p.I("v_pk_mul_f32", Y[i], Y[i], GA)
    rnd8(Y)
    for i in range(8): p.I("v_pk_add_f32", Y[i], Y[i], X[i])
    OG = [V(56, 4), V(60, 4)]
    for c in range(2):
        for e2 in range(4): p.I("v_cvt_pk_bf16_f32", OG[c][e2], Y[2 * e2][c], Y[2 * e2 + 1][c])
    p.I("s_mov_b32", S(12), WS_X1); p.I("s_mov_b32", S(13), WS_X1 + 4096)
    p.I("buffer_store_dwordx4", OG[0], vxo, sws, S(12), mods="offen")
    p.I("buffer_store_dwordx4", OG[1], vxo, sws, S(13), mods="offen")
    stamp_out(p, 8, sws, 1)
    p.I("s_endpgm")
    p.label("L_k2_side")
    p.reset_counters()
    p.I("s_sub_u32", S(4), S(4), 4)
    p.I("s_mul_hi_u32", S(7), S(2), 76695845); p.I("s_mul_i32", S(8), S(7), 56); p.I("s_sub_u32", S(8), S(2), S(8))
    vtt = V(3); vcp = V(4); vog = V(5); vt = V(6); vo = V(7); vco = V(8); vst = V(9); vt2 = V(10)
    p.I("v_subrev_u32", vtt, 256, V(0)); p.I("v_and_b32", vcp, 31, vtt); p.I("v_lshrrev_b32", vog, 5, vtt)
    p.I("s_mov_b32", S(9), 8 * 3584)
    p.I("v_mul_lo_u32", vo, vog, S(9)); p.I("v_lshl_add_u32", vo, vcp, 2, vo)
    p.I("v_lshlrev_b32", vco, 5, vog)
    p.I("s_cmp_ge_u32", S(8), 28)
    p.I("s_cselect_b32", S(9), 28, 0); p.I("s_cselect_b32", S(10), 256, 0)
    p.I("s_sub_u32", S(9), S(8), S(9))
    p.I("s_lshl_b32", S(11), S(9), 2)
    p.I("v_lshrrev_b32", vt, 3, vcp); p.I("v_add_u32", vt, S(11), vt)
    p.I("v_mul_u32_u24", vt2, 9363, vt); p.I("v_lshrrev_b32", vt2, 16, vt2)
    p.I("s_mov_b32", S(11), 200704 - 7 * 1024)
    p.I("v_mul_lo_u32", vst, vt2, S(11)); p.I("v_lshl_add_u32", vst, vt, 10, vst)
    p.I("v_and_b32", vt, 1, vcp); p.I("v_lshl_add_u32", vst, vt, 5, vst)
    p.I("v_bfe_u32", vt, vcp, 1, 1); p.I("v_lshl_add_u32", vst, vt, 7, vst)
    p.I("v_bfe_u32", vt, vcp, 2, 1); p.I("v_lshl_add_u32", vst, vt, 6, vst)
    p.I("v_lshrrev_b32", vt, 1, vog); p.I("v_mul_u32_u24", vt, 7168, vt); p.I("v_add_u32", vst, vst, vt)
    p.I("v_and_b32", vt, 1, vog); p.I("v_lshl_add_u32", vst, vt, 9, vst)
    p.I("s_mul_i32", S(11), S(7), 7 * 7168); p.I("s_add_u32", S(11), S(11), S(10)); p.I("s_add_u32", S(11), S(11), WS_WP)
    p.I("v_cmp_gt_u32", S(14, 2), 6, vog)
    p.I("s_mov_b64", S(12, 2), EXEC)
    p.I("s_waitcnt", "lgkmcnt(0)")
    stamp(p, 1, False)
    p.I("s_cmp_ge_u32", S(8), 28)
    p.I("s_cselect_b32", S(46), S(P_WU), S(P_WG)); p.I("s_cselect_b32", S(47), S(P_WU + 1), S(P_WG + 1))
    sw = srd(p, 48, 46, D * F * 2); sws = srd(p, 52, P_WS, WS_SIZE)
    p.I("s_mul_i32", S(56), S(7), 112 * 3584); p.I("s_lshl_b32", S(57), S(9), 7); p.I("s_add_u32", S(56), S(56), S(57))
    p.I("s_mul_i32", S(57), S(7), 448); p.I("s_add_u32", S(57), S(57), WS_MOD + 3 * D * 4)
    WR = [[V(16 + 8 * ps + j) for j in range(8)] for ps in range(2)]
    CF = [[V(32 + 32 * ps + 8 * a_, 8) for a_ in range(4)] for ps in range(2)]
    tw = {}; tcf = {}
    for ps in range(2):
        if ps == 1: p.I("s_mov_b64", EXEC, S(14, 2))
        for a_ in range(4):
            p.I("s_add_u32", S(58), S(57), (a_ & 1) * D * 4 + (a_ >> 1) * MODP + ps * 256)
            for k_ in range(2):
                tcf[(ps, a_)] = p.I("buffer_load_dwordx4", CF[ps][a_][4 * k_:4 * k_ + 4], vco, sws, S(58), mods=f"offen offset:{16*k_}")
        for j in range(8):
            p.I("s_add_u32", S(58), S(56), (64 * ps + j) * 3584)
            tw[(ps, j)] = p.I("buffer_load_dword", WR[ps][j], vo, sw, S(58), mods=f"offen {NT_IN}")
    p.I("s_mov_b64", EXEC, S(12, 2))
    AS = V(96, 4)
    for i in range(4): p.I("v_mov_b32", AS[i], 0)
    p.I("s_mov_b32", S(59), 0x3f803f80)
    stamp(p, 2, False)
    p.I("s_barrier")
    stamp(p, 3, False)
    for ps in range(2):
        if ps == 1: p.I("s_mov_b64", EXEC, S(14, 2))
        sb = CF[ps][0]; cb = CF[ps][1]
        p.wait_vm(tcf[(ps, 3)])
        for j in range(8): p.I("v_add_f32", sb[j], sb[j], CF[ps][2][j]); p.I("v_add_f32", cb[j], cb[j], CF[ps][3][j])
        Tm = CF[ps][2]
        for X_ in (sb, cb):
            for j in range(4): p.I("v_cvt_pk_bf16_f32", Tm[j], X_[2 * j], X_[2 * j + 1])
            for j in range(4): unpack(p, X_[2 * j:2 * j + 2], Tm[j], SM)
        for j in range(8): p.I("v_add_f32", cb[j], 1.0, cb[j])
        for j in range(4): p.I("v_cvt_pk_bf16_f32", Tm[j], cb[2 * j], cb[2 * j + 1])
        for j in range(4): unpack(p, cb[2 * j:2 * j + 2], Tm[j], SM)
        U0 = V(100, 8); U1 = V(108, 8); O = [V(116, 4), V(120, 4)]
        p.wait_vm(tw[(ps, 7)])
        for j in range(8): p.I("v_lshlrev_b32", U0[j], 16, WR[ps][j]); p.I("v_and_b32", U1[j], SM, WR[ps][j])
        for j in range(8): p.I("v_fmac_f32", AS[2], sb[j], U0[j]); p.I("v_fmac_f32", AS[3], sb[j], U1[j])
        for j in range(8): p.I("v_mul_f32", U0[j], U0[j], cb[j]); p.I("v_mul_f32", U1[j], U1[j], cb[j])
        for j in range(4): p.I("v_cvt_pk_bf16_f32", O[0][j], U0[2 * j], U0[2 * j + 1]); p.I("v_cvt_pk_bf16_f32", O[1][j], U1[2 * j], U1[2 * j + 1])
        p.I("s_add_u32", S(58), S(11), ps * 4 * 7168)
        p.I("buffer_store_dwordx4", O[0], vst, sws, S(58), mods=f"offen {ST_WT}")
        p.I("buffer_store_dwordx4", O[1], vst, sws, S(58), mods=f"offen offset:16 {ST_WT}")
        for j in range(4): p.I("v_dot2_f32_bf16", AS[0], O[0][j], S(59), AS[0]); p.I("v_dot2_f32_bf16", AS[1], O[1][j], S(59), AS[1])
    p.I("s_mov_b64", EXEC, S(12, 2))
    Tm = V(100, 4)
    for i in range(4): p.I("v_mov_b32", Tm[i], AS[i])
    for i in range(4): p.I("v_permlane32_swap_b32", Tm[i], AS[i])
    for i in range(4): p.I("v_add_f32", AS[i], AS[i], Tm[i])
    p.I("s_lshl_b32", S(58), S(4), 9); p.I("s_add_u32", S(58), S(58), SIDE0)
    p.I("v_lshl_add_u32", vt, vcp, 4, S(58))
    p.I("ds_write_b128", vt, AS)
    p.wait_lg0()
    stamp(p, 4)
    p.I("s_barrier")
    stamp_out(p, 5, sws, 1)
    p.I("s_cmp_lg_u32", S(4), 0)
    p.I("s_cbranch_scc1", "L_k2_exit")
    p.I("v_lshlrev_b32", vt, 4, vcp); p.I("v_add_u32", vt, SIDE0, vt)
    RR = [V(16 + 4 * w, 4) for w in range(4)]
    for w in range(4): p.I("ds_read_b128", RR[w], vt, mods=f"offset:{512*w}")
    p.wait_lg0()
    for i in range(4):
        p.I("v_add_f32", RR[0][i], RR[0][i], RR[1][i]); p.I("v_add_f32", RR[2][i], RR[2][i], RR[3][i]); p.I("v_add_f32", RR[0][i], RR[0][i], RR[2][i])
    p.I("s_mul_i32", S(58), S(7), 3584 * 4); p.I("s_lshl_b32", S(59), S(8), 8); p.I("s_add_u32", S(58), S(58), S(59))
    p.I("s_add_u32", S(59), S(58), WS_BI); p.I("s_add_u32", S(58), S(58), WS_CS)
    p.I("v_lshlrev_b32", vt, 3, vcp)
    p.I("v_cmp_gt_u32", VCC, 32, vtt)
    p.I("s_and_saveexec_b64", S(12, 2), VCC)
    p.I("buffer_store_dwordx2", RR[0][0:2], vt, sws, S(58), mods="offen")
    p.I("buffer_store_dwordx2", RR[0][2:4], vt, sws, S(59), mods="offen")
    p.label("L_k2_exit")
    p.I("s_endpgm")
    return p

X_OFF = 28672; STG = 45056
TAB0 = 3 * STG
K4_LDS = TAB0 + 1792
EMU = int(os.environ.get('EMU', '1'))
def gen_k4():
    p = Prog()
    load_kernargs(p)
    stamp(p, 0, False)
    p.I("s_cmp_ge_u32", S(2), 256)
    p.I("s_cbranch_scc1", "L_k4_exit")
    SM = S(6)
    p.I("s_mov_b32", SM, 0xffff0000)
    p.I("s_bfe_u32", S(3), S(2), 0x10002); p.I("s_lshl_b32", S(3), S(3), 3); p.I("s_lshr_b32", S(4), S(2), 5); p.I("s_add_u32", S(3), S(3), S(4))
    p.I("s_and_b32", S(5), S(2), 3); p.I("s_lshl_b32", S(5), S(5), 2); p.I("s_bfe_u32", S(4), S(2), 0x20003); p.I("s_add_u32", S(5), S(5), S(4))
    vlane = V(1); vw = V(2)
    p.I("v_and_b32", vlane, 63, V(0))
    p.I("v_lshrrev_b32", vw, 6, V(0))
    p.I("v_readfirstlane_b32", S(4), vw)
    p.I("s_cmp_ge_u32", S(4), 4)
    p.I("s_cbranch_scc1", "L_k4_load")
    vr = V(4); vc = V(5); vt = V(6); vh = V(7)
    p.I("v_bfe_u32", vr, vlane, 2, 2); p.I("v_and_b32", vc, 3, vlane); p.I("v_lshrrev_b32", vh, 5, vlane)
    VA_ = V(8); VX = V(9)
    p.I("v_lshlrev_b32", VA_, 4, vlane)
    p.I("v_lshl_add_u32", vt, vh, 3, vr); p.I("v_lshlrev_b32", VX, 8, vt)
    p.I("v_xor_b32", vt, S(4), vr); p.I("v_lshl_add_u32", VX, vt, 6, VX)
    p.I("v_bfe_u32", vt, vlane, 4, 1); p.I("v_lshl_add_u32", VX, vt, 5, VX)
    p.I("v_lshl_add_u32", VX, vc, 3, VX); p.I("v_add_u32", VX, X_OFF, VX)
    ACC = [V(96 + 16 * T, 16) for T in range(7)]
    for i in range(112): p.I("v_mov_b32", V(96 + i), 0)
    FA = [[V(32 + 32 * s_ + 4 * T, 4) for T in range(7)] for s_ in range(2)]
    FB = [V(32 + 32 * s_ + 28, 4) for s_ in range(2)]
    SA_ = V(12, 4)
    for i in range(4): p.I("v_mov_b32", SA_[i], 0)
    p.I("s_mov_b32", S(12), 0x3f803f80)
    p.I("s_waitcnt", "lgkmcnt(0)")
    sws = srd(p, 52, P_WS, WS_SIZE)
    stamp(p, 1, False)
    def reads(n):
        kap = n & 3; st = n & 1
        L = [("ds_read_b64_tr_b16", FB[st][2 * s_:2 * s_ + 2], VX, kap * 4096 + s_ * 1024) for s_ in range(2)]
        L += [("ds_read_b128", FA[st][T], VA_, kap * 7168 + T * 1024) for T in range(7)]
        return L
    def bump(stage):
        d = STG if stage % 3 else -2 * STG
        for r_ in (VA_, VX):
            if d > 0: p.I("v_add_u32", r_, d, r_)
            else: p.I("v_subrev_u32", r_, -d, r_)
    def rd(op): return p.I(op[0], op[1], op[2], mods=f"offset:{op[3]}")
    p.I("s_barrier")
    stamp(p, 2)
    cur = [rd(o) for o in reads(0)]
    for n in range(28):
        st = n & 1
        last = (n & 3) == 3
        nxt_ops = reads(n + 1) if n < 27 else []
        nxt = []
        quota = [0, 0, 3, 2, 2, 2, 0] if last else [2, 2, 1, 1, 1, 1, 1]
        dots = []
        for j in range(4):
            dots.append(("v_dot2_f32_bf16", SA_[j & 1], FB[st][j], S(12), SA_[j & 1]))
            dots.append(("v_dot2_f32_bf16", SA_[2 + (j & 1)], FB[st][j], FB[st][j], SA_[2 + (j & 1)]))
        dq = [2, 1, 1, 1, 1, 1, 1]
        for T in range(7):
            p.wait_lg(cur[2 + T])
            p.I("v_mfma_f32_32x32x16_bf16", ACC[T], FA[st][T], FB[st], ACC[T])
            if last and T == 2 and n < 27:
                p.wait_lg(cur[-1])
                p.I("s_barrier")
                bump((n + 1) // 4)
            for _ in range(quota[T]):
                if len(nxt) < len(nxt_ops): nxt.append(rd(nxt_ops[len(nxt)]))
            for _ in range(dq[T]): p.I(*dots.pop(0))
        cur = nxt
    stamp(p, 3)
    vtab = V(9)
    p.I("v_lshlrev_b32", vtab, 5, vh); p.I("v_add_u32", vtab, TAB0, vtab)
    TB = [[V(32 + 32 * s_ + 8 * a_, 8) for a_ in range(4)] for s_ in range(2)]
    def tabreads(T):
        return [p.I("ds_read_b128", TB[T & 1][a_][4 * k_:4 * k_ + 4], vtab, mods=f"offset:{a_*448 + T*64 + 16*k_}") for a_ in range(4) for k_ in range(2)]
    tt = tabreads(0)
    SP = V(16, 2); TT = V(18, 2)
    p.I("v_add_f32", SP[0], SA_[0], SA_[1]); p.I("v_add_f32", SP[1], SA_[2], SA_[3])
    for k_ in range(2): p.I("v_mov_b32", TT[k_], SP[k_])
    for k_ in range(2): p.I("v_permlane32_swap_b32", TT[k_], SP[k_])
    for k_ in range(2): p.I("v_add_f32", SP[k_], SP[k_], TT[k_])
    vm = V(10); vv = V(11); vrr = V(12, 2); vrm = V(14, 2)
    p.I("s_mov_b32", S(8), 0x3b124925); p.I("s_mov_b32", S(9), 0x3727c5ac); p.I("s_mov_b32", S(10), 0xbfb8aa3b); p.I("s_mov_b32", S(11), 0xbfb8aa3b)
    p.I("v_mul_f32", vm, S(8), SP[0]); p.I("v_mul_f32", vv, S(8), SP[1])
    p.I("v_fma_f32", vv, Neg(vm), vm, vv); p.I("v_max_f32", vv, 0, vv)
    rnd1(p, vv); p.I("v_add_f32", vv, S(9), vv); rnd1(p, vv); p.I("v_sqrt_f32", vv, vv); rnd1(p, vv)
    p.I("v_rcp_f32", vrr[0], vv); rnd1(p, vm); p.I("v_mul_f32", vrm[0], vrr[0], vm)
    p.I("v_mov_b32", vrr[1], vrr[0]); p.I("v_sub_f32", vrm[0], 0, vrm[0]); p.I("v_mov_b32", vrm[1], vrm[0])
    ONE = V(2, 2)
    p.I("v_mov_b32", ONE[0], 1.0); p.I("v_mov_b32", ONE[1], 1.0)
    vo = V(8)
    p.I("v_and_b32", vo, 31, vlane); p.I("v_lshlrev_b32", vo, 4, vo); p.I("v_lshl_add_u32", vo, vh, 15, vo)
    p.I("s_mul_i32", S(7), S(5), 14 * 32768); p.I("s_lshl_b32", S(13), S(3), 11); p.I("s_add_u32", S(7), S(7), S(13))
    p.I("s_lshl_b32", S(13), S(4), 9); p.I("s_add_u32", S(7), S(7), S(13)); p.I("s_add_u32", S(7), S(7), WS_ACT)
    E = V(16, 8); TMp = V(24, 4)
    def pr(X_, j): return X_[2 * j:2 * j + 2]
    for T in range(7):
        tb = TB[T & 1]; cur_t = tt
        if T < 6: tt = tabreads(T + 1)
        Gs = ACC[T][0:8]; Us = ACC[T][8:16]
        p.wait_lg(cur_t[-1])
        for j in range(4):
            p.I("v_pk_fma_f32", pr(tb[2], j), vrm, pr(tb[0], j), pr(tb[2], j)); p.I("v_pk_fma_f32", pr(tb[3], j), vrm, pr(tb[1], j), pr(tb[3], j))
        for j in range(4):
            p.I("v_pk_fma_f32", pr(Gs, j), vrr, pr(Gs, j), pr(tb[2], j)); p.I("v_pk_fma_f32", pr(Us, j), vrr, pr(Us, j), pr(tb[3], j))
        if EMU:
            for X_ in (Gs, Us):
                for j in range(4): p.I("v_cvt_pk_bf16_f32", TMp[j], X_[2 * j], X_[2 * j + 1])
                for j in range(4): unpack(p, X_[2 * j:2 * j + 2], TMp[j], SM)
        for j in range(4): p.I("v_pk_mul_f32", pr(E, j), pr(Gs, j), S(10, 2))
        for j in range(8): p.I("v_exp_f32", E[j], E[j])
        for j in range(4): p.I("v_pk_add_f32", pr(E, j), pr(E, j), ONE)
        for j in range(8): p.I("v_rcp_f32", E[j], E[j])
        for j in range(4): p.I("v_pk_mul_f32", pr(Gs, j), pr(Gs, j), pr(E, j))
        if EMU:
            for j in range(4): p.I("v_cvt_pk_bf16_f32", TMp[j], Gs[2 * j], Gs[2 * j + 1])
            for j in range(4): unpack(p, Gs[2 * j:2 * j + 2], TMp[j], SM)
        for j in range(4): p.I("v_pk_mul_f32", pr(Gs, j), pr(Gs, j), pr(Us, j))
        O = Us[0:4]
        for j in range(4): p.I("v_cvt_pk_bf16_f32", O[j], Gs[2 * j], Gs[2 * j + 1])
        p.I("s_add_u32", S(13), S(7), T * 65536)
        p.I("buffer_store_dwordx4", O, vo, sws, S(13), mods="offen")
    stamp(p, 4)
    stamp_out(p, 5, sws, 2)
    p.label("L_k4_exit")
    p.I("s_endpgm")
    p.label("L_k4_load")
    p.reset_counters()
    p.I("s_sub_u32", S(4), S(4), 4)
    vL = V(3); vt = V(6); vt2 = V(7); vwl = V(8); vxg = V(9)
    p.I("v_subrev_u32", vL, 256, V(0))
    p.I("v_lshlrev_b32", vwl, 4, vlane)
    p.I("v_lshrrev_b32", vt, 4, vlane); p.I("v_lshlrev_b32", vxg, 12, vt)
    p.I("v_bfe_u32", vt2, vlane, 2, 2); p.I("v_xor_b32", vt, vt, vt2); p.I("v_lshl_add_u32", vxg, vt, 6, vxg)
    p.I("v_and_b32", vt, 3, vlane); p.I("v_lshl_add_u32", vxg, vt, 4, vxg)
    p.I("s_lshl_b32", S(7), S(3), 8); p.I("s_lshl_b32", S(8), S(4), 16); p.I("s_add_u32", S(7), S(7), S(8)); p.I("s_add_u32", S(7), S(7), WS_X1)
    p.I("s_mul_i32", S(10), S(4), 7168)
    p.I("s_mul_i32", S(12), S(5), 200704); p.I("s_add_u32", S(12), S(12), S(10)); p.I("s_add_u32", S(12), S(12), WS_WP)
    p.I("s_lshl_b32", S(11), S(4), 12); p.I("s_add_u32", S(11), S(11), X_OFF)
    vtg = V(10); vtl = V(11)
    p.I("v_cmp_le_u32", VCC, 112, vL)
    p.I("v_mov_b32", vt, 0); p.I("v_mov_b32", vt2, (1792 - 112) * 4); p.I("v_cndmask_b32", vt, vt, vt2, VCC)
    p.I("v_lshl_add_u32", vtg, vL, 2, vt)
    p.I("v_lshlrev_b32", vtl, 2, vL); p.I("v_add_u32", vtl, TAB0, vtl)
    p.I("s_mul_i32", S(13), S(5), 448); p.I("s_add_u32", S(13), S(13), WS_CS)
    p.I("v_cmp_gt_u32", VCC, 224, vL); p.I("s_mov_b64", S(60, 2), VCC)
    p.I("s_mul_hi_u32", S(56), S(2), 613566757); p.I("s_mul_i32", S(57), S(56), 7); p.I("s_sub_u32", S(57), S(2), S(57))
    vdg = V(12); vds = V(13)
    p.I("v_lshrrev_b32", vt, 5, vL); p.I("v_and_b32", vt2, 31, vL)
    p.I("v_mul_u32_u24", vdg, 8 * ROWB, vt); p.I("v_lshl_add_u32", vdg, vt2, 2, vdg)
    p.I("v_lshlrev_b32", vds, 5, vt2)
    p.I("v_and_b32", vds, 511, vds); p.I("v_lshrrev_b32", vt2, 4, vt2); p.I("v_lshl_add_u32", vds, vt2, 10, vds)
    p.I("v_and_b32", vt2, 1, vt); p.I("v_lshl_add_u32", vds, vt2, 9, vds)
    p.I("v_lshrrev_b32", vt, 1, vt); p.I("v_lshl_add_u32", vds, vt, 11, vds)
    p.I("s_mul_i32", S(58), S(56), 64 * ROWB); p.I("s_lshl_b32", S(59), S(57), 7); p.I("s_add_u32", S(58), S(58), S(59))
    p.I("s_mul_i32", S(59), S(57), 229376); p.I("s_lshl_b32", S(62), S(56), 13); p.I("s_add_u32", S(59), S(59), S(62)); p.I("s_add_u32", S(59), S(59), WS_WD)
    p.I("s_waitcnt", "lgkmcnt(0)")
    stamp(p, 1, False)
    sws = srd(p, 52, P_WS, WS_SIZE); swd = srd(p, 48, P_WD, D * F * 2)
    def issue(s_):
        t = None
        for i in range(4):
            p.I("s_add_u32", M0, S(11), (s_ % 3) * STG + i * 1024)
            p.I("s_add_u32", S(15), S(7), (64 * s_ + 4 * i) * 4096)
            t = p.I("buffer_load_dwordx4", vxg, sws, S(15), mods="offen lds")
        for i in range(7):
            p.I("s_add_u32", M0, S(10), (s_ % 3) * STG + i * 1024)
            p.I("s_add_u32", S(15), S(12), s_ * 28672 + i * 1024)
            t = p.I("buffer_load_dwordx4", vwl, sws, S(15), mods="offen lds")
        return t
    tS = {}
    tS[0] = issue(0); tS[1] = issue(1)
    stamp(p, 2, False)
    TBL = [V(16 + i) for i in range(8)]; WDR = [V(24 + i) for i in range(8)]
    for s_ in range(7):
        p.wait_vm(tS[s_])
        if s_ == 3: p.wait_lg0()
        if s_ == 0: stamp(p, 3, False)
        p.I("s_barrier")
        if s_ == 0:
            tS[2] = issue(2)
            p.I("s_mov_b64", S(68, 2), EXEC); p.I("s_mov_b64", EXEC, S(60, 2))
            for i in range(8):
                p.I("s_add_u32", S(15), S(13), (i & 3) * 3584 * 4 + (i >> 2) * (WS_BI - WS_CS))
                ttb = p.I("buffer_load_dword", TBL[i], vtg, sws, S(15), mods="offen")
            p.I("s_mov_b64", EXEC, S(68, 2))
            for j in range(8):
                p.I("s_add_u32", S(15), S(58), j * ROWB)
                twd = p.I("buffer_load_dword", WDR[j], vdg, swd, S(15), mods=f"offen {NT_IN}")
        if s_ >= 1 and s_ + 2 < 7: tS[s_ + 2] = issue(s_ + 2)
        if s_ == 2:
            p.wait_vm(ttb)
            for k_ in range(2):
                t4 = TBL[4 * k_:4 * k_ + 4]
                p.I("v_add_f32", t4[0], t4[0], t4[1]); p.I("v_add_f32", t4[2], t4[2], t4[3]); p.I("v_add_f32", t4[0], t4[0], t4[2])
            p.I("s_mov_b64", EXEC, S(60, 2))
            p.I("ds_write_b32", vtl, TBL[0]); p.I("ds_write_b32", vtl, TBL[4], mods="offset:896")
            p.I("s_mov_b64", EXEC, S(68, 2))
            p.I("s_mov_b32", S(62), 0x05040100); p.I("s_mov_b32", S(63), 0x07060302)
            p.wait_vm(twd)
            OG = [V(32, 4), V(36, 4)]
            for e2 in range(4):
                p.I("v_perm_b32", OG[0][e2], WDR[2 * e2 + 1], WDR[2 * e2], S(62)); p.I("v_perm_b32", OG[1][e2], WDR[2 * e2 + 1], WDR[2 * e2], S(63))
            p.I("s_cmp_ge_u32", S(2), 196)
            p.I("s_cbranch_scc1", "L_k4_nowd")
            p.raw("    buffer_store_dwordx4 v[32:35], v13, s[52:55], s59 offen " + ST_WT)
            p.raw("    buffer_store_dwordx4 v[36:39], v13, s[52:55], s59 offen offset:16 " + ST_WT)
            p.label("L_k4_nowd")
            p.vm_slack = True
    stamp(p, 4)
    stamp_out(p, 5, sws, 2)
    p.I("s_endpgm")
    return p

K5_PR = 64 * 272
K5_XT = 4 * K5_PR
K5_LDS = K5_XT + 8192
def gen_k5():
    p = Prog()
    load_kernargs(p)
    stamp(p, 0, False)
    p.I("s_cmp_ge_u32", S(2), 224)
    p.I("s_cbranch_scc1", "L_k5_exit")
    SM = S(6)
    p.I("s_mov_b32", SM, 0xffff0000)
    p.I("s_lshr_b32", S(4), S(2), 3); p.I("s_mul_hi_u32", S(3), S(4), 613566757); p.I("s_mul_i32", S(5), S(3), 7); p.I("s_sub_u32", S(5), S(4), S(5))
    p.I("s_and_b32", S(4), S(2), 7); p.I("s_lshl_b32", S(4), S(4), 2); p.I("s_add_u32", S(3), S(3), S(4))
    vlane = V(1); vw = V(2); vh = V(3); vt = V(4); vaa = V(5); vwa = V(6); vxa = V(7); vgb = V(8)
    p.I("v_and_b32", vlane, 63, V(0)); p.I("v_lshrrev_b32", vw, 6, V(0)); p.I("v_readfirstlane_b32", S(4), vw)
    p.I("v_lshrrev_b32", vh, 5, vlane)
    p.I("v_and_b32", vaa, 31, vlane); p.I("v_lshlrev_b32", vaa, 4, vaa); p.I("v_lshl_add_u32", vaa, vh, 15, vaa)
    p.I("v_lshlrev_b32", vwa, 4, vlane)
    p.I("v_lshrrev_b32", vt, 3, vlane); p.I("v_lshlrev_b32", vxa, 12, vt); p.I("v_and_b32", vt, 7, vlane); p.I("v_lshl_add_u32", vxa, vt, 4, vxa)
    p.I("v_lshrrev_b32", vgb, 4, vlane); p.I("v_lshlrev_b32", vgb, 5, vgb)
    p.I("s_mul_i32", S(7), S(4), 28 * 65536); p.I("s_lshl_b32", S(8), S(3), 10); p.I("s_add_u32", S(7), S(7), S(8)); p.I("s_add_u32", S(7), S(7), WS_ACT)
    p.I("s_mul_i32", S(8), S(5), 229376); p.I("s_mul_i32", S(9), S(4), 28 * 2048); p.I("s_add_u32", S(8), S(8), S(9)); p.I("s_add_u32", S(8), S(8), WS_WD)
    p.I("s_lshl_b32", S(9), S(5), 18); p.I("s_lshl_b32", S(10), S(4), 16); p.I("s_add_u32", S(9), S(9), S(10)); p.I("s_lshl_b32", S(10), S(3), 7)
    p.I("s_add_u32", S(9), S(9), S(10)); p.I("s_add_u32", S(9), S(9), WS_X1)
    p.I("s_lshl_b32", S(10), S(4), 11); p.I("s_add_u32", S(10), S(10), K5_XT)
    p.I("s_lshl_b32", S(11), S(5), 8); p.I("s_add_u32", S(11), S(11), WS_MOD + 5 * D * 4)
    for i in range(64): p.I("v_accvgpr_write_b32", A(i), 0)
    p.I("s_waitcnt", "lgkmcnt(0)")
    sws = srd(p, 52, P_WS, WS_SIZE); so = srd(p, 48, P_OUT, ARR)
    stamp(p, 1, False)
    NB = 13; LA = 12
    BUF = [V(40 + 16 * b, 16) for b in range(NB)]
    ACC = [[A(32 * dl + 16 * th, 16) for th in range(2)] for dl in range(2)]
    tk = {}
    def issue(n):
        bf_ = BUF[n % NB]
        p.I("s_add_u32", S(12), S(7), n * 65536); p.I("s_add_u32", S(13), S(8), n * 2048)
        p.I("buffer_load_dwordx4", bf_[0:4], vwa, sws, S(13), mods="offen")
        p.I("buffer_load_dwordx4", bf_[8:12], vaa, sws, S(12), mods="offen")
        t1 = p.I("buffer_load_dwordx4", bf_[12:16], vaa, sws, S(12), mods="offen offset:512")
        t2 = p.I("buffer_load_dwordx4", bf_[4:8], vwa, sws, S(13), mods="offen offset:1024")
        tk[n] = (t1, t2)
    for n in range(LA): issue(n)
    stamp(p, 2, False)
    GB = [[V(10 + 16 * og + 8 * pp, 8) for pp in range(2)] for og in range(2)]
    GB = [[A(64 + 16 * og + 8 * pp, 8) for pp in range(2)] for og in range(2)]
    tgb = None
    for n in range(28):
        bf_ = BUF[n % NB]
        p.wait_vm(tk[n][0])
        if n == 0: stamp(p, 3, False)
        p.I("v_mfma_f32_32x32x16_bf16", ACC[0][0], bf_[0:4], bf_[8:12], ACC[0][0])
        p.I("v_mfma_f32_32x32x16_bf16", ACC[0][1], bf_[0:4], bf_[12:16], ACC[0][1])
        p.wait_vm(tk[n][1])
        p.I("v_mfma_f32_32x32x16_bf16", ACC[1][0], bf_[4:8], bf_[8:12], ACC[1][0])
        p.I("v_mfma_f32_32x32x16_bf16", ACC[1][1], bf_[4:8], bf_[12:16], ACC[1][1])
        if n + LA < 28: issue(n + LA)
        if n == 16:
            for i in range(2):
                p.I("s_add_u32", M0, S(10), i * 1024); p.I("s_add_u32", S(12), S(9), i * 32768)
                p.I("buffer_load_dwordx4", vxa, sws, S(12), mods="offen lds")
            for og in range(2):
                for pp in range(2):
                    p.I("s_add_u32", S(12), S(11), pp * MODP)
                    for k_ in range(2):
                        tgb = p.I("buffer_load_dwordx4", GB[og][pp][4 * k_:4 * k_ + 4], vgb, sws, S(12), mods=f"offen offset:{128*og + 16*k_}")
    stamp(p, 4)
    vpw = V(9)
    p.I("v_and_b32", vt, 31, vlane); p.I("v_mul_u32_u24", vpw, 272, vt); p.I("v_lshl_add_u32", vpw, vh, 4, vpw)
    p.I("s_mul_i32", S(12), S(4), K5_PR); p.I("v_add_u32", vpw, S(12), vpw)
    for dl in range(2):
        for th in range(2):
            for j in range(4):
                p.I("ds_write_b128", vpw, ACC[dl][th][4 * j:4 * j + 4], mods=f"offset:{th*32*272 + dl*128 + j*32}")
    vq = V(10); vtk = V(11); vpr = V(12); vxr = V(13); voo = V(14)
    p.I("v_lshrrev_b32", vq, 4, vlane); p.I("v_and_b32", vtk, 15, vlane); p.I("s_lshl_b32", S(12), S(4), 4); p.I("v_add_u32", vtk, S(12), vtk)
    p.I("v_mul_u32_u24", vpr, 272, vtk); p.I("v_lshl_add_u32", vpr, vq, 5, vpr)
    p.I("v_bfe_u32", vt, vlane, 2, 2); p.I("v_lshl_add_u32", vt, vq, 3, vt); p.I("v_lshlrev_b32", vxr, 7, vt)
    p.I("v_and_b32", vt, 3, vlane); p.I("v_lshl_add_u32", vxr, vt, 3, vxr); p.I("s_lshl_b32", S(12), S(4), 5); p.I("s_add_u32", S(12), S(12), K5_XT); p.I("v_add_u32", vxr, S(12), vxr)
    p.I("v_mul_u32_u24", voo, ROWB, vtk); p.I("v_lshl_add_u32", voo, vq, 4, voo)
    p.I("s_mul_i32", S(12), S(3), 64 * ROWB); p.I("s_lshl_b32", S(13), S(5), 7); p.I("s_add_u32", S(12), S(12), S(13))
    G = [V(16 + 8 * og, 8) for og in range(2)]; TM = V(32, 4); G2 = V(40, 8)
    p.wait_vm(tgb)
    for og in range(2):
        for j in range(8): p.I("v_accvgpr_read_b32", G[og][j], GB[og][0][j]); p.I("v_accvgpr_read_b32", G2[j], GB[og][1][j])
        for j in range(8): p.I("v_add_f32", G[og][j], G[og][j], G2[j])
        for j in range(4): p.I("v_cvt_pk_bf16_f32", TM[j], G[og][2 * j], G[og][2 * j + 1])
        for j in range(4): unpack(p, G[og][2 * j:2 * j + 2], TM[j], SM)
    p.wait_lg0()
    p.I("s_barrier")
    stamp(p, 5)
    for og in range(2):
        PPs = [V(48 + 40 * og + 8 * w, 8) for w in range(4)]; XR = V(80 + 40 * og, 4); XF = V(128 + 8 * og, 8)
        tx = [p.I("ds_read_b64_tr_b16", XR[2 * s_:2 * s_ + 2], vxr, mods=f"offset:{4096*og + 512*s_}") for s_ in range(2)]
        tp = [p.I("ds_read_b128", PPs[w][4 * k_:4 * k_ + 4], vpr, mods=f"offset:{w*K5_PR + 128*og + 16*k_}") for w in range(4) for k_ in range(2)]
        p.wait_lg(tx[-1])
        for j in range(4): unpack(p, XF[2 * j:2 * j + 2], XR[j], SM)
        p.wait_lg(tp[3])
        for j in range(8): p.I("v_add_f32", PPs[0][j], PPs[0][j], PPs[1][j])
        p.wait_lg(tp[7])
        for j in range(8): p.I("v_add_f32", PPs[2][j], PPs[2][j], PPs[3][j])
        Y = PPs[0]
        for j in range(8): p.I("v_add_f32", Y[j], Y[j], PPs[2][j])
        for j in range(4): p.I("v_cvt_pk_bf16_f32", TM[j], Y[2 * j], Y[2 * j + 1])
        for j in range(4): unpack(p, Y[2 * j:2 * j + 2], TM[j], SM)
        for j in range(8): p.I("v_mul_f32", Y[j], Y[j], G[og][j])
        for j in range(4): p.I("v_cvt_pk_bf16_f32", TM[j], Y[2 * j], Y[2 * j + 1])
        for j in range(4): unpack(p, Y[2 * j:2 * j + 2], TM[j], SM)
        for j in range(8): p.I("v_add_f32", Y[j], Y[j], XF[j])
        O = PPs[1][0:4]
        for j in range(4): p.I("v_cvt_pk_bf16_f32", O[j], Y[2 * j], Y[2 * j + 1])
        p.I("buffer_store_dwordx4", O, voo, so, S(12), mods=f"offen offset:{64*og}")
    stamp(p, 6)
    stamp_out(p, 7, sws, 3)
    p.label("L_k5_exit")
    p.I("s_endpgm")
    return p

HEADER = open("adaLN_cond__ssm_conv_h3__swiglu_ffn__prompt.s.ref").read().split("; Override")[0]

def build(kernels):
    s = HEADER
    for name, p, grid, block, lds in kernels:
        s += f"; @launch kernel={name} grid=({grid},1,1) block=({block},1,1) lds={lds}\n"
    s += '.amdgcn_target "amdgcn-amd-amdhsa--gfx950"\n.text\n'
    for name, p, grid, block, lds in kernels:
        s += kernel_header(name) + p.finalize()
        s += kernel_desc(name, p.maxv + 1, p.maxa + 1, max(p.maxs + 1, 16))
    return s

if __name__ == "__main__":
    ks = [("k1_kernel", gen_k1(), NMOD + NTR + NST, 256, 16384), ("k2_kernel", gen_k2(), NCONV, 512, K2_LDS),
          ("k4_kernel", gen_k4(), 256, 512, K4_LDS),
          ("k5_kernel", gen_k5(), 224, 256, K5_LDS)]
    open(sys.argv[1] if len(sys.argv) > 1 else "out.s", "w").write(build(ks))
```

```python
import sys, os
from asmgen import *

S_TOK = 2048; D = 448; F = 1792
ROWB = D * 2
TBB = D * 16
ARR = S_TOK * D * 2
WS_KV = 0x000000
WS_X = 0x200000
WS_X1 = 0x400000
WS_ST1 = 0x600000
WS_MOD = 0x610000
MODP = 2688 * 4
WS_CS = 0x620000
WS_BI = 0x640000
WS_ACT = 0x800000
WS_WP = 0x1000000
WS_WD = 0x1400000
WS_SIZE = 0x1400000 + 1792 * 448 * 2
ST_WT = os.environ.get('ST_WT', 'sc1')

P_Q, P_K, P_V, P_SH, P_SK, P_SD, P_BX, P_WG, P_WU, P_WD, P_C, P_WM, P_OUT, P_DBG, P_WS = [16 + 2 * i for i in range(15)]

STAMP = int(os.environ.get('STAMP', '0'))
WS_DBG = 0x700000
def stamp(p, k, wait=True):
    if not STAMP: return
    p.I("s_memtime", S(76 + 2 * k, 2))
    if wait:
        p.I("s_waitcnt", "lgkmcnt(0)"); p.lg_done = p.lg_issued
def stamp_out(p, n, sws, kern):
    if not STAMP: return
    for k in range(n): p.I("v_mov_b32", V(8 + k), S(76 + 2 * k))
    for k in range(n, 8): p.I("v_mov_b32", V(8 + k), 0)
    p.I("v_lshrrev_b32", V(16), 6, V(0)); p.I("v_lshlrev_b32", V(16), 5, V(16))
    p.I("s_lshl_b32", S(74), S(2), 8); p.I("s_add_u32", S(74), S(74), WS_DBG + kern * 0x20000)
    p.I("v_and_b32", V(17), 63, V(0)); p.I("v_cmp_eq_u32", VCC, 0, V(17))
    p.I("s_and_saveexec_b64", S(72, 2), VCC)
    p.I("buffer_store_dwordx4", V(8, 4), V(16), sws, S(74), mods="offen")
    p.I("buffer_store_dwordx4", V(12, 4), V(16), sws, S(74), mods="offen offset:16")
    p.I("s_mov_b64", EXEC, S(72, 2))

STAMP_GROUPS = {0: [(0, 88), (88, 312), (312, 440)], 1: [(0, 224)], 2: [(0, 256)], 3: [(0, 224)]}
def load_kernargs(p):
    p.I("s_load_dwordx16", S(16, 16), S(0, 2), 0)
    p.I("s_load_dwordx8", S(32, 8), S(0, 2), 64)
    p.I("s_load_dwordx4", S(40, 4), S(0, 2), 96)
    p.I("s_load_dwordx2", S(44, 2), S(0, 2), 112)

def srd(p, dst, ptr, size, off=0):
    if isinstance(off, int) and off == 0:
        p.I("s_mov_b32", S(dst), S(ptr)); p.I("s_mov_b32", S(dst + 1), S(ptr + 1))
    else:
        p.I("s_add_u32", S(dst), S(ptr), off); p.I("s_addc_u32", S(dst + 1), S(ptr + 1), 0)
    p.I("s_mov_b32", S(dst + 2), size); p.I("s_mov_b32", S(dst + 3), 0x20000)
    return S(dst, 4)

def unpack(p, dst_pair, src, smask):
    p.I("v_lshlrev_b32", dst_pair[0], 16, src)
    p.I("v_and_b32", dst_pair[1], smask, src)

def rnd_pair(p, pair, tmp, smask):
    p.I("v_cvt_pk_bf16_f32", tmp, pair[0], pair[1])
    unpack(p, pair, tmp, smask)

def rnd1(p, r, smask=None):
    p.I("v_cvt_pk_bf16_f32", r, r, r)
    p.I("v_lshlrev_b32", r, 16, r)

def xrow_sum(p, x, t):
    p.I("v_mov_b32", t, x); p.I("v_permlane16_swap_b32", t, x); p.I("v_add_f32", x, x, t)
    p.I("v_mov_b32", t, x); p.I("v_permlane32_swap_b32", t, x); p.I("v_add_f32", x, x, t)

def wave_sum_multi(p, xs, ts):
    for m in ("quad_perm:[1,0,3,2]", "quad_perm:[2,3,0,1]", "row_half_mirror", "row_mirror"):
        for x in xs:
            p.I("v_add_f32_dpp", x, x, x, mods=m + " row_mask:0xf bank_mask:0xf")
    for swap in ("v_permlane16_swap_b32", "v_permlane32_swap_b32"):
        for x, t in zip(xs, ts): p.I("v_mov_b32", t, x)
        for x, t in zip(xs, ts): p.I(swap, t, x)
        for x, t in zip(xs, ts): p.I("v_add_f32", x, x, t)

def gemv64(p, wsrd, rowbytes, colbyte_s, ncoef, coef_fn, out_fn, tag, swsx, fl=''):
    SM = S(6)
    stamp(p, 1, False)
    p.I("s_mov_b32", SM, 0xffff0000)
    vco = V(1); vrg = V(2); voff = V(3)
    p.I("v_and_b32", vco, 7, V(0))
    p.I("v_lshrrev_b32", vrg, 3, V(0))
    p.I("s_mov_b32", S(7), rowbytes)
    p.I("v_mul_lo_u32", voff, vrg, S(7))
    p.I("v_lshl_add_u32", voff, vco, 4, voff)
    W = [V(8 + 4 * i, 4) for i in range(7)]
    tk = []
    tc = coef_fn[0](p, vrg)
    for i in range(7):
        p.I("s_add_u32", S(8), colbyte_s, i * 32 * rowbytes)
        tk.append(p.I("buffer_load_dwordx4", W[i], voff, wsrd, S(8), mods="offen " + fl))
    coefs = coef_fn[1](p, tc)
    stamp(p, 2, False)
    ACC = [V(108 + 8 * c, 8) for c in range(ncoef)]
    for c in range(ncoef):
        for j in range(8): p.I("v_mov_b32", ACC[c][j], 0)
    for i in range(7):
        U = V(124 + 8 * (i & 1), 8)
        p.wait_vm(tk[i])
        for j in range(4): unpack(p, U[2 * j:2 * j + 2], W[i][j], SM)
        for c in range(ncoef):
            for j in range(8):
                p.I("v_fmac_f32", ACC[c][j], coefs[c][i], U[j])
    stamp(p, 3, False)
    allacc = [ACC[c][j] for c in range(ncoef) for j in range(8)]
    for x in allacc:
        p.I("v_add_f32_dpp", x, x, x, mods="row_ror:8 row_mask:0xf bank_mask:0xf")
    T = [V(8 + i) for i in range(len(allacc))]
    for swap in ("v_permlane16_swap_b32", "v_permlane32_swap_b32"):
        for x, t in zip(allacc, T): p.I("v_mov_b32", t, x)
        for x, t in zip(allacc, T): p.I(swap, t, x)
        for x, t in zip(allacc, T): p.I("v_add_f32", x, x, t)
    vw = V(4); va = V(5)
    p.I("v_lshrrev_b32", vw, 6, V(0))
    p.I("v_lshlrev_b32", va, 8, vw)
    p.I("v_lshl_add_u32", va, vco, 5, va)
    p.I("v_and_b32", V(6), 63, V(0))
    p.I("v_cmp_gt_u32", VCC, 8, V(6))
    p.I("s_and_saveexec_b64", S(10, 2), VCC)
    for c in range(ncoef):
        p.I("ds_write_b128", va, ACC[c][0:4], mods=f"offset:{c*1024}")
        p.I("ds_write_b128", va, ACC[c][4:8], mods=f"offset:{c*1024+16}")
    p.I("s_mov_b64", EXEC, S(10, 2))
    p.wait_lg0()
    p.I("s_barrier")
    stamp(p, 4)
    stamp_out(p, 5, swsx, 0 if tag == "k1mod" else 1)
    p.I("v_readfirstlane_b32", S(10), vw)
    p.I("s_cmp_lg_u32", S(10), 0)
    p.I("s_cbranch_scc1", f"L_{tag}_done")
    p.I("v_lshlrev_b32", va, 2, V(0))
    res = []
    for c in range(ncoef):
        Rr = V(8 + 4 * c, 4)
        for w in range(4):
            p.I("ds_read_b32", Rr[w], va, mods=f"offset:{c*1024 + w*256}")
        res.append(Rr)
    p.wait_lg0()
    for c in range(ncoef):
        Rr = res[c]
        p.I("v_add_f32", Rr[0], Rr[0], Rr[1]); p.I("v_add_f32", Rr[2], Rr[2], Rr[3]); p.I("v_add_f32", Rr[0], Rr[0], Rr[2])
    out_fn(p, [r[0] for r in res], va)
    p.label(f"L_{tag}_done")
    p.I("s_endpgm")

NMOD = 88; NTR = 224; NST = 128
NT_IN = os.environ.get('NT_IN', 'nt')
def gen_k1():
    p = Prog()
    load_kernargs(p)
    stamp(p, 0, False)
    p.I("s_cmp_lt_u32", S(2), NMOD)
    p.I("s_cbranch_scc1", "L_k1_mod")
    p.I("s_sub_u32", S(3), S(2), NMOD)
    p.I("s_cmp_ge_u32", S(3), NTR)
    p.I("s_cbranch_scc1", "L_k1_stats")
    p.I("s_mul_hi_u32", S(4), S(3), 613566757)
    p.I("s_mul_i32", S(5), S(4), 7); p.I("s_sub_u32", S(5), S(3), S(5))
    SM = S(6)
    p.I("s_mov_b32", SM, 0xffff0000)
    p.I("s_mul_i32", S(7), S(4), 64 * ROWB); p.I("s_lshl_b32", S(8), S(5), 7); p.I("s_add_u32", S(7), S(7), S(8))
    vo = V(1); vo2 = V(2); voh = V(3); vsh = V(4); vcp = V(5); vtg = V(6)
    p.I("v_and_b32", vcp, 31, V(0)); p.I("v_lshrrev_b32", vtg, 5, V(0))
    p.I("v_mul_u32_u24", vo, 8 * ROWB, vtg); p.I("v_lshl_add_u32", vo, vcp, 2, vo); p.I("v_add_u32", vo, S(7), vo)
    p.I("v_add_u32", vo2, 4480, vo)
    p.I("v_subrev_u32", voh, 2688, vo)
    p.I("s_lshl_b32", S(8), S(5), 9)
    p.I("v_lshl_add_u32", vsh, vcp, 4, S(8))
    p.I("s_waitcnt", "lgkmcnt(0)")
    sq = srd(p, 48, P_Q, ARR); sk = srd(p, 52, P_K, ARR); sv = srd(p, 56, P_V, ARR)
    ssh = srd(p, 60, P_SH, D * 8); sws = srd(p, 64, P_WS, WS_SIZE)
    stamp(p, 1, False)
    KR = [V(8 + j) for j in range(11)]
    VR = [V(20 + j) for j in range(8)]
    QR = [V(28 + j) for j in range(8)]
    SH = V(36, 4)
    def rowload(dst, srdx, j, fl):
        if j < 5: return p.I("buffer_load_dword", dst, vo, srdx, 0, mods=f"offen offset:{j*896} {fl}")
        return p.I("buffer_load_dword", dst, vo2, srdx, 0, mods=f"offen offset:{(j-5)*896} {fl}")
    tsh = p.I("buffer_load_dwordx4", SH, vsh, ssh, 0, mods="offen")
    tk = []
    for j in range(3): tk.append(p.I("buffer_load_dword", KR[j], voh, sk, 0, mods=f"offen offset:{j*896} {NT_IN}"))
    for j in range(8): tk.append(rowload(KR[3 + j], sk, j, NT_IN))
    tv = [rowload(VR[j], sv, j, NT_IN) for j in range(8)]
    tq = [rowload(QR[j], sq, j, "") for j in range(8)]
    vlw = V(40); vlr = V(41); vgo = V(42); vt = V(43)
    p.I("v_and_b32", vt, 7, vcp); p.I("v_xor_b32", vt, vt, vtg)
    p.I("v_lshlrev_b32", vlw, 8, vcp); p.I("v_lshl_add_u32", vlw, vt, 4, vlw)
    p.I("v_lshrrev_b32", vt, 4, V(0)); p.I("v_xor_b32", vt, vt, V(0)); p.I("v_and_b32", vt, 7, vt)
    p.I("v_lshrrev_b32", vlr, 3, V(0)); p.I("v_lshlrev_b32", vgo, 12, vlr)
    p.I("v_lshlrev_b32", vlr, 7, vlr); p.I("v_lshl_add_u32", vlr, vt, 4, vlr)
    p.I("v_and_b32", vt, 7, V(0)); p.I("v_lshl_add_u32", vgo, vt, 4, vgo)
    p.I("s_lshl_b32", S(7), S(5), 18); p.I("s_lshl_b32", S(8), S(4), 7); p.I("s_add_u32", S(7), S(7), S(8))
    stamp(p, 2, False)
    Wt = [V(48 + 2 * t, 2) for t in range(4)]
    p.wait_vm(tsh)
    p.I("v_lshlrev_b32", Wt[0][0], 16, SH[0]); p.I("v_and_b32", Wt[1][0], SM, SH[0])
    p.I("v_lshlrev_b32", Wt[2][0], 16, SH[1]); p.I("v_and_b32", Wt[3][0], SM, SH[1])
    p.I("v_lshlrev_b32", Wt[0][1], 16, SH[2]); p.I("v_and_b32", Wt[1][1], SM, SH[2])
    p.I("v_lshlrev_b32", Wt[2][1], 16, SH[3]); p.I("v_and_b32", Wt[3][1], SM, SH[3])
    KF = [V(56 + 2 * j, 2) for j in range(11)]
    p.wait_vm(tk[-1])
    stamp(p, 3, False)
    for j in range(11): unpack(p, KF[j], KR[j], SM)
    ACC = [V(78 + 2 * s, 2) for s in range(8)]
    PR = [V(94 + 2 * s, 2) for s in range(8)]
    TM = [V(110 + s) for s in range(8)]
    for s in range(8): p.I("v_pk_mul_f32", ACC[s], KF[s], Wt[3])
    for s in range(8): p.I("v_cvt_pk_bf16_f32", TM[s], ACC[s][0], ACC[s][1])
    for s in range(8): unpack(p, ACC[s], TM[s], SM)
    for step in (1, 2, 3):
        for s in range(8): p.I("v_pk_mul_f32", PR[s], KF[s + step], Wt[3 - step])
        for s in range(8): p.I("v_cvt_pk_bf16_f32", TM[s], PR[s][0], PR[s][1])
        for s in range(8): unpack(p, PR[s], TM[s], SM)
        for s in range(8): p.I("v_pk_add_f32", ACC[s], ACC[s], PR[s])
        for s in range(8): p.I("v_cvt_pk_bf16_f32", TM[s], ACC[s][0], ACC[s][1])
        for s in range(8): unpack(p, ACC[s], TM[s], SM)
    stamp(p, 4, False)
    p.wait_vm(tv[-1])
    for s in range(8): unpack(p, PR[s], VR[s], SM)
    for s in range(8): p.I("v_pk_mul_f32", ACC[s], ACC[s], PR[s])
    G = [V(8, 4), V(12, 4)]
    for ch in range(2):
        for e2 in range(4):
            p.I("v_cvt_pk_bf16_f32", G[ch][e2], ACC[7 - 2 * e2][ch], ACC[6 - 2 * e2][ch])
    p.I("ds_write_b128", vlw, G[0]); p.I("ds_write_b128", vlw, G[1], mods="offset:128")
    p.I("s_mov_b32", S(9), 0x05040100); p.I("s_mov_b32", S(10), 0x07060302)
    XG = [V(20, 4), V(24, 4)]
    p.wait_vm(tq[-1])
    for e2 in range(4):
        p.I("v_perm_b32", XG[0][e2], QR[2 * e2 + 1], QR[2 * e2], S(9))
        p.I("v_perm_b32", XG[1][e2], QR[2 * e2 + 1], QR[2 * e2], S(10))
    p.I("ds_write_b128", vlw, XG[0], mods="offset:8192"); p.I("ds_write_b128", vlw, XG[1], mods="offset:8320")
    p.wait_lg0()
    stamp(p, 5)
    p.I("s_barrier")
    O = [V(56 + 4 * i, 4) for i in range(4)]
    to = [p.I("ds_read_b128", O[i], vlr, mods=f"offset:{4096*i}") for i in range(4)]
    for i in range(4):
        p.I("s_add_u32", S(8), S(7), (WS_X if i >= 2 else WS_KV) + (i & 1) * 32 * 4096)
        p.wait_lg(to[i])
        p.I("buffer_store_dwordx4", O[i], vgo, sws, S(8), mods="offen")
    stamp(p, 6)
    if STAMP:
        p.wait_vm0(); stamp(p, 7)
    stamp_out(p, 8, sws, 0)
    p.I("s_endpgm")
    p.label("L_k1_stats")
    p.reset_counters()
    p.I("s_sub_u32", S(3), S(3), NTR)
    p.I("s_cmp_ge_u32", S(3), NST)
    p.I("s_cbranch_scc1", "L_k1_exit")
    SM = S(6)
    p.I("s_mov_b32", SM, 0xffff0000)
    vlane = V(6); vst = V(5)
    p.I("v_and_b32", vlane, 63, V(0))
    p.I("v_lshrrev_b32", vst, 6, V(0))
    p.I("v_mul_u32_u24", vst, 4 * ROWB, vst)
    p.I("v_lshl_add_u32", vst, vlane, 4, vst)
    p.I("s_mul_i32", S(4), S(3), 16 * ROWB)
    p.I("v_cmp_gt_u32", S(14, 2), 56, vlane)
    p.I("s_mov_b64", S(10, 2), EXEC)
    p.I("s_waitcnt", "lgkmcnt(0)")
    sq = srd(p, 48, P_Q, ARR); sws = srd(p, 64, P_WS, WS_SIZE)
    stamp(p, 1, False)
    XS = [V(8 + 4 * i, 4) for i in range(4)]
    SU = [V(24 + i) for i in range(4)]; TT = [V(28 + i) for i in range(4)]; VA = [V(32 + i) for i in range(4)]
    for i in range(4): p.I("v_mov_b32", SU[i], 0); p.I("v_mov_b32", VA[i], 0)
    p.I("s_mov_b32", S(7), 0x3f803f80)
    p.I("s_mov_b64", EXEC, S(14, 2))
    tx = [p.I("buffer_load_dwordx4", XS[i], vst, sq, S(4), mods=f"offen offset:{i*896}") for i in range(4)]
    for i in range(4):
        p.wait_vm(tx[i])
        for j in range(4): p.I("v_dot2_f32_bf16", SU[i], XS[i][j], S(7), SU[i])
    stamp(p, 2, False)
    p.I("s_mov_b64", EXEC, S(10, 2))
    wave_sum_multi(p, SU, TT)
    p.I("s_mov_b32", S(8), 0x3b124925)
    for i in range(4): p.I("v_mul_f32", SU[i], S(8), SU[i])
    p.I("s_mov_b64", EXEC, S(14, 2))
    for i in range(4):
        U = V(40 + 8 * i, 8)
        for j in range(4): unpack(p, U[2 * j:2 * j + 2], XS[i][j], SM)
        for j in range(8): p.I("v_sub_f32", U[j], U[j], SU[i])
    for j in range(8):
        for i in range(4):
            U = V(40 + 8 * i, 8)
            p.I("v_fmac_f32", VA[i], U[j], U[j])
    p.I("s_mov_b64", EXEC, S(10, 2))
    wave_sum_multi(p, VA, TT)
    O = V(36, 4)
    p.I("s_mov_b32", S(9), 0x3727c5ac)
    for i in range(4): p.I("v_mul_f32", VA[i], S(8), VA[i])
    for i in range(4): rnd1(p, VA[i])
    for i in range(4): p.I("v_add_f32", VA[i], S(9), VA[i])
    for i in range(4): rnd1(p, VA[i])
    for i in range(4): p.I("v_sqrt_f32", VA[i], VA[i])
    for i in range(4): p.I("v_cvt_pk_bf16_f32", O[i], SU[i], VA[i])
    p.I("v_lshrrev_b32", V(1), 6, V(0))
    p.I("v_lshlrev_b32", V(1), 4, V(1))
    p.I("s_lshl_b32", S(4), S(3), 6)
    p.I("s_add_u32", S(4), S(4), WS_ST1)
    p.I("v_cmp_eq_u32", VCC, 0, vlane)
    p.I("s_and_saveexec_b64", S(10, 2), VCC)
    p.I("buffer_store_dwordx4", O, V(1), sws, S(4), mods="offen")
    p.I("s_mov_b64", EXEC, S(10, 2))
    stamp(p, 3)
    stamp_out(p, 4, sws, 0)
    p.label("L_k1_exit")
    p.I("s_endpgm")
    p.label("L_k1_mod")
    p.reset_counters()
    p.I("s_cmp_ge_u32", S(2), 84)
    p.I("s_cbranch_scc1", "L_k1_exit")
    p.I("s_lshr_b32", S(3), S(2), 1); p.I("s_and_b32", S(5), S(2), 1)
    p.I("s_waitcnt", "lgkmcnt(0)")
    swm = srd(p, 48, P_WM, D * 6 * D * 2); sc = srd(p, 52, P_C, D * 2); sws = srd(p, 64, P_WS, WS_SIZE)
    p.I("s_lshl_b32", S(4), S(3), 7); p.I("s_mul_i32", S(12), S(5), 224 * 6 * D * 2); p.I("s_add_u32", S(4), S(4), S(12))
    p.I("s_mul_i32", S(12), S(5), 448)
    def coef_ld(p, vrg):
        C = [V(64 + i) for i in range(7)]
        p.I("v_lshlrev_b32", V(92), 1, vrg)
        return [p.I("buffer_load_ushort", C[i], V(92), sc, S(12), mods=f"offen offset:{i*64}") for i in range(7)]
    def coef(p, t):
        C = [V(64 + i) for i in range(7)]; E = [V(78 + i) for i in range(7)]
        p.I("s_mov_b32", S(9), 0xbfb8aa3b)
        p.wait_vm(t[-1])
        for i in range(7): p.I("v_lshlrev_b32", C[i], 16, C[i])
        for i in range(7): p.I("v_mul_f32", E[i], S(9), C[i])
        for i in range(7): p.I("v_exp_f32", E[i], E[i])
        for i in range(7): p.I("v_add_f32", E[i], 1.0, E[i])
        for i in range(7): p.I("v_rcp_f32", E[i], E[i])
        for i in range(7): p.I("v_mul_f32", C[i], C[i], E[i])
        for i in range(7): rnd1(p, C[i])
        return [C]
    def outf(p, res, va):
        p.I("s_lshl_b32", S(4), S(3), 8); p.I("s_mul_i32", S(12), S(5), MODP); p.I("s_add_u32", S(4), S(4), S(12))
        p.I("s_add_u32", S(4), S(4), WS_MOD)
        p.I("buffer_store_dword", res[0], va, sws, S(4), mods="offen")
    gemv64(p, swm, 6 * D * 2, S(4), 1, (coef_ld, coef), outf, "k1mod", sws, NT_IN)
    return p

KC0 = 0; KCS = 4160; KCC = 4 * KCS
KV0 = 2 * KCC; KVC = 5120
P0 = KV0 + 2 * KVC; PS = 9216
SIDE0 = P0 + 4 * PS
K2_LDS = SIDE0 + 2048
NCONV = 224; NSIDE = 56
import os
INTERLEAVE = int(os.environ.get('INTERLEAVE', '1'))
def gen_k2():
    p = Prog()
    load_kernargs(p)
    stamp(p, 0, False)
    p.I("s_mov_b32", S(71), S(2))
    p.I("s_cmp_ge_u32", S(71), NCONV)
    p.I("s_cbranch_scc1", "L_k2_exit")
    SM = S(6)
    p.I("s_mov_b32", SM, 0xffff0000)
    p.I("s_and_b32", S(3), S(71), 7); p.I("s_mul_i32", S(3), S(3), 28); p.I("s_lshr_b32", S(4), S(71), 3)
    p.I("s_add_u32", S(3), S(3), S(4))
    vlane = V(1); vw = V(2)
    p.I("v_and_b32", vlane, 63, V(0))
    p.I("v_lshrrev_b32", vw, 6, V(0))
    p.I("v_readfirstlane_b32", S(4), vw)
    p.I("s_cmp_ge_u32", S(4), 4)
    p.I("s_cbranch_scc1", "L_k2_side")
    p.I("s_lshr_b32", S(5), S(4), 1)
    p.I("s_and_b32", S(7), S(4), 1)
    p.I("s_lshl_b32", S(8), S(3), 1); p.I("s_add_u32", S(8), S(8), S(5))
    p.I("s_waitcnt", "lgkmcnt(0)")
    ssk = srd(p, 48, P_SK, ARR); sws = srd(p, 52, P_WS, WS_SIZE)
    stamp(p, 1, False)
    p.I("s_lshl_b32", S(9), S(3), 3)
    p.I("s_add_u32", S(9), S(9), WS_MOD)
    p.I("s_add_u32", S(56), S(P_WS), S(9)); p.I("s_addc_u32", S(57), S(P_WS + 1), 0)
    p.I("s_load_dwordx2", S(60, 2), S(56, 2), 0 * D * 4)
    p.I("s_load_dwordx2", S(62, 2), S(56, 2), 1 * D * 4)
    p.I("s_load_dwordx2", S(64, 2), S(56, 2), 2 * D * 4)
    p.I("s_load_dwordx2", S(92, 2), S(56, 2), MODP + 0 * D * 4)
    p.I("s_load_dwordx2", S(94, 2), S(56, 2), MODP + 1 * D * 4)
    p.I("s_load_dwordx2", S(96, 2), S(56, 2), MODP + 2 * D * 4)
    p.I("s_lshl_b32", S(9), S(3), 2)
    p.I("s_add_u32", S(58), S(P_SD), S(9)); p.I("s_addc_u32", S(59), S(P_SD + 1), 0)
    p.I("s_load_dword", S(66), S(58, 2), 0)
    p.I("s_lshl_b32", S(10), S(8), 12)
    KW = [V(88 + 6 * i, 6) for i in range(2)]
    vkl = V(3)
    p.I("s_lshl_b32", S(12), S(7), 11)
    p.I("v_lshl_add_u32", vkl, vlane, 4, S(12))
    tkw = []
    for i in range(2):
        p.I("buffer_load_dwordx4", KW[i][0:4], vkl, ssk, S(10), mods=f"offen offset:{1024*i} {NT_IN}")
        tkw.append(p.I("buffer_load_dwordx2", KW[i][4:6], vkl, ssk, S(10), mods=f"offen offset:{1024*i+16} {NT_IN}"))
    vd = V(32); vd2 = V(33); vd3 = V(34)
    p.I("v_and_b32", vd, 15, vlane); p.I("v_lshlrev_b32", vd, 6, vd)
    p.I("v_lshrrev_b32", vd2, 4, vlane); p.I("v_lshl_add_u32", vd, vd2, 4, vd)
    p.I("s_lshl_b32", S(12), S(7), 11); p.I("s_add_u32", S(12), S(12), S(10))
    p.I("s_mul_i32", S(14), S(5), KVC); p.I("s_add_u32", S(14), S(14), KV0)
    p.I("s_lshl_b32", S(15), S(7), 11); p.I("s_add_u32", S(15), S(15), S(14))
    for qq in range(2):
        p.I("s_add_u32", M0, S(15), 1024 + qq * 1024)
        p.I("s_add_u32", S(13), S(12), WS_KV + qq * 1024)
        tdma = p.I("buffer_load_dwordx4", vd, sws, S(13), mods="offen lds")
    p.I("s_mul_i32", S(15), S(5), KCC); p.I("s_mul_i32", S(12), S(7), 2 * KCS); p.I("s_add_u32", S(15), S(15), S(12))
    XG = [V(8, 4), V(12, 4)]; SP = V(16, 8)
    vxo = V(6); vso = V(7)
    p.I("s_lshl_b32", S(11), S(3), 13)
    p.I("v_lshl_add_u32", vxo, V(0), 4, S(11))
    p.I("v_lshlrev_b32", vso, 5, V(0))
    p.I("s_mov_b32", S(12), WS_X); p.I("s_mov_b32", S(13), WS_ST1); p.I("s_mov_b32", S(70), WS_X + 4096)
    tx = [p.I("buffer_load_dwordx4", XG[i], vxo, sws, S(12) if i == 0 else S(70), mods="offen") for i in range(2)]
    tst = [p.I("buffer_load_dwordx4", SP[4 * i:4 * i + 4], vso, sws, S(13), mods=f"offen offset:{16*i}") for i in range(2)]
    stamp(p, 2, False)
    Z = V(36, 4); va = V(35); vb = V(40)
    for i in range(4): p.I("v_mov_b32", Z[i], 0)
    p.I("s_lshl_b32", S(12), S(7), 9); p.I("s_add_u32", S(12), S(12), S(14))
    p.I("v_lshl_add_u32", va, vlane, 4, S(12))
    p.I("v_bfe_u32", vb, vlane, 2, 2); p.I("v_mul_u32_u24", vb, KCS, vb)
    p.I("v_and_b32", V(41), 3, vlane); p.I("v_lshl_add_u32", vb, V(41), 4, vb); p.I("v_add_u32", vb, S(15), vb)
    p.I("v_cmp_gt_u32", VCC, 32, vlane)
    p.I("v_cndmask_b32", va, vb, va, VCC)
    p.I("s_lshl_b32", S(13), S(7), 4); p.I("s_sub_u32", S(13), 48, S(13))
    p.I("v_cmp_gt_u32", VCC, S(13), vlane)
    p.I("s_and_saveexec_b64", S(68, 2), VCC)
    p.I("ds_write_b128", va, Z)
    p.I("s_mov_b64", EXEC, S(68, 2))
    vcw = V(35)
    p.I("s_mul_i32", S(12), S(5), KCC)
    p.I("v_add_u32", vcw, S(12), vkl)
    for i in range(2):
        AL = V(100 + 6 * i, 6)
        p.wait_vm(tkw[i])
        if i == 0: stamp(p, 3, False)
        for j in range(5): p.I("v_alignbit_b32", AL[j], KW[i][j + 1], KW[i][j], 16)
        C2 = V(112, 4); C3 = V(116, 4)
        for j in range(4): p.I("v_mov_b32", C2[j], KW[i][j + 1]); p.I("v_mov_b32", C3[j], AL[j + 1])
        o = KC0 + 64 + 1024 * i
        p.I("ds_write_b128", vcw, KW[i][0:4], mods=f"offset:{o}")
        p.I("ds_write_b128", vcw, AL[0:4], mods=f"offset:{o + KCS}")
        p.I("ds_write_b128", vcw, C2, mods=f"offset:{o + 2*KCS}")
        p.I("ds_write_b128", vcw, C3, mods=f"offset:{o + 3*KCS}")
    FX = V(4, 2)
    p.I("v_readfirstlane_b32", S(68), KW[0][0]); p.I("v_readfirstlane_b32", S(69), KW[0][1])
    p.I("v_lshlrev_b32", vb, 4, vlane); p.I("v_sub_u32", vb, 48, vb)
    p.I("v_mul_u32_u24", va, KCS, vlane); p.I("v_add_u32", va, S(12), va)
    p.I("v_mov_b32", FX[0], S(68)); p.I("v_mov_b32", FX[1], S(69))
    p.I("v_lshlrev_b64", FX, vb, FX)
    p.I("v_lshlrev_b64", FX, 16, FX)
    p.I("s_lshl_b32", S(13), S(7), 2); p.I("s_sub_u32", S(13), 4, S(13))
    p.I("v_cmp_gt_u32", VCC, S(13), vlane)
    p.I("s_and_saveexec_b64", S(68, 2), VCC)
    p.I("ds_write_b64", va, FX, mods="offset:56")
    p.I("s_mov_b64", EXEC, S(68, 2))
    vA = V(42); vB = V(43); vi = V(44); vq = V(45); vt = V(46)
    p.I("v_and_b32", vi, 15, vlane); p.I("v_lshrrev_b32", vq, 4, vlane)
    p.I("v_add_u32", vt, 1, vi)
    p.I("v_and_b32", vA, 3, vt); p.I("v_mul_u32_u24", vA, KCS, vA)
    p.I("v_and_b32", vt, 28, vt); p.I("v_lshl_add_u32", vA, vt, 1, vA)
    p.I("v_lshlrev_b32", vt, 4, vq); p.I("v_sub_u32", vA, vA, vt)
    p.I("s_mul_i32", S(12), S(5), KCC); p.I("s_lshl_b32", S(13), S(7), 9); p.I("s_add_u32", S(12), S(12), S(13))
    p.I("s_add_u32", S(12), S(12), KC0 + 48)
    p.I("v_add_u32", vA, S(12), vA)
    VB = [V(24 + r) for r in range(8)]
    p.I("s_lshl_b32", S(12), S(7), 3); p.I("s_sub_u32", S(12), 16, S(12))
    p.I("v_lshl_add_u32", vB, vq, 8, S(14))
    for r in range(8):
        p.I("v_add_u32", vt, S(12), vi)
        if r: p.I("v_subrev_u32", vt, r, vt)
        p.I("v_and_b32", VB[r], 15, vt); p.I("v_lshl_add_u32", VB[r], VB[r], 4, vB)
        p.I("v_lshrrev_b32", vt, 4, vt); p.I("v_lshl_add_u32", VB[r], vt, 10, VB[r])
    ACC = [[A(8 * j + 4 * m, 4) for m in range(2)] for j in range(4)]
    for i in range(32): p.I("v_accvgpr_write_b32", A(i), 0)
    CA1 = V(48, 2); SA = V(50, 2); GA = V(52, 2); DD = V(54, 2)
    p.I("s_waitcnt", "lgkmcnt(0)"); p.lg_done = p.lg_issued
    for c in range(2):
        p.I("v_mov_b32", CA1[c], S(62 + c)); p.I("v_mov_b32", SA[c], S(60 + c)); p.I("v_mov_b32", GA[c], S(64 + c))
        p.I("v_add_f32", CA1[c], S(94 + c), CA1[c]); p.I("v_add_f32", SA[c], S(92 + c), SA[c]); p.I("v_add_f32", GA[c], S(96 + c), GA[c])
    rnd_pair(p, CA1, V(56), SM); rnd_pair(p, SA, V(57), SM); rnd_pair(p, GA, V(58), SM)
    for c in range(2): p.I("v_add_f32", CA1[c], 1.0, CA1[c])
    rnd_pair(p, CA1, V(56), SM)
    p.I("v_mov_b32", V(56), S(66)); unpack(p, DD, V(56), SM)
    X = [V(120 + 2 * i, 2) for i in range(8)]; H = [V(136 + 2 * i, 2) for i in range(8)]; TM = [V(152 + i) for i in range(8)]
    fill = []
    def FL(*a, **k): fill.append((a, k))
    for i in range(8):
        for c in range(2):
            if i % 2 == 0: FL("v_lshlrev_b32", X[i][c], 16, XG[c][i // 2])
            else: FL("v_and_b32", X[i][c], SM, XG[c][i // 2])
    ST = V(160, 16)
    for i in range(8):
        FL("v_lshlrev_b32", ST[2 * i], 16, SP[i]); FL("v_and_b32", ST[2 * i + 1], SM, SP[i])
    for i in range(8): FL("v_rcp_f32", ST[2 * i + 1], ST[2 * i + 1])
    def frnd(Rs):
        for i in range(8): FL("v_cvt_pk_bf16_f32", TM[i], Rs[i][0], Rs[i][1])
        for i in range(8):
            FL("v_lshlrev_b32", Rs[i][0], 16, TM[i]); FL("v_and_b32", Rs[i][1], SM, TM[i])
    for i in range(8):
        for c in range(2): FL("v_sub_f32", H[i][c], X[i][c], ST[2 * i])
    frnd(H)
    for i in range(8):
        for c in range(2): FL("v_mul_f32", H[i][c], H[i][c], ST[2 * i + 1])
    frnd(H)
    for i in range(8):
        for c in range(2): FL("v_mul_f32", H[i][c], H[i][c], CA1[c])
    frnd(H)
    for i in range(8):
        for c in range(2): FL("v_add_f32", H[i][c], H[i][c], SA[c])
    frnd(H)
    stamp(p, 4)
    p.wait_vm(tdma)
    stamp(p, 5)
    p.I("s_barrier")
    stamp(p, 6)
    BB = [[V(56 + 16 * s_ + 4 * t, 4) for t in range(4)] for s_ in range(2)]
    AR = [V(88 + 4 * i, 4) for i in range(8)]
    loads = []; mf = []
    acount = 0
    for rp in range(8):
        bs = BB[rp & 1]
        bidx = {}
        def addB(t):
            loads.append(("b128", bs[t], VB[rp], 1024 * t, ("B", rp, t))); bidx[t] = len(loads) - 1
        first = True
        for ip in range(4):
            for m in range(2):
                ar = AR[acount % 8]; acount += 1
                off = 64 * rp + 1024 * ip + 32 * m
                if first: addB(0)
                loads.append(("b64", ar[0:2], vA, off, None)); loads.append(("b64", ar[2:4], vA, off + 8, None))
                aidx = len(loads) - 1
                if first:
                    addB(1); addB(2); addB(3); first = False
                for j in range(ip, 4):
                    mf.append((ACC[j][m], ar, bs[j - ip], max(aidx, bidx[j - ip])))
    LOOK = 13
    tick = {}
    lastuse = {}
    for mi, (acc, a_, b_, need) in enumerate(mf):
        for rr in a_.regs() + b_.regs(): lastuse.setdefault(rr, []).append((mi, need))
    def issue(li, mi_done):
        kind, dst, va_, off, _ = loads[li]
        for rr in dst.regs():
            for (mi, need) in lastuse[rr]:
                if need < li and mi >= mi_done:
                    raise AssertionError(("WAR", li, mi, rr))
        tick[li] = p.I("ds_read_b128" if kind == "b128" else "ds_read_b64", dst, va_, mods=f"offset:{off}")
    nl = 0
    while nl < LOOK: issue(nl, 0); nl += 1
    p.wait_vm(tst[-1])
    fi = 0
    for mi, (acc, a_, b_, need) in enumerate(mf):
        assert need < nl
        p.wait_lg(tick[need])
        p.I("v_mfma_f32_16x16x32_bf16", acc, a_, b_, acc)
        if nl < len(loads): issue(nl, mi + 1); nl += 1
        if INTERLEAVE and fi < len(fill): a, k = fill[fi]; p.I(*a, **k); fi += 1
    while fi < len(fill): a, k = fill[fi]; p.I(*a, **k); fi += 1
    stamp(p, 7)
    vp = V(42)
    p.I("v_mul_u32_u24", vp, 144, vi); p.I("v_lshl_add_u32", vp, vq, 4, vp)
    p.I("s_mul_i32", S(12), S(4), PS); p.I("s_add_u32", S(12), S(12), P0)
    p.I("v_add_u32", vp, S(12), vp)
    for j in range(4):
        for m in range(2):
            p.I("ds_write_b128", vp, ACC[j][m], mods=f"offset:{2304*j + 64*m}")
    vk = V(43); vr = V(44)
    p.I("v_and_b32", vk, 3, V(0)); p.I("v_lshlrev_b32", vk, 8, vk)
    p.I("v_bfe_u32", vr, V(0), 2, 4); p.I("v_lshl_add_u32", vk, vr, 4, vk)
    p.I("v_lshrrev_b32", vr, 6, V(0)); p.I("v_lshl_add_u32", vk, vr, 10, vk)
    p.I("v_lshrrev_b32", vr, 2, V(0))
    p.I("v_lshlrev_b32", vr, 4, vr); p.I("v_lshl_add_u32", vr, V(0), 5, vr)
    p.I("v_add_u32", vr, P0, vr)
    KG = [V(56, 4), V(60, 4)]
    tkg = [p.I("ds_read_b128", KG[c], vk, mods=f"offset:{KV0 + c*KVC + 1024}") for c in range(2)]
    KVF = [V(64 + 2 * i, 2) for i in range(8)]
    p.wait_lg(tkg[-1])
    for c in range(2):
        for e2 in range(4):
            p.I("v_lshlrev_b32", KVF[7 - 2 * e2][c], 16, KG[c][e2]); p.I("v_and_b32", KVF[6 - 2 * e2][c], SM, KG[c][e2])
    def rnd8(Rs):
        for i in range(8): p.I("v_cvt_pk_bf16_f32", TM[i], Rs[i][0], Rs[i][1])
        for i in range(8): unpack(p, Rs[i], TM[i], SM)
    for i in range(8): p.I("v_pk_mul_f32", KVF[i], KVF[i], DD)
    rnd8(KVF)
    p.wait_lg0()
    p.I("s_barrier")
    PP = [[V(80 + 16 * c + 8 * h, 8) for h in range(2)] for c in range(2)]
    tp = {}
    for c in range(2):
        for h in range(2):
            for k_ in range(2):
                tp[(c, h, k_)] = p.I("ds_read_b128", PP[c][h][4 * k_:4 * k_ + 4], vr, mods=f"offset:{(2*c+h)*PS + 16*k_}")
    Y = [V(8 + 2 * i, 2) for i in range(8)]
    for c in range(2):
        p.wait_lg(tp[(c, 1, 1)])
        for i in range(8): p.I("v_add_f32", Y[i][c], PP[c][0][i], PP[c][1][i])
    rnd8(Y)
    for i in range(8): p.I("v_pk_add_f32", Y[i], Y[i], KVF[i])
    rnd8(Y)
    for i in range(8): p.I("v_pk_mul_f32", Y[i], Y[i], H[i])
    rnd8(Y)
    for i in range(8): p.I("v_pk_mul_f32", Y[i], Y[i], GA)
    rnd8(Y)
    for i in range(8): p.I("v_pk_add_f32", Y[i], Y[i], X[i])
    OG = [V(56, 4), V(60, 4)]
    for c in range(2):
        for e2 in range(4): p.I("v_cvt_pk_bf16_f32", OG[c][e2], Y[2 * e2][c], Y[2 * e2 + 1][c])
    p.I("s_mov_b32", S(12), WS_X1); p.I("s_mov_b32", S(13), WS_X1 + 4096)
    p.I("buffer_store_dwordx4", OG[0], vxo, sws, S(12), mods="offen")
    p.I("buffer_store_dwordx4", OG[1], vxo, sws, S(13), mods="offen")
    stamp_out(p, 8, sws, 1)
    p.I("s_endpgm")
    p.label("L_k2_side")
    p.reset_counters()
    p.I("s_sub_u32", S(4), S(4), 4)
    p.I("s_mul_hi_u32", S(7), S(2), 76695845); p.I("s_mul_i32", S(8), S(7), 56); p.I("s_sub_u32", S(8), S(2), S(8))
    vtt = V(3); vcp = V(4); vog = V(5); vt = V(6); vo = V(7); vco = V(8); vst = V(9); vt2 = V(10)
    p.I("v_subrev_u32", vtt, 256, V(0)); p.I("v_and_b32", vcp, 31, vtt); p.I("v_lshrrev_b32", vog, 5, vtt)
    p.I("s_mov_b32", S(9), 8 * 3584)
    p.I("v_mul_lo_u32", vo, vog, S(9)); p.I("v_lshl_add_u32", vo, vcp, 2, vo)
    p.I("v_lshlrev_b32", vco, 5, vog)
    p.I("s_cmp_ge_u32", S(8), 28)
    p.I("s_cselect_b32", S(9), 28, 0); p.I("s_cselect_b32", S(10), 256, 0)
    p.I("s_sub_u32", S(9), S(8), S(9))
    p.I("s_lshl_b32", S(11), S(9), 2)
    p.I("v_lshrrev_b32", vt, 3, vcp); p.I("v_add_u32", vt, S(11), vt)
    p.I("v_mul_u32_u24", vt2, 9363, vt); p.I("v_lshrrev_b32", vt2, 16, vt2)
    p.I("s_mov_b32", S(11), 200704 - 7 * 1024)
    p.I("v_mul_lo_u32", vst, vt2, S(11)); p.I("v_lshl_add_u32", vst, vt, 10, vst)
    p.I("v_and_b32", vt, 1, vcp); p.I("v_lshl_add_u32", vst, vt, 5, vst)
    p.I("v_bfe_u32", vt, vcp, 1, 1); p.I("v_lshl_add_u32", vst, vt, 7, vst)
    p.I("v_bfe_u32", vt, vcp, 2, 1); p.I("v_lshl_add_u32", vst, vt, 6, vst)
    p.I("v_lshrrev_b32", vt, 1, vog); p.I("v_mul_u32_u24", vt, 7168, vt); p.I("v_add_u32", vst, vst, vt)
    p.I("v_and_b32", vt, 1, vog); p.I("v_lshl_add_u32", vst, vt, 9, vst)
    p.I("s_mul_i32", S(11), S(7), 7 * 7168); p.I("s_add_u32", S(11), S(11), S(10)); p.I("s_add_u32", S(11), S(11), WS_WP)
    p.I("v_cmp_gt_u32", S(14, 2), 6, vog)
    p.I("s_mov_b64", S(12, 2), EXEC)
    p.I("s_waitcnt", "lgkmcnt(0)")
    stamp(p, 1, False)
    p.I("s_cmp_ge_u32", S(8), 28)
    p.I("s_cselect_b32", S(46), S(P_WU), S(P_WG)); p.I("s_cselect_b32", S(47), S(P_WU + 1), S(P_WG + 1))
    sw = srd(p, 48, 46, D * F * 2); sws = srd(p, 52, P_WS, WS_SIZE)
    p.I("s_mul_i32", S(56), S(7), 112 * 3584); p.I("s_lshl_b32", S(57), S(9), 7); p.I("s_add_u32", S(56), S(56), S(57))
    p.I("s_mul_i32", S(57), S(7), 448); p.I("s_add_u32", S(57), S(57), WS_MOD + 3 * D * 4)
    WR = [[V(16 + 8 * ps + j) for j in range(8)] for ps in range(2)]
    CF = [[V(32 + 32 * ps + 8 * a_, 8) for a_ in range(4)] for ps in range(2)]
    tw = {}; tcf = {}
    for ps in range(2):
        if ps == 1: p.I("s_mov_b64", EXEC, S(14, 2))
        for a_ in range(4):
            p.I("s_add_u32", S(58), S(57), (a_ & 1) * D * 4 + (a_ >> 1) * MODP + ps * 256)
            for k_ in range(2):
                tcf[(ps, a_)] = p.I("buffer_load_dwordx4", CF[ps][a_][4 * k_:4 * k_ + 4], vco, sws, S(58), mods=f"offen offset:{16*k_}")
        for j in range(8):
            p.I("s_add_u32", S(58), S(56), (64 * ps + j) * 3584)
            tw[(ps, j)] = p.I("buffer_load_dword", WR[ps][j], vo, sw, S(58), mods=f"offen {NT_IN}")
    p.I("s_mov_b64", EXEC, S(12, 2))
    AS = V(96, 4)
    for i in range(4): p.I("v_mov_b32", AS[i], 0)
    p.I("s_mov_b32", S(59), 0x3f803f80)
    stamp(p, 2, False)
    p.I("s_barrier")
    stamp(p, 3, False)
    for ps in range(2):
        if ps == 1: p.I("s_mov_b64", EXEC, S(14, 2))
        sb = CF[ps][0]; cb = CF[ps][1]
        p.wait_vm(tcf[(ps, 3)])
        for j in range(8): p.I("v_add_f32", sb[j], sb[j], CF[ps][2][j]); p.I("v_add_f32", cb[j], cb[j], CF[ps][3][j])
        Tm = CF[ps][2]
        for X_ in (sb, cb):
            for j in range(4): p.I("v_cvt_pk_bf16_f32", Tm[j], X_[2 * j], X_[2 * j + 1])
            for j in range(4): unpack(p, X_[2 * j:2 * j + 2], Tm[j], SM)
        for j in range(8): p.I("v_add_f32", cb[j], 1.0, cb[j])
        for j in range(4): p.I("v_cvt_pk_bf16_f32", Tm[j], cb[2 * j], cb[2 * j + 1])
        for j in range(4): unpack(p, cb[2 * j:2 * j + 2], Tm[j], SM)
        U0 = V(100, 8); U1 = V(108, 8); O = [V(116, 4), V(120, 4)]
        p.wait_vm(tw[(ps, 7)])
        for j in range(8): p.I("v_lshlrev_b32", U0[j], 16, WR[ps][j]); p.I("v_and_b32", U1[j], SM, WR[ps][j])
        for j in range(8): p.I("v_fmac_f32", AS[2], sb[j], U0[j]); p.I("v_fmac_f32", AS[3], sb[j], U1[j])
        for j in range(8): p.I("v_mul_f32", U0[j], U0[j], cb[j]); p.I("v_mul_f32", U1[j], U1[j], cb[j])
        for j in range(4): p.I("v_cvt_pk_bf16_f32", O[0][j], U0[2 * j], U0[2 * j + 1]); p.I("v_cvt_pk_bf16_f32", O[1][j], U1[2 * j], U1[2 * j + 1])
        p.I("s_add_u32", S(58), S(11), ps * 4 * 7168)
        p.I("buffer_store_dwordx4", O[0], vst, sws, S(58), mods=f"offen {ST_WT}")
        p.I("buffer_store_dwordx4", O[1], vst, sws, S(58), mods=f"offen offset:16 {ST_WT}")
        for j in range(4): p.I("v_dot2_f32_bf16", AS[0], O[0][j], S(59), AS[0]); p.I("v_dot2_f32_bf16", AS[1], O[1][j], S(59), AS[1])
    p.I("s_mov_b64", EXEC, S(12, 2))
    Tm = V(100, 4)
    for i in range(4): p.I("v_mov_b32", Tm[i], AS[i])
    for i in range(4): p.I("v_permlane32_swap_b32", Tm[i], AS[i])
    for i in range(4): p.I("v_add_f32", AS[i], AS[i], Tm[i])
    p.I("s_lshl_b32", S(58), S(4), 9); p.I("s_add_u32", S(58), S(58), SIDE0)
    p.I("v_lshl_add_u32", vt, vcp, 4, S(58))
    p.I("ds_write_b128", vt, AS)
    p.wait_lg0()
    stamp(p, 4)
    p.I("s_barrier")
    stamp_out(p, 5, sws, 1)
    p.I("s_cmp_lg_u32", S(4), 0)
    p.I("s_cbranch_scc1", "L_k2_exit")
    p.I("v_lshlrev_b32", vt, 4, vcp); p.I("v_add_u32", vt, SIDE0, vt)
    RR = [V(16 + 4 * w, 4) for w in range(4)]
    for w in range(4): p.I("ds_read_b128", RR[w], vt, mods=f"offset:{512*w}")
    p.wait_lg0()
    for i in range(4):
        p.I("v_add_f32", RR[0][i], RR[0][i], RR[1][i]); p.I("v_add_f32", RR[2][i], RR[2][i], RR[3][i]); p.I("v_add_f32", RR[0][i], RR[0][i], RR[2][i])
    p.I("s_mul_i32", S(58), S(7), 3584 * 4); p.I("s_lshl_b32", S(59), S(8), 8); p.I("s_add_u32", S(58), S(58), S(59))
    p.I("s_add_u32", S(59), S(58), WS_BI); p.I("s_add_u32", S(58), S(58), WS_CS)
    p.I("v_lshlrev_b32", vt, 3, vcp)
    p.I("v_cmp_gt_u32", VCC, 32, vtt)
    p.I("s_and_saveexec_b64", S(12, 2), VCC)
    p.I("buffer_store_dwordx2", RR[0][0:2], vt, sws, S(58), mods="offen")
    p.I("buffer_store_dwordx2", RR[0][2:4], vt, sws, S(59), mods="offen")
    p.label("L_k2_exit")
    p.I("s_endpgm")
    return p

X_OFF = 28672; STG = 45056
TAB0 = 3 * STG
K4_LDS = TAB0 + 1792
EMU = int(os.environ.get('EMU', '1'))
K4MAP = int(os.environ.get('K4MAP', '0'))
XP = os.environ.get('XP', '')
ACT_ST = os.environ.get('ACT_ST', '')
K5_LD = os.environ.get('K5_LD', '')
K4_LD = os.environ.get('K4_LD', '')
def gen_k4():
    p = Prog()
    load_kernargs(p)
    stamp(p, 0, False)
    p.I("s_cmp_ge_u32", S(2), 256)
    p.I("s_cbranch_scc1", "L_k4_exit")
    SM = S(6)
    p.I("s_mov_b32", SM, 0xffff0000)
    if K4MAP == 0:
        p.I("s_bfe_u32", S(3), S(2), 0x10002); p.I("s_lshl_b32", S(3), S(3), 3); p.I("s_lshr_b32", S(4), S(2), 5); p.I("s_add_u32", S(3), S(3), S(4))
        p.I("s_and_b32", S(5), S(2), 3); p.I("s_lshl_b32", S(5), S(5), 2); p.I("s_bfe_u32", S(4), S(2), 0x20003); p.I("s_add_u32", S(5), S(5), S(4))
    elif K4MAP == 1:
        p.I("s_and_b32", S(3), S(2), 7); p.I("s_lshl_b32", S(3), S(3), 1); p.I("s_lshr_b32", S(4), S(2), 7); p.I("s_add_u32", S(3), S(3), S(4))
        p.I("s_bfe_u32", S(5), S(2), 0x40003)
    else:
        p.I("s_bfe_u32", S(3), S(2), 0x20001); p.I("s_lshl_b32", S(3), S(3), 2); p.I("s_lshr_b32", S(4), S(2), 6); p.I("s_add_u32", S(3), S(3), S(4))
        p.I("s_and_b32", S(5), S(2), 1); p.I("s_lshl_b32", S(5), S(5), 3); p.I("s_bfe_u32", S(4), S(2), 0x30003); p.I("s_add_u32", S(5), S(5), S(4))
    vlane = V(1); vw = V(2)
    p.I("v_and_b32", vlane, 63, V(0))
    p.I("v_lshrrev_b32", vw, 6, V(0))
    p.I("v_readfirstlane_b32", S(4), vw)
    p.I("s_cmp_ge_u32", S(4), 4)
    p.I("s_cbranch_scc1", "L_k4_load")
    vr = V(4); vc = V(5); vt = V(6); vh = V(7)
    p.I("v_bfe_u32", vr, vlane, 2, 2); p.I("v_and_b32", vc, 3, vlane); p.I("v_lshrrev_b32", vh, 5, vlane)
    VA_ = V(8); VX = V(9)
    p.I("v_lshlrev_b32", VA_, 4, vlane)
    p.I("v_lshl_add_u32", vt, vh, 3, vr); p.I("v_lshlrev_b32", VX, 8, vt)
    p.I("v_xor_b32", vt, S(4), vr); p.I("v_lshl_add_u32", VX, vt, 6, VX)
    p.I("v_bfe_u32", vt, vlane, 4, 1); p.I("v_lshl_add_u32", VX, vt, 5, VX)
    p.I("v_lshl_add_u32", VX, vc, 3, VX); p.I("v_add_u32", VX, X_OFF, VX)
    ACC = [V(96 + 16 * T, 16) for T in range(7)]
    for i in range(112): p.I("v_mov_b32", V(96 + i), 0)
    FA = [[V(32 + 32 * s_ + 4 * T, 4) for T in range(7)] for s_ in range(2)]
    FB = [V(32 + 32 * s_ + 28, 4) for s_ in range(2)]
    SA_ = V(12, 4)
    for i in range(4): p.I("v_mov_b32", SA_[i], 0)
    p.I("s_mov_b32", S(12), 0x3f803f80)
    p.I("s_waitcnt", "lgkmcnt(0)")
    sws = srd(p, 52, P_WS, WS_SIZE)
    stamp(p, 1, False)
    def reads(n):
        kap = n & 3; st = n & 1
        L = [("ds_read_b64_tr_b16", FB[st][2 * s_:2 * s_ + 2], VX, kap * 4096 + s_ * 1024) for s_ in range(2)]
        L += [("ds_read_b128", FA[st][T], VA_, kap * 7168 + T * 1024) for T in range(7)]
        return L
    def bump(stage):
        d = STG if stage % 3 else -2 * STG
        for r_ in (VA_, VX):
            if d > 0: p.I("v_add_u32", r_, d, r_)
            else: p.I("v_subrev_u32", r_, -d, r_)
    def rd(op):
        if 'noa' in XP and op[0] == "ds_read_b128": return p.lg_issued
        return p.I(op[0], op[1], op[2], mods=f"offset:{op[3]}")
    p.I("s_barrier")
    stamp(p, 2)
    cur = [rd(o) for o in reads(0)]
    for n in range(28):
        st = n & 1
        last = (n & 3) == 3
        nxt_ops = reads(n + 1) if n < 27 else []
        nxt = []
        quota = [0, 0, 3, 2, 2, 2, 0] if last else [2, 2, 1, 1, 1, 1, 1]
        dots = []
        for j in range(4):
            dots.append(("v_dot2_f32_bf16", SA_[j & 1], FB[st][j], S(12), SA_[j & 1]))
            dots.append(("v_dot2_f32_bf16", SA_[2 + (j & 1)], FB[st][j], FB[st][j], SA_[2 + (j & 1)]))
        dq = [2, 1, 1, 1, 1, 1, 1]
        for T in range(7):
            p.wait_lg(cur[2 + T])
            p.I("v_mfma_f32_32x32x16_bf16", ACC[T], FA[st][T], FB[st], ACC[T])
            if last and T == 2 and n < 27:
                p.wait_lg(cur[-1])
                p.I("s_barrier")
                bump((n + 1) // 4)
            for _ in range(quota[T]):
                if len(nxt) < len(nxt_ops): nxt.append(rd(nxt_ops[len(nxt)]))
            for _ in range(dq[T]):
                dd_ = dots.pop(0)
                if 'nodot' not in XP: p.I(*dd_)
        cur = nxt
    stamp(p, 3)
    vtab = V(9)
    p.I("v_lshlrev_b32", vtab, 5, vh); p.I("v_add_u32", vtab, TAB0, vtab)
    TB = [[V(32 + 32 * s_ + 8 * a_, 8) for a_ in range(4)] for s_ in range(2)]
    def tabreads(T):
        return [p.I("ds_read_b128", TB[T & 1][a_][4 * k_:4 * k_ + 4], vtab, mods=f"offset:{a_*448 + T*64 + 16*k_}") for a_ in range(4) for k_ in range(2)]
    tt = tabreads(0)
    SP = V(16, 2); TT = V(18, 2)
    p.I("v_add_f32", SP[0], SA_[0], SA_[1]); p.I("v_add_f32", SP[1], SA_[2], SA_[3])
    for k_ in range(2): p.I("v_mov_b32", TT[k_], SP[k_])
    for k_ in range(2): p.I("v_permlane32_swap_b32", TT[k_], SP[k_])
    for k_ in range(2): p.I("v_add_f32", SP[k_], SP[k_], TT[k_])
    vm = V(10); vv = V(11); vrr = V(12, 2); vrm = V(14, 2)
    p.I("s_mov_b32", S(8), 0x3b124925); p.I("s_mov_b32", S(9), 0x3727c5ac); p.I("s_mov_b32", S(10), 0xbfb8aa3b); p.I("s_mov_b32", S(11), 0xbfb8aa3b)
    p.I("v_mul_f32", vm, S(8), SP[0]); p.I("v_mul_f32", vv, S(8), SP[1])
    p.I("v_fma_f32", vv, Neg(vm), vm, vv); p.I("v_max_f32", vv, 0, vv)
    rnd1(p, vv); p.I("v_add_f32", vv, S(9), vv); rnd1(p, vv); p.I("v_sqrt_f32", vv, vv); rnd1(p, vv)
    p.I("v_rcp_f32", vrr[0], vv); rnd1(p, vm); p.I("v_mul_f32", vrm[0], vrr[0], vm)
    p.I("v_mov_b32", vrr[1], vrr[0]); p.I("v_sub_f32", vrm[0], 0, vrm[0]); p.I("v_mov_b32", vrm[1], vrm[0])
    ONE = V(2, 2)
    p.I("v_mov_b32", ONE[0], 1.0); p.I("v_mov_b32", ONE[1], 1.0)
    vo = V(8)
    p.I("v_and_b32", vo, 31, vlane); p.I("v_lshlrev_b32", vo, 4, vo); p.I("v_lshl_add_u32", vo, vh, 15, vo)
    p.I("s_mul_i32", S(7), S(5), 14 * 32768); p.I("s_lshl_b32", S(13), S(3), 11); p.I("s_add_u32", S(7), S(7), S(13))
    p.I("s_lshl_b32", S(13), S(4), 9); p.I("s_add_u32", S(7), S(7), S(13)); p.I("s_add_u32", S(7), S(7), WS_ACT)
    E = V(16, 8); TMp = V(24, 4)
    def pr(X_, j): return X_[2 * j:2 * j + 2]
    for T in range(7):
        tb = TB[T & 1]; cur_t = tt
        if T < 6: tt = tabreads(T + 1)
        Gs = ACC[T][0:8]; Us = ACC[T][8:16]
        p.wait_lg(cur_t[-1])
        for j in range(4):
            p.I("v_pk_fma_f32", pr(tb[2], j), vrm, pr(tb[0], j), pr(tb[2], j)); p.I("v_pk_fma_f32", pr(tb[3], j), vrm, pr(tb[1], j), pr(tb[3], j))
        for j in range(4):
            p.I("v_pk_fma_f32", pr(Gs, j), vrr, pr(Gs, j), pr(tb[2], j)); p.I("v_pk_fma_f32", pr(Us, j), vrr, pr(Us, j), pr(tb[3], j))
        if EMU:
            for X_ in (Gs, Us):
                for j in range(4): p.I("v_cvt_pk_bf16_f32", TMp[j], X_[2 * j], X_[2 * j + 1])
                for j in range(4): unpack(p, X_[2 * j:2 * j + 2], TMp[j], SM)
        for j in range(4): p.I("v_pk_mul_f32", pr(E, j), pr(Gs, j), S(10, 2))
        for j in range(8): p.I("v_exp_f32", E[j], E[j])
        for j in range(4): p.I("v_pk_add_f32", pr(E, j), pr(E, j), ONE)
        for j in range(8): p.I("v_rcp_f32", E[j], E[j])
        for j in range(4): p.I("v_pk_mul_f32", pr(Gs, j), pr(Gs, j), pr(E, j))
        if EMU:
            for j in range(4): p.I("v_cvt_pk_bf16_f32", TMp[j], Gs[2 * j], Gs[2 * j + 1])
            for j in range(4): unpack(p, Gs[2 * j:2 * j + 2], TMp[j], SM)
        for j in range(4): p.I("v_pk_mul_f32", pr(Gs, j), pr(Gs, j), pr(Us, j))
        O = Us[0:4]
        for j in range(4): p.I("v_cvt_pk_bf16_f32", O[j], Gs[2 * j], Gs[2 * j + 1])
        p.I("s_add_u32", S(13), S(7), T * 65536)
        p.I("buffer_store_dwordx4", O, vo, sws, S(13), mods="offen " + ACT_ST)
    stamp(p, 4)
    stamp_out(p, 5, sws, 2)
    p.label("L_k4_exit")
    p.I("s_endpgm")
    p.label("L_k4_load")
    p.reset_counters()
    p.I("s_sub_u32", S(4), S(4), 4)
    vL = V(3); vt = V(6); vt2 = V(7); vwl = V(8); vxg = V(9)
    p.I("v_subrev_u32", vL, 256, V(0))
    p.I("v_lshlrev_b32", vwl, 4, vlane)
    p.I("v_lshrrev_b32", vt, 4, vlane); p.I("v_lshlrev_b32", vxg, 12, vt)
    p.I("v_bfe_u32", vt2, vlane, 2, 2); p.I("v_xor_b32", vt, vt, vt2); p.I("v_lshl_add_u32", vxg, vt, 6, vxg)
    p.I("v_and_b32", vt, 3, vlane); p.I("v_lshl_add_u32", vxg, vt, 4, vxg)
    p.I("s_lshl_b32", S(7), S(3), 8); p.I("s_lshl_b32", S(8), S(4), 16); p.I("s_add_u32", S(7), S(7), S(8)); p.I("s_add_u32", S(7), S(7), WS_X1)
    p.I("s_mul_i32", S(10), S(4), 7168)
    p.I("s_mul_i32", S(12), S(5), 200704); p.I("s_add_u32", S(12), S(12), S(10)); p.I("s_add_u32", S(12), S(12), WS_WP)
    p.I("s_lshl_b32", S(11), S(4), 12); p.I("s_add_u32", S(11), S(11), X_OFF)
    vtg = V(10); vtl = V(11)
    p.I("v_cmp_le_u32", VCC, 112, vL)
    p.I("v_mov_b32", vt, 0); p.I("v_mov_b32", vt2, (1792 - 112) * 4); p.I("v_cndmask_b32", vt, vt, vt2, VCC)
    p.I("v_lshl_add_u32", vtg, vL, 2, vt)
    p.I("v_lshlrev_b32", vtl, 2, vL); p.I("v_add_u32", vtl, TAB0, vtl)
    p.I("s_mul_i32", S(13), S(5), 448); p.I("s_add_u32", S(13), S(13), WS_CS)
    p.I("v_cmp_gt_u32", VCC, 224, vL); p.I("s_mov_b64", S(60, 2), VCC)
    p.I("s_mul_hi_u32", S(56), S(2), 613566757); p.I("s_mul_i32", S(57), S(56), 7); p.I("s_sub_u32", S(57), S(2), S(57))
    vdg = V(12); vds = V(13)
    p.I("v_lshrrev_b32", vt, 5, vL); p.I("v_and_b32", vt2, 31, vL)
    p.I("v_mul_u32_u24", vdg, 8 * ROWB, vt); p.I("v_lshl_add_u32", vdg, vt2, 2, vdg)
    p.I("v_lshlrev_b32", vds, 5, vt2)
    p.I("v_and_b32", vds, 511, vds); p.I("v_lshrrev_b32", vt2, 4, vt2); p.I("v_lshl_add_u32", vds, vt2, 10, vds)
    p.I("v_and_b32", vt2, 1, vt); p.I("v_lshl_add_u32", vds, vt2, 9, vds)
    p.I("v_lshrrev_b32", vt, 1, vt); p.I("v_lshl_add_u32", vds, vt, 11, vds)
    p.I("s_mul_i32", S(58), S(56), 64 * ROWB); p.I("s_lshl_b32", S(59), S(57), 7); p.I("s_add_u32", S(58), S(58), S(59))
    p.I("s_mul_i32", S(59), S(57), 229376); p.I("s_lshl_b32", S(62), S(56), 13); p.I("s_add_u32", S(59), S(59), S(62)); p.I("s_add_u32", S(59), S(59), WS_WD)
    p.I("s_waitcnt", "lgkmcnt(0)")
    stamp(p, 1, False)
    sws = srd(p, 52, P_WS, WS_SIZE); swd = srd(p, 48, P_WD, D * F * 2)
    def issue(s_):
        t = None
        if 'nodma' in XP and s_ >= 2: return p.vm_issued
        for i in range(4):
            p.I("s_add_u32", M0, S(11), (s_ % 3) * STG + i * 1024)
            p.I("s_add_u32", S(15), S(7), (64 * s_ + 4 * i) * 4096)
            t = p.I("buffer_load_dwordx4", vxg, sws, S(15), mods="offen lds")
        for i in range(7):
            p.I("s_add_u32", M0, S(10), (s_ % 3) * STG + i * 1024)
            p.I("s_add_u32", S(15), S(12), s_ * 28672 + i * 1024)
            t = p.I("buffer_load_dwordx4", vwl, sws, S(15), mods="offen lds")
        return t
    tS = {}
    tS[0] = issue(0); tS[1] = issue(1)
    stamp(p, 2, False)
    TBL = [V(16 + i) for i in range(8)]; WDR = [V(24 + i) for i in range(8)]
    for s_ in range(7):
        p.wait_vm(tS[s_])
        if s_ == 3: p.wait_lg0()
        if s_ == 0: stamp(p, 3, False)
        p.I("s_barrier")
        if s_ == 0:
            tS[2] = issue(2)
            p.I("s_mov_b64", S(68, 2), EXEC); p.I("s_mov_b64", EXEC, S(60, 2))
            for i in range(8):
                p.I("s_add_u32", S(15), S(13), (i & 3) * 3584 * 4 + (i >> 2) * (WS_BI - WS_CS))
                ttb = p.I("buffer_load_dword", TBL[i], vtg, sws, S(15), mods="offen")
            p.I("s_mov_b64", EXEC, S(68, 2))
            for j in range(8):
                p.I("s_add_u32", S(15), S(58), j * ROWB)
                twd = p.I("buffer_load_dword", WDR[j], vdg, swd, S(15), mods=f"offen {NT_IN}")
        if s_ >= 1 and s_ + 2 < 7: tS[s_ + 2] = issue(s_ + 2)
        if s_ == 2:
            p.wait_vm(ttb)
            for k_ in range(2):
                t4 = TBL[4 * k_:4 * k_ + 4]
                p.I("v_add_f32", t4[0], t4[0], t4[1]); p.I("v_add_f32", t4[2], t4[2], t4[3]); p.I("v_add_f32", t4[0], t4[0], t4[2])
            p.I("s_mov_b64", EXEC, S(60, 2))
            p.I("ds_write_b32", vtl, TBL[0]); p.I("ds_write_b32", vtl, TBL[4], mods="offset:896")
            p.I("s_mov_b64", EXEC, S(68, 2))
            p.I("s_mov_b32", S(62), 0x05040100); p.I("s_mov_b32", S(63), 0x07060302)
            p.wait_vm(twd)
            OG = [V(32, 4), V(36, 4)]
            for e2 in range(4):
                p.I("v_perm_b32", OG[0][e2], WDR[2 * e2 + 1], WDR[2 * e2], S(62)); p.I("v_perm_b32", OG[1][e2], WDR[2 * e2 + 1], WDR[2 * e2], S(63))
            p.I("s_cmp_ge_u32", S(2), 196)
            p.I("s_cbranch_scc1", "L_k4_nowd")
            p.raw("    buffer_store_dwordx4 v[32:35], v13, s[52:55], s59 offen " + ST_WT)
            p.raw("    buffer_store_dwordx4 v[36:39], v13, s[52:55], s59 offen offset:16 " + ST_WT)
            p.label("L_k4_nowd")
            p.vm_slack = True
    stamp(p, 4)
    stamp_out(p, 5, sws, 2)
    p.I("s_endpgm")
    return p

K5_PR = 64 * 272
K5_XT = 4 * K5_PR
K5_LDS = K5_XT + 8192
def gen_k5():
    p = Prog()
    load_kernargs(p)
    stamp(p, 0, False)
    p.I("s_cmp_ge_u32", S(2), 224)
    p.I("s_cbranch_scc1", "L_k5_exit")
    SM = S(6)
    p.I("s_mov_b32", SM, 0xffff0000)
    p.I("s_lshr_b32", S(4), S(2), 3); p.I("s_mul_hi_u32", S(3), S(4), 613566757); p.I("s_mul_i32", S(5), S(3), 7); p.I("s_sub_u32", S(5), S(4), S(5))
    p.I("s_and_b32", S(4), S(2), 7); p.I("s_lshl_b32", S(4), S(4), 2); p.I("s_add_u32", S(3), S(3), S(4))
    vlane = V(1); vw = V(2); vh = V(3); vt = V(4); vaa = V(5); vwa = V(6); vxa = V(7); vgb = V(8)
    p.I("v_and_b32", vlane, 63, V(0)); p.I("v_lshrrev_b32", vw, 6, V(0)); p.I("v_readfirstlane_b32", S(4), vw)
    p.I("v_lshrrev_b32", vh, 5, vlane)
    p.I("v_and_b32", vaa, 31, vlane); p.I("v_lshlrev_b32", vaa, 4, vaa); p.I("v_lshl_add_u32", vaa, vh, 15, vaa)
    p.I("v_lshlrev_b32", vwa, 4, vlane)
    p.I("v_lshrrev_b32", vt, 3, vlane); p.I("v_lshlrev_b32", vxa, 12, vt); p.I("v_and_b32", vt, 7, vlane); p.I("v_lshl_add_u32", vxa, vt, 4, vxa)
    p.I("v_lshrrev_b32", vgb, 4, vlane); p.I("v_lshlrev_b32", vgb, 5, vgb)
    p.I("s_mul_i32", S(7), S(4), 28 * 65536); p.I("s_lshl_b32", S(8), S(3), 10); p.I("s_add_u32", S(7), S(7), S(8)); p.I("s_add_u32", S(7), S(7), WS_ACT)
    p.I("s_mul_i32", S(8), S(5), 229376); p.I("s_mul_i32", S(9), S(4), 28 * 2048); p.I("s_add_u32", S(8), S(8), S(9)); p.I("s_add_u32", S(8), S(8), WS_WD)
    p.I("s_lshl_b32", S(9), S(5), 18); p.I("s_lshl_b32", S(10), S(4), 16); p.I("s_add_u32", S(9), S(9), S(10)); p.I("s_lshl_b32", S(10), S(3), 7)
    p.I("s_add_u32", S(9), S(9), S(10)); p.I("s_add_u32", S(9), S(9), WS_X1)
    p.I("s_lshl_b32", S(10), S(4), 11); p.I("s_add_u32", S(10), S(10), K5_XT)
    p.I("s_lshl_b32", S(11), S(5), 8); p.I("s_add_u32", S(11), S(11), WS_MOD + 5 * D * 4)
    for i in range(64): p.I("v_accvgpr_write_b32", A(i), 0)
    p.I("s_waitcnt", "lgkmcnt(0)")
    sws = srd(p, 52, P_WS, WS_SIZE); so = srd(p, 48, P_OUT, ARR)
    stamp(p, 1, False)
    NB = 13; LA = 12
    BUF = [V(40 + 16 * b, 16) for b in range(NB)]
    ACC = [[A(32 * dl + 16 * th, 16) for th in range(2)] for dl in range(2)]
    tk = {}
    def issue(n):
        bf_ = BUF[n % NB]
        p.I("s_add_u32", S(12), S(7), n * 65536); p.I("s_add_u32", S(13), S(8), n * 2048)
        p.I("buffer_load_dwordx4", bf_[0:4], vwa, sws, S(13), mods="offen")
        p.I("buffer_load_dwordx4", bf_[8:12], vaa, sws, S(12), mods="offen " + K5_LD)
        t1 = p.I("buffer_load_dwordx4", bf_[12:16], vaa, sws, S(12), mods="offen offset:512 " + K5_LD)
        t2 = p.I("buffer_load_dwordx4", bf_[4:8], vwa, sws, S(13), mods="offen offset:1024")
        tk[n] = (t1, t2)
    for n in range(LA): issue(n)
    stamp(p, 2, False)
    GB = [[V(10 + 16 * og + 8 * pp, 8) for pp in range(2)] for og in range(2)]
    GB = [[A(64 + 16 * og + 8 * pp, 8) for pp in range(2)] for og in range(2)]
    tgb = None
    for n in range(28):
        bf_ = BUF[n % NB]
        p.wait_vm(tk[n][0])
        if n == 0: stamp(p, 3, False)
        p.I("v_mfma_f32_32x32x16_bf16", ACC[0][0], bf_[0:4], bf_[8:12], ACC[0][0])
        p.I("v_mfma_f32_32x32x16_bf16", ACC[0][1], bf_[0:4], bf_[12:16], ACC[0][1])
        p.wait_vm(tk[n][1])
        p.I("v_mfma_f32_32x32x16_bf16", ACC[1][0], bf_[4:8], bf_[8:12], ACC[1][0])
        p.I("v_mfma_f32_32x32x16_bf16", ACC[1][1], bf_[4:8], bf_[12:16], ACC[1][1])
        if n + LA < 28: issue(n + LA)
        if n == 16:
            for i in range(2):
                p.I("s_add_u32", M0, S(10), i * 1024); p.I("s_add_u32", S(12), S(9), i * 32768)
                p.I("buffer_load_dwordx4", vxa, sws, S(12), mods="offen lds")
            for og in range(2):
                for pp in range(2):
                    p.I("s_add_u32", S(12), S(11), pp * MODP)
                    for k_ in range(2):
                        tgb = p.I("buffer_load_dwordx4", GB[og][pp][4 * k_:4 * k_ + 4], vgb, sws, S(12), mods=f"offen offset:{128*og + 16*k_}")
    stamp(p, 4)
    vpw = V(9)
    p.I("v_and_b32", vt, 31, vlane); p.I("v_mul_u32_u24", vpw, 272, vt); p.I("v_lshl_add_u32", vpw, vh, 4, vpw)
    p.I("s_mul_i32", S(12), S(4), K5_PR); p.I("v_add_u32", vpw, S(12), vpw)
    for dl in range(2):
        for th in range(2):
            for j in range(4):
                p.I("ds_write_b128", vpw, ACC[dl][th][4 * j:4 * j + 4], mods=f"offset:{th*32*272 + dl*128 + j*32}")
    vq = V(10); vtk = V(11); vpr = V(12); vxr = V(13); voo = V(14)
    p.I("v_lshrrev_b32", vq, 4, vlane); p.I("v_and_b32", vtk, 15, vlane); p.I("s_lshl_b32", S(12), S(4), 4); p.I("v_add_u32", vtk, S(12), vtk)
    p.I("v_mul_u32_u24", vpr, 272, vtk); p.I("v_lshl_add_u32", vpr, vq, 5, vpr)
    p.I("v_bfe_u32", vt, vlane, 2, 2); p.I("v_lshl_add_u32", vt, vq, 3, vt); p.I("v_lshlrev_b32", vxr, 7, vt)
    p.I("v_and_b32", vt, 3, vlane); p.I("v_lshl_add_u32", vxr, vt, 3, vxr); p.I("s_lshl_b32", S(12), S(4), 5); p.I("s_add_u32", S(12), S(12), K5_XT); p.I("v_add_u32", vxr, S(12), vxr)
    p.I("v_mul_u32_u24", voo, ROWB, vtk); p.I("v_lshl_add_u32", voo, vq, 4, voo)
    p.I("s_mul_i32", S(12), S(3), 64 * ROWB); p.I("s_lshl_b32", S(13), S(5), 7); p.I("s_add_u32", S(12), S(12), S(13))
    G = [V(16 + 8 * og, 8) for og in range(2)]; TM = V(32, 4); G2 = V(40, 8)
    p.wait_vm(tgb)
    for og in range(2):
        for j in range(8): p.I("v_accvgpr_read_b32", G[og][j], GB[og][0][j]); p.I("v_accvgpr_read_b32", G2[j], GB[og][1][j])
        for j in range(8): p.I("v_add_f32", G[og][j], G[og][j], G2[j])
        for j in range(4): p.I("v_cvt_pk_bf16_f32", TM[j], G[og][2 * j], G[og][2 * j + 1])
        for j in range(4): unpack(p, G[og][2 * j:2 * j + 2], TM[j], SM)
    p.wait_lg0()
    p.I("s_barrier")
    stamp(p, 5)
    for og in range(2):
        PPs = [V(48 + 40 * og + 8 * w, 8) for w in range(4)]; XR = V(80 + 40 * og, 4); XF = V(128 + 8 * og, 8)
        tx = [p.I("ds_read_b64_tr_b16", XR[2 * s_:2 * s_ + 2], vxr, mods=f"offset:{4096*og + 512*s_}") for s_ in range(2)]
        tp = [p.I("ds_read_b128", PPs[w][4 * k_:4 * k_ + 4], vpr, mods=f"offset:{w*K5_PR + 128*og + 16*k_}") for w in range(4) for k_ in range(2)]
        p.wait_lg(tx[-1])
        for j in range(4): unpack(p, XF[2 * j:2 * j + 2], XR[j], SM)
        p.wait_lg(tp[3])
        for j in range(8): p.I("v_add_f32", PPs[0][j], PPs[0][j], PPs[1][j])
        p.wait_lg(tp[7])
        for j in range(8): p.I("v_add_f32", PPs[2][j], PPs[2][j], PPs[3][j])
        Y = PPs[0]
        for j in range(8): p.I("v_add_f32", Y[j], Y[j], PPs[2][j])
        for j in range(4): p.I("v_cvt_pk_bf16_f32", TM[j], Y[2 * j], Y[2 * j + 1])
        for j in range(4): unpack(p, Y[2 * j:2 * j + 2], TM[j], SM)
        for j in range(8): p.I("v_mul_f32", Y[j], Y[j], G[og][j])
        for j in range(4): p.I("v_cvt_pk_bf16_f32", TM[j], Y[2 * j], Y[2 * j + 1])
        for j in range(4): unpack(p, Y[2 * j:2 * j + 2], TM[j], SM)
        for j in range(8): p.I("v_add_f32", Y[j], Y[j], XF[j])
        O = PPs[1][0:4]
        for j in range(4): p.I("v_cvt_pk_bf16_f32", O[j], Y[2 * j], Y[2 * j + 1])
        p.I("buffer_store_dwordx4", O, voo, so, S(12), mods=f"offen offset:{64*og}")
    stamp(p, 6)
    stamp_out(p, 7, sws, 3)
    p.label("L_k5_exit")
    p.I("s_endpgm")
    return p

HEADER = open("adaLN_cond__ssm_conv_h3__swiglu_ffn__prompt.s.ref").read().split("; Override")[0]

def build(kernels):
    s = HEADER
    for name, p, grid, block, lds in kernels:
        s += f"; @launch kernel={name} grid=({grid},1,1) block=({block},1,1) lds={lds}\n"
    s += '.amdgcn_target "amdgcn-amd-amdhsa--gfx950"\n.text\n'
    for name, p, grid, block, lds in kernels:
        s += kernel_header(name) + p.finalize()
        s += kernel_desc(name, p.maxv + 1, p.maxa + 1, max(p.maxs + 1, 16))
    return s

if __name__ == "__main__":
    ks = [("k1_kernel", gen_k1(), NMOD + NTR + NST, 256, 16384), ("k2_kernel", gen_k2(), NCONV, 512, K2_LDS),
          ("k4_kernel", gen_k4(), 256, 512, K4_LDS),
          ("k5_kernel", gen_k5(), 224, 256, K5_LDS)]
    for i in range(int(os.environ.get('EXTRA', '0'))):
        pe = Prog(); pe.I("v_mov_b32", V(1), 0); pe.I("s_endpgm"); ks.append((f"e{i}_kernel", pe, 256, 256, 0))
    open(sys.argv[1] if len(sys.argv) > 1 else "out.s", "w").write(build(ks))
```

```python
import sys, os
from asmgen import *

S_TOK = 2048; D = 448; F = 1792
ROWB = D * 2
TBB = D * 16
ARR = S_TOK * D * 2
WS_KV = 0x000000
WS_X = 0x200000
WS_X1 = 0x400000
X1P = 4096 + 256
ACP = 32768 + 1024
WS_ST1 = 0x600000
WS_MOD = 0x610000
MODP = 2688 * 4
WS_CS = 0x620000
WS_BI = 0x640000
WS_ACT = 0x800000
WS_WP = 0x1000000
WS_WD = 0x1400000
WS_SIZE = 0x1400000 + 1792 * 448 * 2
ST_WT = os.environ.get('ST_WT', 'sc1')

P_Q, P_K, P_V, P_SH, P_SK, P_SD, P_BX, P_WG, P_WU, P_WD, P_C, P_WM, P_OUT, P_DBG, P_WS = [16 + 2 * i for i in range(15)]

STAMP = int(os.environ.get('STAMP', '0'))
WS_DBG = 0x700000
def stamp(p, k, wait=True):
    if not STAMP: return
    p.I("s_memtime", S(76 + 2 * k, 2))
    if wait:
        p.I("s_waitcnt", "lgkmcnt(0)"); p.lg_done = p.lg_issued
def stamp_out(p, n, sws, kern):
    if not STAMP: return
    for k in range(n): p.I("v_mov_b32", V(8 + k), S(76 + 2 * k))
    for k in range(n, 8): p.I("v_mov_b32", V(8 + k), 0)
    p.I("v_lshrrev_b32", V(16), 6, V(0)); p.I("v_lshlrev_b32", V(16), 5, V(16))
    p.I("s_lshl_b32", S(74), S(2), 8); p.I("s_add_u32", S(74), S(74), WS_DBG + kern * 0x20000)
    p.I("v_and_b32", V(17), 63, V(0)); p.I("v_cmp_eq_u32", VCC, 0, V(17))
    p.I("s_and_saveexec_b64", S(72, 2), VCC)
    p.I("buffer_store_dwordx4", V(8, 4), V(16), sws, S(74), mods="offen")
    p.I("buffer_store_dwordx4", V(12, 4), V(16), sws, S(74), mods="offen offset:16")
    p.I("s_mov_b64", EXEC, S(72, 2))

STAMP_GROUPS = {0: [(0, 88), (88, 216), (216, 440)], 1: [(0, 224)], 2: [(0, 256)], 3: [(0, 224)]}
def load_kernargs(p):
    p.I("s_load_dwordx16", S(16, 16), S(0, 2), 0)
    p.I("s_load_dwordx8", S(32, 8), S(0, 2), 64)
    p.I("s_load_dwordx4", S(40, 4), S(0, 2), 96)
    p.I("s_load_dwordx2", S(44, 2), S(0, 2), 112)

def srd(p, dst, ptr, size, off=0):
    if isinstance(off, int) and off == 0:
        p.I("s_mov_b32", S(dst), S(ptr)); p.I("s_mov_b32", S(dst + 1), S(ptr + 1))
    else:
        p.I("s_add_u32", S(dst), S(ptr), off); p.I("s_addc_u32", S(dst + 1), S(ptr + 1), 0)
    p.I("s_mov_b32", S(dst + 2), size); p.I("s_mov_b32", S(dst + 3), 0x20000)
    return S(dst, 4)

def unpack(p, dst_pair, src, smask):
    p.I("v_lshlrev_b32", dst_pair[0], 16, src)
    p.I("v_and_b32", dst_pair[1], smask, src)

def rnd_pair(p, pair, tmp, smask):
    p.I("v_cvt_pk_bf16_f32", tmp, pair[0], pair[1])
    unpack(p, pair, tmp, smask)

def rnd1(p, r, smask=None):
    p.I("v_cvt_pk_bf16_f32", r, r, r)
    p.I("v_lshlrev_b32", r, 16, r)

def xrow_sum(p, x, t):
    p.I("v_mov_b32", t, x); p.I("v_permlane16_swap_b32", t, x); p.I("v_add_f32", x, x, t)
    p.I("v_mov_b32", t, x); p.I("v_permlane32_swap_b32", t, x); p.I("v_add_f32", x, x, t)

def wave_sum_multi(p, xs, ts):
    for m in ("quad_perm:[1,0,3,2]", "quad_perm:[2,3,0,1]", "row_half_mirror", "row_mirror"):
        for x in xs:
            p.I("v_add_f32_dpp", x, x, x, mods=m + " row_mask:0xf bank_mask:0xf")
    for swap in ("v_permlane16_swap_b32", "v_permlane32_swap_b32"):
        for x, t in zip(xs, ts): p.I("v_mov_b32", t, x)
        for x, t in zip(xs, ts): p.I(swap, t, x)
        for x, t in zip(xs, ts): p.I("v_add_f32", x, x, t)

def gemv64(p, wsrd, rowbytes, colbyte_s, ncoef, coef_fn, out_fn, tag, swsx, fl=''):
    SM = S(6)
    stamp(p, 1, False)
    p.I("s_mov_b32", SM, 0xffff0000)
    vco = V(1); vrg = V(2); voff = V(3)
    p.I("v_and_b32", vco, 7, V(0))
    p.I("v_lshrrev_b32", vrg, 3, V(0))
    p.I("s_mov_b32", S(7), rowbytes)
    p.I("v_mul_lo_u32", voff, vrg, S(7))
    p.I("v_lshl_add_u32", voff, vco, 4, voff)
    W = [V(8 + 4 * i, 4) for i in range(7)]
    tk = []
    tc = coef_fn[0](p, vrg)
    for i in range(7):
        p.I("s_add_u32", S(8), colbyte_s, i * 32 * rowbytes)
        tk.append(p.I("buffer_load_dwordx4", W[i], voff, wsrd, S(8), mods="offen " + fl))
    coefs = coef_fn[1](p, tc)
    stamp(p, 2, False)
    ACC = [V(108 + 8 * c, 8) for c in range(ncoef)]
    for c in range(ncoef):
        for j in range(8): p.I("v_mov_b32", ACC[c][j], 0)
    for i in range(7):
        U = V(124 + 8 * (i & 1), 8)
        p.wait_vm(tk[i])
        for j in range(4): unpack(p, U[2 * j:2 * j + 2], W[i][j], SM)
        for c in range(ncoef):
            for j in range(8):
                p.I("v_fmac_f32", ACC[c][j], coefs[c][i], U[j])
    stamp(p, 3, False)
    allacc = [ACC[c][j] for c in range(ncoef) for j in range(8)]
    for x in allacc:
        p.I("v_add_f32_dpp", x, x, x, mods="row_ror:8 row_mask:0xf bank_mask:0xf")
    T = [V(8 + i) for i in range(len(allacc))]
    for swap in ("v_permlane16_swap_b32", "v_permlane32_swap_b32"):
        for x, t in zip(allacc, T): p.I("v_mov_b32", t, x)
        for x, t in zip(allacc, T): p.I(swap, t, x)
        for x, t in zip(allacc, T): p.I("v_add_f32", x, x, t)
    vw = V(4); va = V(5)
    p.I("v_lshrrev_b32", vw, 6, V(0))
    p.I("v_lshlrev_b32", va, 8, vw)
    p.I("v_lshl_add_u32", va, vco, 5, va)
    p.I("v_and_b32", V(6), 63, V(0))
    p.I("v_cmp_gt_u32", VCC, 8, V(6))
    p.I("s_and_saveexec_b64", S(10, 2), VCC)
    for c in range(ncoef):
        p.I("ds_write_b128", va, ACC[c][0:4], mods=f"offset:{c*1024}")
        p.I("ds_write_b128", va, ACC[c][4:8], mods=f"offset:{c*1024+16}")
    p.I("s_mov_b64", EXEC, S(10, 2))
    p.wait_lg0()
    p.I("s_barrier")
    stamp(p, 4)
    stamp_out(p, 5, swsx, 0 if tag == "k1mod" else 1)
    p.I("v_readfirstlane_b32", S(10), vw)
    p.I("s_cmp_lg_u32", S(10), 0)
    p.I("s_cbranch_scc1", f"L_{tag}_done")
    p.I("v_lshlrev_b32", va, 2, V(0))
    res = []
    for c in range(ncoef):
        Rr = V(8 + 4 * c, 4)
        for w in range(4):
            p.I("ds_read_b32", Rr[w], va, mods=f"offset:{c*1024 + w*256}")
        res.append(Rr)
    p.wait_lg0()
    for c in range(ncoef):
        Rr = res[c]
        p.I("v_add_f32", Rr[0], Rr[0], Rr[1]); p.I("v_add_f32", Rr[2], Rr[2], Rr[3]); p.I("v_add_f32", Rr[0], Rr[0], Rr[2])
    out_fn(p, [r[0] for r in res], va)
    p.label(f"L_{tag}_done")
    p.I("s_endpgm")

NMOD = 88; NTR = 224; NST = 128
NT_IN = os.environ.get('NT_IN', 'nt')
def gen_k1():
    p = Prog()
    load_kernargs(p)
    stamp(p, 0, False)
    p.I("s_cmp_lt_u32", S(2), NMOD)
    p.I("s_cbranch_scc1", "L_k1_mod")
    p.I("s_sub_u32", S(3), S(2), NMOD)
    p.I("s_cmp_lt_u32", S(3), NST)
    p.I("s_cbranch_scc1", "L_k1_stats")
    p.I("s_sub_u32", S(3), S(3), NST)
    p.I("s_cmp_ge_u32", S(3), NTR)
    p.I("s_cbranch_scc1", "L_k1_exit")
    p.I("s_mul_hi_u32", S(4), S(3), 613566757)
    p.I("s_mul_i32", S(5), S(4), 7); p.I("s_sub_u32", S(5), S(3), S(5))
    SM = S(6)
    p.I("s_mov_b32", SM, 0xffff0000)
    p.I("s_mul_i32", S(7), S(4), 64 * ROWB); p.I("s_lshl_b32", S(8), S(5), 7); p.I("s_add_u32", S(7), S(7), S(8))
    vo = V(1); vo2 = V(2); voh = V(3); vsh = V(4); vcp = V(5); vtg = V(6)
    p.I("v_and_b32", vcp, 31, V(0)); p.I("v_lshrrev_b32", vtg, 5, V(0))
    p.I("v_mul_u32_u24", vo, 8 * ROWB, vtg); p.I("v_lshl_add_u32", vo, vcp, 2, vo); p.I("v_add_u32", vo, S(7), vo)
    p.I("v_add_u32", vo2, 4480, vo)
    p.I("v_subrev_u32", voh, 2688, vo)
    p.I("s_lshl_b32", S(8), S(5), 9)
    p.I("v_lshl_add_u32", vsh, vcp, 4, S(8))
    p.I("s_waitcnt", "lgkmcnt(0)")
    sq = srd(p, 48, P_Q, ARR); sk = srd(p, 52, P_K, ARR); sv = srd(p, 56, P_V, ARR)
    ssh = srd(p, 60, P_SH, D * 8); sws = srd(p, 64, P_WS, WS_SIZE)
    stamp(p, 1, False)
    KR = [V(8 + j) for j in range(11)]
    VR = [V(20 + j) for j in range(8)]
    QR = [V(28 + j) for j in range(8)]
    SH = V(36, 4)
    def rowload(dst, srdx, j, fl):
        if j < 5: return p.I("buffer_load_dword", dst, vo, srdx, 0, mods=f"offen offset:{j*896} {fl}")
        return p.I("buffer_load_dword", dst, vo2, srdx, 0, mods=f"offen offset:{(j-5)*896} {fl}")
    tsh = p.I("buffer_load_dwordx4", SH, vsh, ssh, 0, mods="offen")
    tk = []
    for j in range(3): tk.append(p.I("buffer_load_dword", KR[j], voh, sk, 0, mods=f"offen offset:{j*896} {NT_IN}"))
    for j in range(8): tk.append(rowload(KR[3 + j], sk, j, NT_IN))
    tv = [rowload(VR[j], sv, j, NT_IN) for j in range(8)]
    tq = [rowload(QR[j], sq, j, "") for j in range(8)]
    vlw = V(40); vlr = V(41); vgo = V(42); vt = V(43)
    p.I("v_and_b32", vt, 7, vcp); p.I("v_xor_b32", vt, vt, vtg)
    p.I("v_lshlrev_b32", vlw, 8, vcp); p.I("v_lshl_add_u32", vlw, vt, 4, vlw)
    p.I("v_lshrrev_b32", vt, 4, V(0)); p.I("v_xor_b32", vt, vt, V(0)); p.I("v_and_b32", vt, 7, vt)
    p.I("v_lshrrev_b32", vlr, 3, V(0)); p.I("v_lshlrev_b32", vgo, 12, vlr)
    p.I("v_lshlrev_b32", vlr, 7, vlr); p.I("v_lshl_add_u32", vlr, vt, 4, vlr)
    p.I("v_and_b32", vt, 7, V(0)); p.I("v_lshl_add_u32", vgo, vt, 4, vgo)
    p.I("s_lshl_b32", S(7), S(5), 18); p.I("s_lshl_b32", S(8), S(4), 7); p.I("s_add_u32", S(7), S(7), S(8))
    stamp(p, 2, False)
    Wt = [V(48 + 2 * t, 2) for t in range(4)]
    p.wait_vm(tsh)
    p.I("v_lshlrev_b32", Wt[0][0], 16, SH[0]); p.I("v_and_b32", Wt[1][0], SM, SH[0])
    p.I("v_lshlrev_b32", Wt[2][0], 16, SH[1]); p.I("v_and_b32", Wt[3][0], SM, SH[1])
    p.I("v_lshlrev_b32", Wt[0][1], 16, SH[2]); p.I("v_and_b32", Wt[1][1], SM, SH[2])
    p.I("v_lshlrev_b32", Wt[2][1], 16, SH[3]); p.I("v_and_b32", Wt[3][1], SM, SH[3])
    KF = [V(56 + 2 * j, 2) for j in range(11)]
    p.wait_vm(tk[-1])
    stamp(p, 3, False)
    for j in range(11): unpack(p, KF[j], KR[j], SM)
    ACC = [V(78 + 2 * s, 2) for s in range(8)]
    PR = [V(94 + 2 * s, 2) for s in range(8)]
    TM = [V(110 + s) for s in range(8)]
    for s in range(8): p.I("v_pk_mul_f32", ACC[s], KF[s], Wt[3])
    for s in range(8): p.I("v_cvt_pk_bf16_f32", TM[s], ACC[s][0], ACC[s][1])
    for s in range(8): unpack(p, ACC[s], TM[s], SM)
    for step in (1, 2, 3):
        for s in range(8): p.I("v_pk_mul_f32", PR[s], KF[s + step], Wt[3 - step])
        for s in range(8): p.I("v_cvt_pk_bf16_f32", TM[s], PR[s][0], PR[s][1])
        for s in range(8): unpack(p, PR[s], TM[s], SM)
        for s in range(8): p.I("v_pk_add_f32", ACC[s], ACC[s], PR[s])
        for s in range(8): p.I("v_cvt_pk_bf16_f32", TM[s], ACC[s][0], ACC[s][1])
        for s in range(8): unpack(p, ACC[s], TM[s], SM)
    stamp(p, 4, False)
    p.wait_vm(tv[-1])
    for s in range(8): unpack(p, PR[s], VR[s], SM)
    for s in range(8): p.I("v_pk_mul_f32", ACC[s], ACC[s], PR[s])
    G = [V(8, 4), V(12, 4)]
    for ch in range(2):
        for e2 in range(4):
            p.I("v_cvt_pk_bf16_f32", G[ch][e2], ACC[7 - 2 * e2][ch], ACC[6 - 2 * e2][ch])
    p.I("ds_write_b128", vlw, G[0]); p.I("ds_write_b128", vlw, G[1], mods="offset:128")
    p.I("s_mov_b32", S(9), 0x05040100); p.I("s_mov_b32", S(10), 0x07060302)
    XG = [V(20, 4), V(24, 4)]
    p.wait_vm(tq[-1])
    for e2 in range(4):
        p.I("v_perm_b32", XG[0][e2], QR[2 * e2 + 1], QR[2 * e2], S(9))
        p.I("v_perm_b32", XG[1][e2], QR[2 * e2 + 1], QR[2 * e2], S(10))
    p.I("ds_write_b128", vlw, XG[0], mods="offset:8192"); p.I("ds_write_b128", vlw, XG[1], mods="offset:8320")
    p.wait_lg0()
    stamp(p, 5)
    p.I("s_barrier")
    O = [V(56 + 4 * i, 4) for i in range(4)]
    to = [p.I("ds_read_b128", O[i], vlr, mods=f"offset:{4096*i}") for i in range(4)]
    for i in range(4):
        p.I("s_add_u32", S(8), S(7), (WS_X if i >= 2 else WS_KV) + (i & 1) * 32 * 4096)
        p.wait_lg(to[i])
        p.I("buffer_store_dwordx4", O[i], vgo, sws, S(8), mods="offen")
    stamp(p, 6)
    if STAMP:
        p.wait_vm0(); stamp(p, 7)
    stamp_out(p, 8, sws, 0)
    p.I("s_endpgm")
    p.label("L_k1_stats")
    p.reset_counters()
    SM = S(6)
    p.I("s_mov_b32", SM, 0xffff0000)
    vlane = V(6); vst = V(5)
    p.I("v_and_b32", vlane, 63, V(0))
    p.I("v_lshrrev_b32", vst, 6, V(0))
    p.I("v_mul_u32_u24", vst, 4 * ROWB, vst)
    p.I("v_lshl_add_u32", vst, vlane, 4, vst)
    p.I("s_mul_i32", S(4), S(3), 16 * ROWB)
    p.I("v_cmp_gt_u32", S(14, 2), 56, vlane)
    p.I("s_mov_b64", S(10, 2), EXEC)
    p.I("s_waitcnt", "lgkmcnt(0)")
    sq = srd(p, 48, P_Q, ARR); sws = srd(p, 64, P_WS, WS_SIZE)
    stamp(p, 1, False)
    XS = [V(8 + 4 * i, 4) for i in range(4)]
    SU = [V(24 + i) for i in range(4)]; TT = [V(28 + i) for i in range(4)]; VA = [V(32 + i) for i in range(4)]
    for i in range(4): p.I("v_mov_b32", SU[i], 0); p.I("v_mov_b32", VA[i], 0)
    p.I("s_mov_b32", S(7), 0x3f803f80)
    p.I("s_mov_b64", EXEC, S(14, 2))
    tx = [p.I("buffer_load_dwordx4", XS[i], vst, sq, S(4), mods=f"offen offset:{i*896}") for i in range(4)]
    for i in range(4):
        p.wait_vm(tx[i])
        for j in range(4): p.I("v_dot2_f32_bf16", SU[i], XS[i][j], S(7), SU[i])
    stamp(p, 2, False)
    p.I("s_mov_b64", EXEC, S(10, 2))
    wave_sum_multi(p, SU, TT)
    p.I("s_mov_b32", S(8), 0x3b124925)
    for i in range(4): p.I("v_mul_f32", SU[i], S(8), SU[i])
    p.I("s_mov_b64", EXEC, S(14, 2))
    for i in range(4):
        U = V(40 + 8 * i, 8)
        for j in range(4): unpack(p, U[2 * j:2 * j + 2], XS[i][j], SM)
        for j in range(8): p.I("v_sub_f32", U[j], U[j], SU[i])
    for j in range(8):
        for i in range(4):
            U = V(40 + 8 * i, 8)
            p.I("v_fmac_f32", VA[i], U[j], U[j])
    p.I("s_mov_b64", EXEC, S(10, 2))
    wave_sum_multi(p, VA, TT)
    O = V(36, 4)
    p.I("s_mov_b32", S(9), 0x3727c5ac)
    for i in range(4): p.I("v_mul_f32", VA[i], S(8), VA[i])
    for i in range(4): rnd1(p, VA[i])
    for i in range(4): p.I("v_add_f32", VA[i], S(9), VA[i])
    for i in range(4): rnd1(p, VA[i])
    for i in range(4): p.I("v_sqrt_f32", VA[i], VA[i])
    for i in range(4): p.I("v_cvt_pk_bf16_f32", O[i], SU[i], VA[i])
    p.I("v_lshrrev_b32", V(1), 6, V(0))
    p.I("v_lshlrev_b32", V(1), 4, V(1))
    p.I("s_lshl_b32", S(4), S(3), 6)
    p.I("s_add_u32", S(4), S(4), WS_ST1)
    p.I("v_cmp_eq_u32", VCC, 0, vlane)
    p.I("s_and_saveexec_b64", S(10, 2), VCC)
    p.I("buffer_store_dwordx4", O, V(1), sws, S(4), mods="offen")
    p.I("s_mov_b64", EXEC, S(10, 2))
    stamp(p, 3)
    stamp_out(p, 4, sws, 0)
    p.label("L_k1_exit")
    p.I("s_endpgm")
    p.label("L_k1_mod")
    p.reset_counters()
    p.I("s_cmp_ge_u32", S(2), 84)
    p.I("s_cbranch_scc1", "L_k1_exit")
    p.I("s_lshr_b32", S(3), S(2), 1); p.I("s_and_b32", S(5), S(2), 1)
    p.I("s_waitcnt", "lgkmcnt(0)")
    swm = srd(p, 48, P_WM, D * 6 * D * 2); sc = srd(p, 52, P_C, D * 2); sws = srd(p, 64, P_WS, WS_SIZE)
    p.I("s_lshl_b32", S(4), S(3), 7); p.I("s_mul_i32", S(12), S(5), 224 * 6 * D * 2); p.I("s_add_u32", S(4), S(4), S(12))
    p.I("s_mul_i32", S(12), S(5), 448)
    def coef_ld(p, vrg):
        C = [V(64 + i) for i in range(7)]
        p.I("v_lshlrev_b32", V(92), 1, vrg)
        return [p.I("buffer_load_ushort", C[i], V(92), sc, S(12), mods=f"offen offset:{i*64}") for i in range(7)]
    def coef(p, t):
        C = [V(64 + i) for i in range(7)]; E = [V(78 + i) for i in range(7)]
        p.I("s_mov_b32", S(9), 0xbfb8aa3b)
        p.wait_vm(t[-1])
        for i in range(7): p.I("v_lshlrev_b32", C[i], 16, C[i])
        for i in range(7): p.I("v_mul_f32", E[i], S(9), C[i])
        for i in range(7): p.I("v_exp_f32", E[i], E[i])
        for i in range(7): p.I("v_add_f32", E[i], 1.0, E[i])
        for i in range(7): p.I("v_rcp_f32", E[i], E[i])
        for i in range(7): p.I("v_mul_f32", C[i], C[i], E[i])
        for i in range(7): rnd1(p, C[i])
        return [C]
    def outf(p, res, va):
        p.I("s_lshl_b32", S(4), S(3), 8); p.I("s_mul_i32", S(12), S(5), MODP); p.I("s_add_u32", S(4), S(4), S(12))
        p.I("s_add_u32", S(4), S(4), WS_MOD)
        p.I("buffer_store_dword", res[0], va, sws, S(4), mods="offen")
    gemv64(p, swm, 6 * D * 2, S(4), 1, (coef_ld, coef), outf, "k1mod", sws, NT_IN)
    return p

KC0 = 0; KCS = 4160; KCC = 4 * KCS
KV0 = 2 * KCC; KVC = 5120
P0 = KV0 + 2 * KVC; PS = 9216
SIDE0 = P0 + 4 * PS
HK0 = SIDE0 + 4096
K2_LDS = HK0
NCONV = 224
PKSIDE = int(os.environ.get('PKSIDE', '1'))
def k2_post(p, c, SM, sws, X, H, KVD, GA2, base):
    vr = V(base); vt = V(base + 1); PPa = V(base + 2, 8); PPb = V(base + 10, 8); TM = V(base + 18, 4)
    def pr(R_, j): return R_[2 * j:2 * j + 2]
    tp = []
    for h, PPx in enumerate((PPa, PPb)):
        for k_ in range(2):
            tp.append(p.I("ds_read_b128", PPx[4 * k_:4 * k_ + 4], vr, mods=f"offset:{(2*c+h)*PS + 16*k_}"))
    def rnd8(R_):
        for j in range(4): p.I("v_cvt_pk_bf16_f32", TM[j], R_[2 * j], R_[2 * j + 1])
        for j in range(4): unpack(p, pr(R_, j), TM[j], SM)
    Y = PPa
    p.wait_lg(tp[-1])
    for j in range(4): p.I("v_pk_add_f32", pr(Y, j), pr(PPa, j), pr(PPb, j))
    rnd8(Y)
    for j in range(4): p.I("v_pk_add_f32", pr(Y, j), pr(Y, j), pr(KVD, j))
    rnd8(Y)
    for j in range(4): p.I("v_pk_mul_f32", pr(Y, j), pr(Y, j), pr(H, j))
    rnd8(Y)
    for j in range(4): p.I("v_pk_mul_f32", pr(Y, j), pr(Y, j), GA2)
    rnd8(Y)
    for j in range(4): p.I("v_pk_add_f32", pr(Y, j), pr(Y, j), pr(X, j))
    for j in range(4): p.I("v_cvt_pk_bf16_f32", TM[j], Y[2 * j], Y[2 * j + 1])
    p.I("buffer_store_dwordx4", TM, vt, sws, S(12), mods="offen")

def k2_post_addr(p, c, base, vtid):
    vr = V(base); vt = V(base + 1)
    p.I("v_lshrrev_b32", vr, 2, vtid); p.I("v_lshlrev_b32", vr, 4, vr); p.I("v_lshl_add_u32", vr, vtid, 5, vr); p.I("v_add_u32", vr, P0, vr)
    p.I("v_lshlrev_b32", vt, 4, vtid)
    p.I("s_mul_i32", S(12), S(3), 2 * X1P); p.I("s_add_u32", S(12), S(12), WS_X1 + c * X1P)

def k2_pre_ops(SM, XG, SPk, KG, X, H, KVD, M_, R_, TM, ca1, sa, dd):
    L = []
    def F_(*a, **k): L.append((a, k))
    for j in range(4): F_("v_lshlrev_b32", X[2 * j], 16, XG[j]); F_("v_and_b32", X[2 * j + 1], SM, XG[j])
    for i in range(8): F_("v_and_b32", R_[i], SM, SPk[i]); F_("v_lshlrev_b32", M_[i], 16, SPk[i])
    for i in range(8): F_("v_rcp_f32", R_[i], R_[i]); F_("v_sub_f32", H[i], X[i], M_[i])
    def rnd(R__):
        for j in range(4): F_("v_cvt_pk_bf16_f32", TM[j], R__[2 * j], R__[2 * j + 1])
        for j in range(4): F_("v_lshlrev_b32", R__[2 * j], 16, TM[j]); F_("v_and_b32", R__[2 * j + 1], SM, TM[j])
    rnd(H)
    for i in range(8): F_("v_mul_f32", H[i], H[i], R_[i])
    rnd(H)
    for i in range(8): F_("v_mul_f32", H[i], H[i], ca1)
    rnd(H)
    for i in range(8): F_("v_add_f32", H[i], H[i], sa)
    rnd(H)
    F_("KGWAIT")
    for e2 in range(4): F_("v_lshlrev_b32", KVD[7 - 2 * e2], 16, KG[e2]); F_("v_and_b32", KVD[6 - 2 * e2], SM, KG[e2])
    for i in range(8): F_("v_mul_f32", KVD[i], KVD[i], dd)
    rnd(KVD)
    return L

def k2_consts(p, SM, c, ca1, sa, dd, GA2, tmp):
    P_ = V(ca1.n, 2)
    p.I("v_mov_b32", ca1, S(61)); p.I("v_mov_b32", sa, S(60)); p.I("v_mov_b32", GA2[0], S(62))
    p.I("v_add_f32", ca1, S(64), ca1); p.I("v_add_f32", sa, S(63), sa); p.I("v_add_f32", GA2[0], S(65), GA2[0])
    rnd_pair(p, P_, tmp, SM); rnd1(p, GA2[0]); p.I("v_mov_b32", GA2[1], GA2[0])
    p.I("v_add_f32", ca1, 1.0, ca1); rnd1(p, ca1)
    p.I("v_mov_b32", dd, S(66))
    if c == 0: p.I("v_lshlrev_b32", dd, 16, dd)
    else: p.I("v_and_b32", dd, SM, dd)

def k2_const_loads(p, c):
    p.I("s_add_u32", S(98), S(P_WS), S(9)); p.I("s_addc_u32", S(99), S(P_WS + 1), 0)
    for i in range(3):
        p.I("s_load_dword", S(60 + i), S(98, 2), i * D * 4 + 4 * c); p.I("s_load_dword", S(63 + i), S(98, 2), MODP + i * D * 4 + 4 * c)
    p.I("s_lshl_b32", S(9), S(3), 2)
    p.I("s_add_u32", S(58), S(P_SD), S(9)); p.I("s_addc_u32", S(59), S(P_SD + 1), 0)
    p.I("s_load_dword", S(66), S(58, 2), 0)

def k2_kvaddr(p, vk, vt, vtid, c):
    p.I("v_and_b32", vk, 3, vtid); p.I("v_lshlrev_b32", vk, 8, vk)
    p.I("v_bfe_u32", vt, vtid, 2, 4); p.I("v_lshl_add_u32", vk, vt, 4, vk)
    p.I("v_lshrrev_b32", vt, 6, vtid); p.I("v_lshl_add_u32", vk, vt, 10, vk)

def gen_k2():
    p = Prog()
    load_kernargs(p)
    stamp(p, 0, False)
    p.I("s_cmp_ge_u32", S(2), NCONV)
    p.I("s_cbranch_scc1", "L_k2_exit")
    SM = S(6)
    p.I("s_mov_b32", SM, 0xffff0000)
    p.I("s_and_b32", S(3), S(2), 7); p.I("s_mul_i32", S(3), S(3), 28); p.I("s_lshr_b32", S(4), S(2), 3)
    p.I("s_add_u32", S(3), S(3), S(4))
    vlane = V(1); vw = V(2)
    p.I("v_and_b32", vlane, 63, V(0))
    p.I("v_lshrrev_b32", vw, 6, V(0))
    p.I("v_readfirstlane_b32", S(4), vw)
    p.I("s_lshl_b32", S(9), S(3), 3); p.I("s_add_u32", S(9), S(9), WS_MOD)
    p.I("s_cmp_ge_u32", S(4), 4)
    p.I("s_cbranch_scc1", "L_k2_side")
    p.I("s_lshr_b32", S(5), S(4), 1)
    p.I("s_and_b32", S(7), S(4), 1)
    p.I("s_lshl_b32", S(8), S(3), 1); p.I("s_add_u32", S(8), S(8), S(5))
    p.I("s_lshl_b32", S(10), S(8), 12)
    KW = [V(88 + 6 * i, 6) for i in range(2)]
    vkl = V(3); vd = V(32); vd2 = V(33); vxo = V(6)
    p.I("s_lshl_b32", S(12), S(7), 11)
    p.I("v_lshl_add_u32", vkl, vlane, 4, S(12))
    p.I("v_and_b32", vd, 15, vlane); p.I("v_lshlrev_b32", vd, 6, vd)
    p.I("v_lshrrev_b32", vd2, 4, vlane); p.I("v_lshl_add_u32", vd, vd2, 4, vd)
    p.I("s_add_u32", S(13), S(12), S(10))
    p.I("s_mul_i32", S(14), S(5), KVC); p.I("s_add_u32", S(14), S(14), KV0)
    p.I("s_add_u32", S(15), S(12), S(14))
    p.I("s_lshl_b32", S(11), S(3), 13); p.I("s_add_u32", S(11), S(11), WS_X + 4096)
    p.I("v_lshlrev_b32", vxo, 4, V(0))
    p.I("s_waitcnt", "lgkmcnt(0)")
    ssk = srd(p, 48, P_SK, ARR); sws = srd(p, 52, P_WS, WS_SIZE)
    stamp(p, 1, False)
    tkw = []
    for i in range(2):
        p.I("buffer_load_dwordx4", KW[i][0:4], vkl, ssk, S(10), mods=f"offen offset:{1024*i} {NT_IN}")
        tkw.append(p.I("buffer_load_dwordx2", KW[i][4:6], vkl, ssk, S(10), mods=f"offen offset:{1024*i+16} {NT_IN}"))
    for qq in range(2):
        p.I("s_add_u32", M0, S(15), 1024 + qq * 1024)
        p.I("s_add_u32", S(70), S(13), WS_KV + qq * 1024)
        tdma = p.I("buffer_load_dwordx4", vd, sws, S(70), mods="offen lds")
    XG = V(8, 4); SPk = V(16, 8); vso = V(7)
    p.I("v_lshlrev_b32", vso, 5, V(0)); p.I("s_mov_b32", S(71), WS_ST1)
    txg = p.I("buffer_load_dwordx4", XG, vxo, sws, S(11), mods="offen")
    for i in range(2): txg = p.I("buffer_load_dwordx4", SPk[4 * i:4 * i + 4], vso, sws, S(71), mods=f"offen offset:{16*i}")
    k2_const_loads(p, 1)
    stamp(p, 2, False)
    p.I("s_mul_i32", S(15), S(5), KCC)
    Z = V(36, 4); va = V(35); vb = V(40)
    for i in range(4): p.I("v_mov_b32", Z[i], 0)
    p.I("s_lshl_b32", S(12), S(7), 9); p.I("s_add_u32", S(12), S(12), S(14))
    p.I("v_lshl_add_u32", va, vlane, 4, S(12))
    p.I("v_bfe_u32", vb, vlane, 2, 2); p.I("v_mul_u32_u24", vb, KCS, vb)
    p.I("v_and_b32", V(41), 3, vlane); p.I("v_lshl_add_u32", vb, V(41), 4, vb); p.I("v_add_u32", vb, S(15), vb)
    p.I("v_cmp_gt_u32", VCC, 32, vlane)
    p.I("v_cndmask_b32", va, vb, va, VCC)
    p.I("s_lshl_b32", S(13), S(7), 4); p.I("s_sub_u32", S(13), 48, S(13))
    p.I("v_cmp_gt_u32", VCC, S(13), vlane)
    p.I("s_and_saveexec_b64", S(68, 2), VCC)
    p.I("ds_write_b128", va, Z)
    p.I("s_mov_b64", EXEC, S(68, 2))
    vA = V(42); vB = V(43); vi = V(44); vq = V(45); vt = V(46); vp = V(47); vk = V(49)
    p.I("v_and_b32", vi, 15, vlane); p.I("v_lshrrev_b32", vq, 4, vlane)
    p.I("v_add_u32", vt, 1, vi)
    p.I("v_and_b32", vA, 3, vt); p.I("v_mul_u32_u24", vA, KCS, vA)
    p.I("v_and_b32", vt, 28, vt); p.I("v_lshl_add_u32", vA, vt, 1, vA)
    p.I("v_lshlrev_b32", vt, 4, vq); p.I("v_sub_u32", vA, vA, vt)
    p.I("s_lshl_b32", S(13), S(7), 9); p.I("s_add_u32", S(12), S(15), S(13))
    p.I("s_add_u32", S(12), S(12), KC0 + 48)
    p.I("v_add_u32", vA, S(12), vA)
    VB = [V(24 + r) for r in range(8)]
    p.I("s_lshl_b32", S(12), S(7), 3); p.I("s_sub_u32", S(12), 16, S(12))
    p.I("v_lshl_add_u32", vB, vq, 8, S(14))
    p.I("v_add_u32", V(48), S(12), vi)
    for r in range(8):
        p.I("v_subrev_u32", vt, r, V(48))
        p.I("v_and_b32", VB[r], 15, vt); p.I("v_lshl_add_u32", VB[r], VB[r], 4, vB)
        p.I("v_lshrrev_b32", vt, 4, vt); p.I("v_lshl_add_u32", VB[r], vt, 10, VB[r])
    p.I("v_mul_u32_u24", vp, 144, vi); p.I("v_lshl_add_u32", vp, vq, 4, vp)
    p.I("s_mul_i32", S(12), S(4), PS); p.I("s_add_u32", S(12), S(12), P0)
    p.I("v_add_u32", vp, S(12), vp)
    k2_kvaddr(p, vk, vt, V(0), 1)
    k2_post_addr(p, 1, 120, V(0))
    vcw = V(34); FX = V(4, 2)
    p.I("v_add_u32", vcw, S(15), vkl)
    p.I("v_lshlrev_b32", vb, 4, vlane); p.I("v_sub_u32", vb, 48, vb)
    p.I("v_mul_u32_u24", va, KCS, vlane); p.I("v_add_u32", va, S(15), va)
    p.I("s_lshl_b32", S(13), S(7), 2); p.I("s_sub_u32", S(13), 4, S(13))
    p.I("v_cmp_gt_u32", S(72, 2), S(13), vlane)
    ACC = [[A(8 * j + 4 * m, 4) for m in range(2)] for j in range(4)]
    for i in range(2):
        AL = V(100 + 6 * i, 6)
        p.wait_vm(tkw[i])
        if i == 0: stamp(p, 3, False)
        o = KC0 + 64 + 1024 * i
        p.I("ds_write_b128", vcw, KW[i][0:4], mods=f"offset:{o}")
        for j in range(5): p.I("v_alignbit_b32", AL[j], KW[i][j + 1], KW[i][j], 16)
        p.I("ds_write_b128", vcw, AL[0:4], mods=f"offset:{o + KCS}")
        C2 = V(112, 4); C3 = V(116, 4)
        for j in range(4): p.I("v_mov_b32", C2[j], KW[i][j + 1])
        p.I("ds_write_b128", vcw, C2, mods=f"offset:{o + 2*KCS}")
        for j in range(4): p.I("v_mov_b32", C3[j], AL[j + 1])
        p.I("ds_write_b128", vcw, C3, mods=f"offset:{o + 3*KCS}")
    p.I("v_readfirstlane_b32", S(70), KW[0][0]); p.I("v_readfirstlane_b32", S(71), KW[0][1])
    p.I("v_mov_b32", FX[0], S(70)); p.I("v_mov_b32", FX[1], S(71))
    p.I("v_lshlrev_b64", FX, vb, FX)
    p.I("v_lshlrev_b64", FX, 16, FX)
    p.I("s_mov_b64", EXEC, S(72, 2))
    p.I("ds_write_b64", va, FX, mods="offset:56")
    p.I("s_mov_b64", EXEC, S(68, 2))
    stamp(p, 4, False)
    p.I("s_waitcnt", "lgkmcnt(0)"); p.lg_done = p.lg_issued
    ca1 = V(50); sa = V(51); dd = V(52); GA2 = V(12, 2)
    k2_consts(p, SM, 1, ca1, sa, dd, GA2, V(53))
    X = V(144, 8); H = V(152, 8); KVD = V(160, 8); M_ = V(168, 8); R_ = V(176, 8); TMf = V(184, 4); KG = V(188, 4)
    fill = k2_pre_ops(SM, XG, SPk, KG, X, H, KVD, M_, R_, TMf, ca1, sa, dd)
    p.wait_vm(tdma)
    stamp(p, 5)
    p.I("s_barrier")
    stamp(p, 6)
    BB = [[V(56 + 16 * s_ + 4 * t, 4) for t in range(4)] for s_ in range(2)]
    AR = [V(88 + 4 * i, 4) for i in range(8)]
    loads = []; mf = []
    acount = 0
    for rp in range(8):
        bs = BB[rp & 1]
        bidx = {}
        def addB(t):
            loads.append(("b128", bs[t], VB[rp], 1024 * t)); bidx[t] = len(loads) - 1
        first = True
        for ip in range(4):
            for m in range(2):
                ar = AR[acount % 8]; acount += 1
                off = 64 * rp + 1024 * ip + 32 * m
                if first: addB(0)
                loads.append(("b64", ar[0:2], vA, off)); loads.append(("b64", ar[2:4], vA, off + 8))
                aidx = len(loads) - 1
                if first:
                    addB(1); addB(2); addB(3); first = False
                for j in range(ip, 4):
                    mf.append((ACC[j][m], ar, bs[j - ip], max(aidx, bidx[j - ip]), rp == 0 and ip == 0))
    LOOK = 13
    tick = {}
    lastuse = {}
    for mi, (acc, a_, b_, need, z) in enumerate(mf):
        for rr in a_.regs() + b_.regs(): lastuse.setdefault(rr, []).append((mi, need))
    def issue(li, mi_done):
        kind, dst, va_, off = loads[li]
        for rr in dst.regs():
            for (mi, need) in lastuse[rr]:
                if need < li and mi >= mi_done: raise AssertionError(("WAR", li, mi, rr))
        tick[li] = p.I("ds_read_b128" if kind == "b128" else "ds_read_b64", dst, va_, mods=f"offset:{off}")
    nl = 0
    tkg = p.I("ds_read_b128", KG, vk, mods=f"offset:{KV0 + KVC + 1024}")
    while nl < LOOK: issue(nl, 0); nl += 1
    p.wait_vm(txg)
    def emitf():
        a, k = fill.pop(0)
        if a[0] == "KGWAIT": p.wait_lg(tkg)
        else: p.I(*a, **k)
    for mi, (acc, a_, b_, need, z) in enumerate(mf):
        assert need < nl
        p.wait_lg(tick[need])
        p.I("v_mfma_f32_16x16x32_bf16", acc, a_, b_, 0 if z else acc)
        if nl < len(loads): issue(nl, mi + 1); nl += 1
        if fill: emitf()
    while fill: emitf()
    stamp(p, 7)
    for j in range(4):
        for m in range(2):
            p.I("ds_write_b128", vp, ACC[j][m], mods=f"offset:{2304*j + 64*m}")
    p.wait_lg0()
    p.I("s_barrier")
    k2_post(p, 1, SM, sws, X, H, KVD, GA2, 120)
    stamp_out(p, 8, sws, 1)
    p.I("s_endpgm")
    p.label("L_k2_side")
    p.reset_counters()
    p.I("s_sub_u32", S(4), S(4), 4)
    p.I("s_mul_hi_u32", S(7), S(2), 153391690); p.I("s_mul_i32", S(8), S(7), 28); p.I("s_sub_u32", S(8), S(2), S(8))
    vtt = V(3); vt = V(6); vo = V(7); vco = V(8); vst = V(9); vt2 = V(10); vxo = V(4); vso = V(5); vk = V(11); vhk = V(12)
    p.I("v_subrev_u32", vtt, 256, V(0))
    p.I("v_lshlrev_b32", vo, 2, vlane)
    p.I("v_and_b32", vco, 7, vlane); p.I("v_lshlrev_b32", vco, 2, vco)
    p.I("s_cmp_ge_u32", S(8), 14)
    p.I("s_cselect_b32", S(13), 14, 0); p.I("s_cselect_b32", S(10), 256, 0)
    p.I("s_sub_u32", S(13), S(8), S(13))
    p.I("s_lshl_b32", S(11), S(13), 3)
    p.I("v_lshrrev_b32", vt, 3, vlane); p.I("v_add_u32", vt, S(11), vt)
    p.I("s_mov_b32", S(11), 28672)
    p.I("v_mul_lo_u32", vst, vt, S(11))
    p.I("v_and_b32", vt, 1, vlane); p.I("v_lshl_add_u32", vst, vt, 5, vst)
    p.I("v_bfe_u32", vt, vlane, 1, 1); p.I("v_lshl_add_u32", vst, vt, 7, vst)
    p.I("v_bfe_u32", vt, vlane, 2, 1); p.I("v_lshl_add_u32", vst, vt, 6, vst)
    p.I("s_mul_i32", S(14), S(7), 7); p.I("s_add_u32", S(14), S(14), S(4))
    p.I("s_lshl_b32", S(11), S(14), 9); p.I("s_add_u32", S(11), S(11), S(10)); p.I("s_add_u32", S(11), S(11), WS_WP)
    p.I("s_mul_i32", S(56), S(14), 8 * 3584); p.I("s_lshl_b32", S(57), S(13), 8); p.I("s_add_u32", S(56), S(56), S(57))
    p.I("s_lshl_b32", S(57), S(14), 5); p.I("s_add_u32", S(57), S(57), WS_MOD + 3 * D * 4)
    p.I("s_lshl_b32", S(15), S(3), 13); p.I("s_add_u32", S(15), S(15), WS_X)
    p.I("v_lshlrev_b32", vxo, 4, vtt); p.I("v_lshlrev_b32", vso, 5, vtt)
    k2_kvaddr(p, vk, vt, vtt, 0)
    p.I("s_waitcnt", "lgkmcnt(0)")
    stamp(p, 1, False)
    p.I("s_cmp_ge_u32", S(8), 14)
    p.I("s_cselect_b32", S(46), S(P_WU), S(P_WG)); p.I("s_cselect_b32", S(47), S(P_WU + 1), S(P_WG + 1))
    sw = srd(p, 48, 46, D * F * 2); sws = srd(p, 52, P_WS, WS_SIZE)
    k2_const_loads(p, 0)
    WR = [[V(16 + 8 * ps + j) for j in range(8)] for ps in range(2)]
    CF = [V(32 + 4 * ps, 4) for ps in range(2)]
    tw = {}; tcf = {}
    for ps in range(2):
        for a_ in range(4):
            p.I("s_add_u32", S(70), S(57), (a_ & 1) * D * 4 + (a_ >> 1) * MODP + ps * 128)
            tcf[ps] = p.I("buffer_load_dword", CF[ps][a_], vco, sws, S(70), mods="offen")
        for j in range(8):
            p.I("s_add_u32", S(70), S(56), (32 * ps + j) * 3584)
            tw[ps] = p.I("buffer_load_dword", WR[ps][j], vo, sw, S(70), mods=f"offen {NT_IN}")
    XG = V(40, 4); SPk = V(48, 8)
    p.I("s_mov_b32", S(71), WS_ST1)
    p.I("buffer_load_dwordx4", XG, vxo, sws, S(15), mods="offen")
    for i in range(2): tst = p.I("buffer_load_dwordx4", SPk[4 * i:4 * i + 4], vso, sws, S(71), mods=f"offen offset:{16*i}")
    AS = V(96, 4); AS2 = V(124, 4)
    for i in range(4): p.I("v_mov_b32", AS[i], 0); p.I("v_mov_b32", AS2[i], 0)
    p.I("s_mov_b32", S(59), 0x3f803f80)
    k2_post_addr(p, 0, 144, vtt)
    p.I("s_mov_b32", S(97), S(12))
    stamp(p, 2, False)
    p.I("s_barrier")
    stamp(p, 3, False)
    for ps in range(2):
        if ps == 1:
            p.I("s_cmp_eq_u32", S(4), 3); p.I("s_cbranch_scc1", "L_k2_skip1")
        cf = CF[ps]
        p.wait_vm(tcf[ps])
        p.I("v_add_f32", cf[0], cf[0], cf[2]); p.I("v_add_f32", cf[1], cf[1], cf[3])
        rnd_pair(p, cf[0:2], cf[2], SM)
        p.I("v_add_f32", cf[1], 1.0, cf[1]); rnd1(p, cf[1])
        for j in range(8): p.I("v_readlane_b32", S(16 + j), cf[0], j); p.I("v_readlane_b32", S(24 + j), cf[1], j)
        U0 = V(100, 8); U1 = V(108, 8); O = [V(116, 4), V(120, 4)]
        p.wait_vm(tw[ps])
        if ps == 0: stamp(p, 4, False)
        for j in range(8): p.I("v_lshlrev_b32", U0[j], 16, WR[ps][j]); p.I("v_and_b32", U1[j], SM, WR[ps][j])
        for j in range(8):
            A_ = AS if j & 1 else AS2
            p.I("v_fmac_f32", A_[2], S(16 + j), U0[j]); p.I("v_fmac_f32", A_[3], S(16 + j), U1[j])
            p.I("v_mul_f32", U0[j], S(24 + j), U0[j]); p.I("v_mul_f32", U1[j], S(24 + j), U1[j])
        for j in range(4): p.I("v_cvt_pk_bf16_f32", O[0][j], U0[2 * j], U0[2 * j + 1]); p.I("v_cvt_pk_bf16_f32", O[1][j], U1[2 * j], U1[2 * j + 1])
        p.I("s_add_u32", S(70), S(11), ps * 2048)
        if ps == 0:
            p.I("buffer_store_dwordx4", O[0], vst, sws, S(70), mods=f"offen {ST_WT}")
            p.I("buffer_store_dwordx4", O[1], vst, sws, S(70), mods=f"offen offset:16 {ST_WT}")
        else:
            p.raw(f"    buffer_store_dwordx4 {O[0]}, {vst}, {sws}, s70 offen {ST_WT}")
            p.raw(f"    buffer_store_dwordx4 {O[1]}, {vst}, {sws}, s70 offen offset:16 {ST_WT}")
            p.I("s_nop", 1)
        for j in range(4):
            unpack(p, U0[2 * j:2 * j + 2], O[0][j], SM); unpack(p, U1[2 * j:2 * j + 2], O[1][j], SM)
        for j in range(4):
            p.I("v_add_f32", U0[j], U0[j], U0[4 + j]); p.I("v_add_f32", U1[j], U1[j], U1[4 + j])
        for j in range(2):
            p.I("v_add_f32", U0[j], U0[j], U0[2 + j]); p.I("v_add_f32", U1[j], U1[j], U1[2 + j])
        p.I("v_add_f32", AS[0], AS[0], U0[0]); p.I("v_add_f32", AS[1], AS[1], U1[0]); p.I("v_add_f32", AS2[0], AS2[0], U0[1]); p.I("v_add_f32", AS2[1], AS2[1], U1[1])
    p.label("L_k2_skip1")
    p.I("s_nop", 4)
    p.wait_vm(tst)
    for i in range(4):
        p.I("v_add_f32", AS[i], AS[i], AS2[i])
    p.I("s_lshl_b32", S(70), S(4), 10); p.I("s_add_u32", S(70), S(70), SIDE0)
    p.I("v_lshl_add_u32", vt, vlane, 4, S(70))
    p.I("ds_write_b128", vt, AS)
    stamp(p, 5, False)
    KG = V(16, 4)
    p.I("s_waitcnt", "lgkmcnt(0)"); p.lg_done = p.lg_issued
    tkg = p.I("ds_read_b128", KG, vk, mods=f"offset:{KV0 + 1024}")
    ca1 = V(24); sa = V(25); dd = V(26); GA2 = V(36, 2)
    k2_consts(p, SM, 0, ca1, sa, dd, GA2, V(38))
    X = V(72, 8); H = V(88, 8); KVD = V(108, 8)
    p.wait_vm(tst)
    for a_, k_ in k2_pre_ops(SM, XG, SPk, KG, X, H, KVD, V(56, 8), V(64, 8), V(124, 4), ca1, sa, dd):
        if a_[0] == "KGWAIT": p.wait_lg(tkg)
        else: p.I(*a_, **k_)
    p.wait_lg0()
    stamp(p, 6)
    p.I("s_barrier")
    p.I("s_mov_b32", S(12), S(97))
    k2_post(p, 0, SM, sws, X, H, KVD, GA2, 144)
    stamp(p, 7)
    stamp_out(p, 8, sws, 1)
    p.I("s_cmp_lg_u32", S(4), 0)
    p.I("s_cbranch_scc1", "L_k2_exit")
    p.I("v_lshlrev_b32", vt, 4, vlane); p.I("v_add_u32", vt, SIDE0, vt)
    RR = [V(16 + 4 * w, 4) for w in range(4)]
    for w in range(4): p.I("ds_read_b128", RR[w], vt, mods=f"offset:{1024*w}")
    p.wait_lg0()
    for i in range(4):
        p.I("v_add_f32", RR[0][i], RR[0][i], RR[1][i]); p.I("v_add_f32", RR[2][i], RR[2][i], RR[3][i]); p.I("v_add_f32", RR[0][i], RR[0][i], RR[2][i])
    p.I("s_mul_i32", S(58), S(7), 3584 * 4); p.I("s_lshl_b32", S(59), S(8), 9); p.I("s_add_u32", S(58), S(58), S(59))
    p.I("s_add_u32", S(59), S(58), WS_BI); p.I("s_add_u32", S(58), S(58), WS_CS)
    p.I("v_lshlrev_b32", vt, 3, vlane)
    p.I("buffer_store_dwordx2", RR[0][0:2], vt, sws, S(58), mods="offen")
    p.I("buffer_store_dwordx2", RR[0][2:4], vt, sws, S(59), mods="offen")
    p.label("L_k2_exit")
    p.I("s_endpgm")
    return p

WA = 126976
WSLOT = [WA, 0, 32768, 65536, 98304, WA, 0]
TAB0 = 155648
K4_LDS = TAB0 + 1792
EMU = int(os.environ.get('EMU', '0'))
K4MAP = int(os.environ.get('K4MAP', '0'))
PER = int(os.environ.get('PER', '4'))
XP = os.environ.get('XP', '')
ACT_ST = os.environ.get('ACT_ST', '')
K5_LD = os.environ.get('K5_LD', '')
K4_LD = os.environ.get('K4_LD', '')
def gen_k4():
    p = Prog()
    load_kernargs(p)
    stamp(p, 0, False)
    p.I("s_cmp_ge_u32", S(2), 256)
    p.I("s_cbranch_scc1", "L_k4_exit")
    SM = S(6)
    p.I("s_mov_b32", SM, 0xffff0000)
    if K4MAP == 0:
        p.I("s_bfe_u32", S(3), S(2), 0x10002); p.I("s_lshl_b32", S(3), S(3), 3); p.I("s_lshr_b32", S(4), S(2), 5); p.I("s_add_u32", S(3), S(3), S(4))
        p.I("s_and_b32", S(5), S(2), 3); p.I("s_lshl_b32", S(5), S(5), 2); p.I("s_bfe_u32", S(4), S(2), 0x20003); p.I("s_add_u32", S(5), S(5), S(4))
    elif K4MAP == 1:
        p.I("s_and_b32", S(3), S(2), 7); p.I("s_lshl_b32", S(3), S(3), 1); p.I("s_lshr_b32", S(4), S(2), 7); p.I("s_add_u32", S(3), S(3), S(4))
        p.I("s_bfe_u32", S(5), S(2), 0x40003)
    else:
        p.I("s_bfe_u32", S(3), S(2), 0x20001); p.I("s_lshl_b32", S(3), S(3), 2); p.I("s_lshr_b32", S(4), S(2), 6); p.I("s_add_u32", S(3), S(3), S(4))
        p.I("s_and_b32", S(5), S(2), 1); p.I("s_lshl_b32", S(5), S(5), 3); p.I("s_bfe_u32", S(4), S(2), 0x30003); p.I("s_add_u32", S(5), S(5), S(4))
    vlane = V(1); vw = V(2)
    p.I("v_and_b32", vlane, 63, V(0))
    p.I("v_lshrrev_b32", vw, 6, V(0))
    p.I("v_readfirstlane_b32", S(4), vw)
    p.I("s_cmp_ge_u32", S(4), 4)
    p.I("s_cbranch_scc1", "L_k4_load")
    vr = V(4); vc = V(5); vt = V(6); vh = V(7)
    p.I("v_bfe_u32", vr, vlane, 2, 2); p.I("v_and_b32", vc, 3, vlane); p.I("v_lshrrev_b32", vh, 5, vlane)
    VA0 = V(8); VA1 = V(9); VX0 = V(10); VX1 = V(11); vtab = V(12); vo = V(13)
    p.I("v_lshlrev_b32", VA0, 4, vlane); p.I("v_add_u32", VA1, 98304, VA0); VAm = V(3); p.I("v_add_u32", VAm, 65536, VA0)
    p.I("v_lshl_add_u32", vt, vh, 3, vr); p.I("v_lshlrev_b32", VX0, 8, vt)
    p.I("v_xor_b32", vt, S(4), vr); p.I("v_lshl_add_u32", VX0, vt, 6, VX0)
    p.I("v_bfe_u32", vt, vlane, 4, 1); p.I("v_lshl_add_u32", VX0, vt, 5, VX0)
    p.I("v_lshl_add_u32", VX0, vc, 3, VX0); p.I("v_add_u32", VX1, 65536, VX0)
    p.I("v_lshlrev_b32", vtab, 5, vh); p.I("v_add_u32", vtab, TAB0, vtab)
    p.I("v_and_b32", vo, 31, vlane); p.I("v_lshlrev_b32", vo, 4, vo); p.I("v_mul_u32_u24", vt, ACP, vh); p.I("v_add_u32", vo, vo, vt)
    p.I("s_mul_i32", S(7), S(5), 14 * ACP); p.I("s_lshl_b32", S(13), S(3), 11); p.I("s_add_u32", S(7), S(7), S(13))
    p.I("s_lshl_b32", S(13), S(4), 9); p.I("s_add_u32", S(7), S(7), S(13)); p.I("s_add_u32", S(7), S(7), WS_ACT)
    p.I("s_mov_b32", S(8), 0x3b124925); p.I("s_mov_b32", S(9), 0x3727c5ac); p.I("s_mov_b32", S(10), 0xbfb8aa3b)
    XF = [V(96 + 4 * n, 4) for n in range(28)]
    ACC = [V(208, 16), V(224, 16)]
    ONES = V(14, 4)
    for i in range(4): p.I("v_mov_b32", ONES[i], 0x3f803f80)
    GRAM = V(64, 16); OSUM = V(80, 16)
    vi_ = V(18); ve_ = V(19)
    p.I("v_and_b32", vi_, 31, vlane); p.I("v_lshrrev_b32", ve_, 3, vi_); p.I("v_lshlrev_b32", ve_, 2, ve_); p.I("v_and_b32", vt, 3, vi_); p.I("v_add_u32", ve_, ve_, vt)
    p.I("v_bfe_u32", vt, vi_, 2, 1); p.I("v_xor_b32", vt, vt, vh); p.I("v_lshl_add_u32", ve_, vt, 4, ve_)
    for e in range(16): p.I("v_cmp_eq_u32", S(56 + 2 * e, 2), e, ve_)
    p.I("s_waitcnt", "lgkmcnt(0)")
    sws = srd(p, 52, P_WS, WS_SIZE)
    stamp(p, 1, False)
    def areads(addr):
        return (VA0, addr) if addr < 65536 else ((VAm, addr - 65536) if addr < 98304 else (VA1, addr - 98304))
    def xaddr(n, s_):
        ad = n * 4096 + s_ * 1024
        return (VX0, ad) if ad < 65536 else (VX1, ad - 65536)
    FW = [[V(32 + 16 * b_ + 4 * k_, 4) for k_ in range(4)] for b_ in range(2)]
    def procA(c):
        for k_ in range(4):
            n = 4 * c + k_
            p.I("v_mfma_f32_32x32x16_bf16", ACC[0], FW[c & 1][k_], XF[n], 0 if n == 0 else ACC[0])
            p.I("v_mfma_f32_32x32x16_bf16", GRAM, XF[n], XF[n], 0 if n == 0 else GRAM)
            p.I("v_mfma_f32_32x32x16_bf16", OSUM, ONES, XF[n], 0 if n == 0 else OSUM)
    for c in range(7):
        p.I("s_barrier")
        if c == 0: stamp(p, 2)
        for k_ in range(4):
            n = 4 * c + k_
            for s_ in range(2):
                vb, im = xaddr(n, s_); p.I("ds_read_b64_tr_b16", XF[n][2 * s_:2 * s_ + 2], vb, mods=f"offset:{im}")
            vb, im = areads(WA + n * 1024); tl = p.I("ds_read_b128", FW[c & 1][k_], vb, mods=f"offset:{im}")
        if c > 0: procA(c - 1)
        p.wait_lg(tl)
    AR = [V(48, 4), V(52, 4), V(56, 4), V(60, 4), V(240, 4), V(244, 4), V(248, 4), V(252, 4)]
    TB = [V(64, 8), V(72, 8), V(80, 8), V(88, 8)]; E = V(40, 8); TMp = V(28, 4)
    NR = 8; LA = int(os.environ.get('LA', '7'))
    vm = V(18); vv = V(19); vrr = V(20); vrm = V(21); SP = V(22, 2); TT = V(24, 2); vden = V(26); vd2 = V(27); vlr = V(14); vnm = V(15)
    def stats_ops():
        L = []
        def F_(*a, **k): L.append((a, k))
        F_("v_mov_b32", SP[1], 0)
        for e in range(16): F_("v_cndmask_b32", SP[1], SP[1], GRAM[e], S(56 + 2 * e, 2))
        F_("v_mul_f32", vm, S(8), OSUM[0])
        F_("TABREAD", 0)
        F_("v_mov_b32", TT[1], SP[1]); F_("s_nop", 0); F_("v_permlane32_swap_b32", TT[1], SP[1]); F_("v_add_f32", SP[1], SP[1], TT[1])
        F_("v_mul_f32", vv, S(8), SP[1])
        F_("v_fma_f32", vv, Neg(vm), vm, vv); F_("v_max_f32", vv, 0, vv)
        def r1(r): F_("v_cvt_pk_bf16_f32", r, r, r); F_("v_lshlrev_b32", r, 16, r)
        r1(vv); F_("v_add_f32", vv, S(9), vv); r1(vv); F_("v_sqrt_f32", vden, vv); r1(vm); r1(vden)
        F_("v_rcp_f32", vrr, vden); F_("v_mul_f32", vd2, vden, vden); F_("v_sub_f32", vnm, 0, vm); F_("v_mul_f32", vlr, S(10), vrr)
        return L
    def tinit_ops(dst):
        L = []
        def F_(*a, **k): L.append((a, k))
        F_("TABWAIT")
        for j in range(8):
            F_("v_mul_f32", TB[2][j], TB[2][j], vden); F_("v_mul_f32", TB[3][j], TB[3][j], vden)
        return L
    def epi_ops(T):
        L = []
        def F_(*a, **k): L.append((a, k))
        acc = ACC[T & 1]; Gs = acc[0:8]; Us = acc[8:16]; tb = TB
        if True:
            F_("TABWAIT")
            for j in range(8):
                F_("v_fma_f32", tb[2][j], tb[2][j], vden, Gs[j]); F_("v_fma_f32", tb[3][j], tb[3][j], vden, Us[j])
            for j in range(8):
                F_("v_fma_f32", Gs[j], vnm, tb[0][j], tb[2][j]); F_("v_fma_f32", Us[j], vnm, tb[1][j], tb[3][j])
            if T < 6: F_("TABREAD", T + 1)
        for j in range(8): F_("v_mul_f32", E[j], vlr, Gs[j])
        for j in range(8): F_("v_exp_f32", E[j], E[j]); F_("v_mul_f32", Gs[j], Gs[j], Us[j])
        for j in range(8): F_("v_fma_f32", E[j], E[j], vd2, vd2)
        for j in range(8): F_("v_rcp_f32", E[j], E[j])
        for j in range(8): F_("v_mul_f32", Gs[j], Gs[j], E[j])
        for j in range(4): F_("v_cvt_pk_bf16_f32", TMp[j], Gs[2 * j], Gs[2 * j + 1])
        F_("s_add_u32", S(13), S(7), T * 2 * ACP)
        F_("buffer_store_dwordx4", TMp, vo, sws, S(13), mods="offen " + ACT_ST)
        if 1 <= T + 2 <= 6 and T >= 0:
            if T == 0: pass
        return L
    def init_ops(T):
        L = []
        def F_(*a, **k): L.append((a, k))
        acc = ACC[T & 1]
        F_("TABWAIT")
        for j in range(8):
            F_("v_mul_f32", TB[2][j], TB[2][j], vden); F_("v_mul_f32", TB[3][j], TB[3][j], vden)
        for j in range(8):
            F_("v_fma_f32", acc[j], vnm, TB[0][j], TB[2][j]); F_("v_fma_f32", acc[8 + j], vnm, TB[1][j], TB[3][j])
        if T < 6: F_("TABREAD", T + 1)
        return L
    tabt = [None]
    def tabread(T):
        for a_ in range(4):
            for k_ in range(2):
                tabt[0] = p.I("ds_read_b128", TB[a_][4 * k_:4 * k_ + 4], vtab, mods=f"offset:{a_*448 + T*64 + 16*k_}")
    def emit(op):
        a_, k_ = op
        if a_[0] == "TABWAIT": p.wait_lg(tabt[0])
        elif a_[0] == "TABREAD": tabread(a_[1])
        elif 'nofill' in XP and a_[0].startswith("v_"): pass
        elif 'notrans' in XP and a_[0] in TRANS: p.I("v_mov_b32", a_[1], a_[2])
        elif 'nofma' in XP and a_[0] == "v_fma_f32": p.I("v_mov_b32", a_[1], a_[3])
        else: p.I(*a_, **k_)
    p.I("s_barrier")
    stamp(p, 3)
    seq = [(t, n) for t in range(1, 7) for n in range(28)]
    tick = {}
    def rdA(i):
        t, n = seq[i]
        if 'nord' in XP and i > 8:
            tick[i] = p.lg_issued; return
        vb, im = areads(WSLOT[t] + n * 1024)
        tick[i] = p.I("ds_read_b128", AR[i % NR], vb, mods=f"offset:{im}")
    for i in range(LA): rdA(i)
    procA(6)
    fill = stats_ops() + epi_ops(0)
    nxt = LA
    for i, (t, n) in enumerate(seq):
        if n == 0 and t > 1:
            while fill: emit(fill.pop(0))
            fill = epi_ops(t - 1)
        p.wait_lg(tick[i])
        if 'alt' in XP: p.I("v_mfma_f32_32x32x16_bf16", ACC[n & 1], AR[i % NR], XF[n], ACC[n & 1])
        else: p.I("v_mfma_f32_32x32x16_bf16", ACC[t & 1], AR[i % NR], XF[n], 0 if n == 0 else ACC[t & 1])
        if nxt < len(seq):
            if seq[nxt][1] == 0 and seq[nxt][0] in (2, 4):
                p.wait_lg(tick[nxt - 1])
                p.I("s_barrier")
            rdA(nxt); nxt += 1
        per = PER if n >= 1 else 2
        cost = 0
        while fill and cost < per:
            op = fill.pop(0); emit(op)
            cost += 2 if op[0][0] in TRANS else 1
    while fill: emit(fill.pop(0))
    stamp(p, 4)
    for op in epi_ops(6): emit(op)
    stamp(p, 5)
    stamp_out(p, 6, sws, 2)
    p.label("L_k4_exit")
    p.I("s_endpgm")
    p.label("L_k4_load")
    p.reset_counters()
    p.I("s_sub_u32", S(4), S(4), 4)
    vL = V(3); vt = V(6); vt2 = V(7); vwl = V(8); vxg = V(9)
    p.I("v_subrev_u32", vL, 256, V(0))
    p.I("v_lshlrev_b32", vwl, 4, vlane)
    p.I("v_lshrrev_b32", vt, 4, vlane); p.I("v_mul_u32_u24", vxg, X1P, vt)
    p.I("v_bfe_u32", vt2, vlane, 2, 2); p.I("v_xor_b32", vt, vt, vt2); p.I("v_lshl_add_u32", vxg, vt, 6, vxg)
    p.I("v_and_b32", vt, 3, vlane); p.I("v_lshl_add_u32", vxg, vt, 4, vxg)
    p.I("s_lshl_b32", S(7), S(3), 8); p.I("s_mul_i32", S(8), S(4), 16 * X1P); p.I("s_add_u32", S(7), S(7), S(8)); p.I("s_add_u32", S(7), S(7), WS_X1)
    p.I("s_lshl_b32", S(10), S(4), 10)
    p.I("s_mul_i32", S(12), S(5), 200704); p.I("s_add_u32", S(12), S(12), S(10)); p.I("s_add_u32", S(12), S(12), WS_WP)
    p.I("s_lshl_b32", S(11), S(4), 12)
    vtg = V(10); vtl = V(11)
    p.I("v_cmp_le_u32", VCC, 112, vL)
    p.I("v_mov_b32", vt, 0); p.I("v_mov_b32", vt2, (1792 - 112) * 4); p.I("v_cndmask_b32", vt, vt, vt2, VCC)
    p.I("v_lshl_add_u32", vtg, vL, 2, vt)
    p.I("v_lshlrev_b32", vtl, 2, vL); p.I("v_add_u32", vtl, TAB0, vtl)
    p.I("s_mul_i32", S(13), S(5), 448); p.I("s_add_u32", S(13), S(13), WS_CS)
    p.I("v_cmp_gt_u32", VCC, 224, vL); p.I("s_mov_b64", S(60, 2), VCC)
    p.I("s_mul_hi_u32", S(56), S(2), 613566757); p.I("s_mul_i32", S(57), S(56), 7); p.I("s_sub_u32", S(57), S(2), S(57))
    vdg = V(12); vds = V(13)
    p.I("v_lshrrev_b32", vt, 5, vL); p.I("v_and_b32", vt2, 31, vL)
    p.I("v_mul_u32_u24", vdg, 8 * ROWB, vt); p.I("v_lshl_add_u32", vdg, vt2, 2, vdg)
    p.I("v_lshlrev_b32", vds, 5, vt2)
    p.I("v_and_b32", vds, 511, vds); p.I("v_lshrrev_b32", vt2, 4, vt2); p.I("v_lshl_add_u32", vds, vt2, 10, vds)
    p.I("v_and_b32", vt2, 1, vt); p.I("v_lshl_add_u32", vds, vt2, 9, vds)
    p.I("v_lshrrev_b32", vt, 1, vt); p.I("v_lshl_add_u32", vds, vt, 11, vds)
    p.I("s_mul_i32", S(58), S(56), 64 * ROWB); p.I("s_lshl_b32", S(59), S(57), 7); p.I("s_add_u32", S(58), S(58), S(59))
    p.I("s_mul_i32", S(59), S(57), 229376); p.I("s_lshl_b32", S(62), S(56), 13); p.I("s_add_u32", S(59), S(59), S(62)); p.I("s_add_u32", S(59), S(59), WS_WD)
    p.I("s_waitcnt", "lgkmcnt(0)")
    stamp(p, 1, False)
    sws = srd(p, 52, P_WS, WS_SIZE); swd = srd(p, 48, P_WD, D * F * 2)
    def issueX(c):
        for i in range(4):
            p.I("s_add_u32", M0, S(11), c * 16384 + i * 1024)
            p.I("s_add_u32", S(15), S(7), (64 * c + 4 * i) * X1P)
            p.I("buffer_load_dwordx4", vxg, sws, S(15), mods="offen lds")
        p.I("s_add_u32", M0, S(10), WA + c * 4096)
        p.I("s_add_u32", S(15), S(12), c * 4096)
        return p.I("buffer_load_dwordx4", vwl, sws, S(15), mods="offen lds")
    def issueW(t):
        for i in range(7):
            p.I("s_add_u32", M0, S(10), WSLOT[t] + i * 4096)
            p.I("s_add_u32", S(15), S(12), t * 28672 + i * 4096)
            tk_ = p.I("buffer_load_dwordx4", vwl, sws, S(15), mods="offen lds")
        return tk_
    tX = {}; tW = {}
    for c in range(3): tX[c] = issueX(c)
    stamp(p, 2, False)
    TBL = [V(48 + i) for i in range(16)]; WDR = [V(24 + i) for i in range(8)]
    for c in range(7):
        p.wait_vm(tX[c])
        if c == 0: stamp(p, 3, False)
        p.I("s_barrier")
        if c + 3 < 7: tX[c + 3] = issueX(c + 3)
        if c == 3:
            p.I("s_mov_b64", S(68, 2), EXEC); p.I("s_mov_b64", EXEC, S(60, 2))
            for i in range(16):
                p.I("s_add_u32", S(15), S(13), (i & 7) * 3584 * 4 + (i >> 3) * (WS_BI - WS_CS))
                ttb = p.I("buffer_load_dword", TBL[i], vtg, sws, S(15), mods="offen")
            p.I("s_mov_b64", EXEC, S(68, 2))
        if c >= 4: tW[c - 3] = issueW(c - 3)
        if c == 5:
            p.wait_vm(ttb)
            for st_ in (1, 2, 4):
                for i in range(0, 16, 2 * st_): p.I("v_add_f32", TBL[i], TBL[i], TBL[i + st_])
            p.I("s_mov_b64", EXEC, S(60, 2))
            p.I("ds_write_b32", vtl, TBL[0]); p.I("ds_write_b32", vtl, TBL[8], mods="offset:896")
            p.I("s_mov_b64", EXEC, S(68, 2))
            p.wait_lg0()
    for t in (1, 2, 4):
        p.wait_vm(tW[{1: 1, 2: 3, 4: 6}[t]])
        p.I("s_barrier")
        if t == 1: tW[4] = issueW(4)
        if t == 2: tW[5] = issueW(5); tW[6] = issueW(6)
        if t == 4:
            for j in range(8):
                p.I("s_add_u32", S(15), S(58), j * ROWB)
                twd = p.I("buffer_load_dword", WDR[j], vdg, swd, S(15), mods=f"offen {NT_IN}")
    p.I("s_cmp_ge_u32", S(2), 196)
    p.I("s_cbranch_scc1", "L_k4_nowd")
    p.I("s_mov_b32", S(62), 0x05040100); p.I("s_mov_b32", S(63), 0x07060302)
    p.wait_vm(twd)
    OG = [V(32, 4), V(36, 4)]
    for e2 in range(4):
        p.I("v_perm_b32", OG[0][e2], WDR[2 * e2 + 1], WDR[2 * e2], S(62)); p.I("v_perm_b32", OG[1][e2], WDR[2 * e2 + 1], WDR[2 * e2], S(63))
    p.I("buffer_store_dwordx4", OG[0], vds, sws, S(59), mods="offen " + ST_WT)
    p.I("buffer_store_dwordx4", OG[1], vds, sws, S(59), mods="offen offset:16 " + ST_WT)
    p.label("L_k4_nowd")
    stamp(p, 4)
    stamp_out(p, 5, sws, 2)
    p.I("s_endpgm")
    return p

K5_PR = 64 * 272
K5_XT = 4 * K5_PR
K5_LDS = K5_XT + 8192
def gen_k5():
    p = Prog()
    load_kernargs(p)
    stamp(p, 0, False)
    p.I("s_cmp_ge_u32", S(2), 224)
    p.I("s_cbranch_scc1", "L_k5_exit")
    SM = S(6)
    p.I("s_mov_b32", SM, 0xffff0000)
    p.I("s_lshr_b32", S(4), S(2), 3); p.I("s_mul_hi_u32", S(3), S(4), 613566757); p.I("s_mul_i32", S(5), S(3), 7); p.I("s_sub_u32", S(5), S(4), S(5))
    p.I("s_and_b32", S(4), S(2), 7); p.I("s_lshl_b32", S(4), S(4), 2); p.I("s_add_u32", S(3), S(3), S(4))
    vlane = V(1); vw = V(2); vh = V(3); vt = V(4); vaa = V(5); vwa = V(6); vxa = V(7); vgb = V(8)
    p.I("v_and_b32", vlane, 63, V(0)); p.I("v_lshrrev_b32", vw, 6, V(0)); p.I("v_readfirstlane_b32", S(4), vw)
    p.I("v_lshrrev_b32", vh, 5, vlane)
    p.I("v_and_b32", vaa, 31, vlane); p.I("v_lshlrev_b32", vaa, 4, vaa); p.I("v_mul_u32_u24", vt, ACP, vh); p.I("v_add_u32", vaa, vaa, vt)
    p.I("v_lshlrev_b32", vwa, 4, vlane)
    p.I("v_lshrrev_b32", vt, 3, vlane); p.I("v_mul_u32_u24", vxa, X1P, vt); p.I("v_and_b32", vt, 7, vlane); p.I("v_lshl_add_u32", vxa, vt, 4, vxa)
    p.I("v_lshrrev_b32", vgb, 4, vlane); p.I("v_lshlrev_b32", vgb, 5, vgb)
    p.I("s_mul_i32", S(7), S(4), 56 * ACP); p.I("s_lshl_b32", S(8), S(3), 10); p.I("s_add_u32", S(7), S(7), S(8)); p.I("s_add_u32", S(7), S(7), WS_ACT)
    p.I("s_mul_i32", S(8), S(5), 229376); p.I("s_mul_i32", S(9), S(4), 28 * 2048); p.I("s_add_u32", S(8), S(8), S(9)); p.I("s_add_u32", S(8), S(8), WS_WD)
    p.I("s_mul_i32", S(9), S(5), 64 * X1P); p.I("s_mul_i32", S(10), S(4), 16 * X1P); p.I("s_add_u32", S(9), S(9), S(10)); p.I("s_lshl_b32", S(10), S(3), 7)
    p.I("s_add_u32", S(9), S(9), S(10)); p.I("s_add_u32", S(9), S(9), WS_X1)
    p.I("s_lshl_b32", S(10), S(4), 11); p.I("s_add_u32", S(10), S(10), K5_XT)
    p.I("s_lshl_b32", S(11), S(5), 8); p.I("s_add_u32", S(11), S(11), WS_MOD + 5 * D * 4)
    for i in range(64): p.I("v_accvgpr_write_b32", A(i), 0)
    p.I("s_waitcnt", "lgkmcnt(0)")
    sws = srd(p, 52, P_WS, WS_SIZE); so = srd(p, 48, P_OUT, ARR)
    stamp(p, 1, False)
    NB = 13; LA = 12
    BUF = [V(40 + 16 * b, 16) for b in range(NB)]
    ACC = [[A(32 * dl + 16 * th, 16) for th in range(2)] for dl in range(2)]
    tk = {}
    def issue(n):
        bf_ = BUF[n % NB]
        p.I("s_add_u32", S(12), S(7), n * 2 * ACP); p.I("s_add_u32", S(13), S(8), n * 2048)
        p.I("buffer_load_dwordx4", bf_[0:4], vwa, sws, S(13), mods="offen")
        p.I("buffer_load_dwordx4", bf_[8:12], vaa, sws, S(12), mods="offen " + K5_LD)
        t1 = p.I("buffer_load_dwordx4", bf_[12:16], vaa, sws, S(12), mods="offen offset:512 " + K5_LD)
        t2 = p.I("buffer_load_dwordx4", bf_[4:8], vwa, sws, S(13), mods="offen offset:1024")
        tk[n] = (t1, t2)
    for n in range(LA): issue(n)
    stamp(p, 2, False)
    GB = [[V(10 + 16 * og + 8 * pp, 8) for pp in range(2)] for og in range(2)]
    GB = [[A(64 + 16 * og + 8 * pp, 8) for pp in range(2)] for og in range(2)]
    tgb = None
    for n in range(28):
        bf_ = BUF[n % NB]
        p.wait_vm(tk[n][0])
        if n == 0: stamp(p, 3, False)
        p.I("v_mfma_f32_32x32x16_bf16", ACC[0][0], bf_[0:4], bf_[8:12], ACC[0][0])
        p.I("v_mfma_f32_32x32x16_bf16", ACC[0][1], bf_[0:4], bf_[12:16], ACC[0][1])
        p.wait_vm(tk[n][1])
        p.I("v_mfma_f32_32x32x16_bf16", ACC[1][0], bf_[4:8], bf_[8:12], ACC[1][0])
        p.I("v_mfma_f32_32x32x16_bf16", ACC[1][1], bf_[4:8], bf_[12:16], ACC[1][1])
        if n + LA < 28: issue(n + LA)
        if n == 16:
            for i in range(2):
                p.I("s_add_u32", M0, S(10), i * 1024); p.I("s_add_u32", S(12), S(9), i * 8 * X1P)
                p.I("buffer_load_dwordx4", vxa, sws, S(12), mods="offen lds")
            for og in range(2):
                for pp in range(2):
                    p.I("s_add_u32", S(12), S(11), pp * MODP)
                    for k_ in range(2):
                        tgb = p.I("buffer_load_dwordx4", GB[og][pp][4 * k_:4 * k_ + 4], vgb, sws, S(12), mods=f"offen offset:{128*og + 16*k_}")
    stamp(p, 4)
    vpw = V(9)
    p.I("v_and_b32", vt, 31, vlane); p.I("v_mul_u32_u24", vpw, 272, vt); p.I("v_lshl_add_u32", vpw, vh, 4, vpw)
    p.I("s_mul_i32", S(12), S(4), K5_PR); p.I("v_add_u32", vpw, S(12), vpw)
    for dl in range(2):
        for th in range(2):
            for j in range(4):
                p.I("ds_write_b128", vpw, ACC[dl][th][4 * j:4 * j + 4], mods=f"offset:{th*32*272 + dl*128 + j*32}")
    vq = V(10); vtk = V(11); vpr = V(12); vxr = V(13); voo = V(14)
    p.I("v_lshrrev_b32", vq, 4, vlane); p.I("v_and_b32", vtk, 15, vlane); p.I("s_lshl_b32", S(12), S(4), 4); p.I("v_add_u32", vtk, S(12), vtk)
    p.I("v_mul_u32_u24", vpr, 272, vtk); p.I("v_lshl_add_u32", vpr, vq, 5, vpr)
    p.I("v_bfe_u32", vt, vlane, 2, 2); p.I("v_lshl_add_u32", vt, vq, 3, vt); p.I("v_lshlrev_b32", vxr, 7, vt)
    p.I("v_and_b32", vt, 3, vlane); p.I("v_lshl_add_u32", vxr, vt, 3, vxr); p.I("s_lshl_b32", S(12), S(4), 5); p.I("s_add_u32", S(12), S(12), K5_XT); p.I("v_add_u32", vxr, S(12), vxr)
    p.I("v_mul_u32_u24", voo, ROWB, vtk); p.I("v_lshl_add_u32", voo, vq, 4, voo)
    p.I("s_mul_i32", S(12), S(3), 64 * ROWB); p.I("s_lshl_b32", S(13), S(5), 7); p.I("s_add_u32", S(12), S(12), S(13))
    G = [V(16 + 8 * og, 8) for og in range(2)]; TM = V(32, 4); G2 = V(40, 8)
    p.wait_vm(tgb)
    for og in range(2):
        for j in range(8): p.I("v_accvgpr_read_b32", G[og][j], GB[og][0][j]); p.I("v_accvgpr_read_b32", G2[j], GB[og][1][j])
        for j in range(8): p.I("v_add_f32", G[og][j], G[og][j], G2[j])
        for j in range(4): p.I("v_cvt_pk_bf16_f32", TM[j], G[og][2 * j], G[og][2 * j + 1])
        for j in range(4): unpack(p, G[og][2 * j:2 * j + 2], TM[j], SM)
    p.wait_lg0()
    p.I("s_barrier")
    stamp(p, 5)
    for og in range(2):
        PPs = [V(48 + 40 * og + 8 * w, 8) for w in range(4)]; XR = V(80 + 40 * og, 4); XF = V(128 + 8 * og, 8)
        tx = [p.I("ds_read_b64_tr_b16", XR[2 * s_:2 * s_ + 2], vxr, mods=f"offset:{4096*og + 512*s_}") for s_ in range(2)]
        tp = [p.I("ds_read_b128", PPs[w][4 * k_:4 * k_ + 4], vpr, mods=f"offset:{w*K5_PR + 128*og + 16*k_}") for w in range(4) for k_ in range(2)]
        p.wait_lg(tx[-1])
        for j in range(4): unpack(p, XF[2 * j:2 * j + 2], XR[j], SM)
        p.wait_lg(tp[3])
        for j in range(8): p.I("v_add_f32", PPs[0][j], PPs[0][j], PPs[1][j])
        p.wait_lg(tp[7])
        for j in range(8): p.I("v_add_f32", PPs[2][j], PPs[2][j], PPs[3][j])
        Y = PPs[0]
        for j in range(8): p.I("v_add_f32", Y[j], Y[j], PPs[2][j])
        for j in range(4): p.I("v_cvt_pk_bf16_f32", TM[j], Y[2 * j], Y[2 * j + 1])
        for j in range(4): unpack(p, Y[2 * j:2 * j + 2], TM[j], SM)
        for j in range(8): p.I("v_mul_f32", Y[j], Y[j], G[og][j])
        for j in range(4): p.I("v_cvt_pk_bf16_f32", TM[j], Y[2 * j], Y[2 * j + 1])
        for j in range(4): unpack(p, Y[2 * j:2 * j + 2], TM[j], SM)
        for j in range(8): p.I("v_add_f32", Y[j], Y[j], XF[j])
        O = PPs[1][0:4]
        for j in range(4): p.I("v_cvt_pk_bf16_f32", O[j], Y[2 * j], Y[2 * j + 1])
        p.I("buffer_store_dwordx4", O, voo, so, S(12), mods=f"offen offset:{64*og}")
    stamp(p, 6)
    stamp_out(p, 7, sws, 3)
    p.label("L_k5_exit")
    p.I("s_endpgm")
    return p

HEADER = open("adaLN_cond__ssm_conv_h3__swiglu_ffn__prompt.s.ref").read().split("; Override")[0]

def build(kernels):
    s = HEADER
    for name, p, grid, block, lds in kernels:
        s += f"; @launch kernel={name} grid=({grid},1,1) block=({block},1,1) lds={lds}\n"
    s += '.amdgcn_target "amdgcn-amd-amdhsa--gfx950"\n.text\n'
    for name, p, grid, block, lds in kernels:
        s += kernel_header(name) + p.finalize()
        s += kernel_desc(name, p.maxv + 1, p.maxa + 1, max(p.maxs + 1, 16))
    return s

if __name__ == "__main__":
    ks = [("k1_kernel", gen_k1(), NMOD + NTR + NST, 256, 16384), ("k2_kernel", gen_k2(), NCONV, 512, K2_LDS),
          ("k4_kernel", gen_k4(), 256, 512, K4_LDS),
          ("k5_kernel", gen_k5(), 224, 256, K5_LDS)]
    for i in range(int(os.environ.get('EXTRA', '0'))):
        pe = Prog(); pe.I("v_mov_b32", V(1), 0); pe.I("s_endpgm"); ks.append((f"e{i}_kernel", pe, 256, 256, 0))
    open(sys.argv[1] if len(sys.argv) > 1 else "out.s", "w").write(build(ks))
```

```python
import sys, os
from asmgen import *

S_TOK = 2048; D = 448; F = 1792
ROWB = D * 2
TBB = D * 16
ARR = S_TOK * D * 2
WS_KV = 0x000000
WS_X = 0x200000
WS_X1 = 0x400000
X1P = 4096 + 256
ACP = 32768 + 1024
WS_ST1 = 0x600000
WS_MOD = 0x610000
MODP = 2688 * 4
WS_CS = 0x620000
WS_BI = 0x640000
WS_ACT = 0x800000
WS_WP = 0x1000000
WS_WD = 0x1400000
WS_SIZE = 0x1400000 + 1792 * 448 * 2
ST_WT = os.environ.get('ST_WT', 'sc1')

P_Q, P_K, P_V, P_SH, P_SK, P_SD, P_BX, P_WG, P_WU, P_WD, P_C, P_WM, P_OUT, P_DBG, P_WS = [16 + 2 * i for i in range(15)]

STAMP = int(os.environ.get('STAMP', '0'))
WS_DBG = 0x700000
def stamp(p, k, wait=True):
    if not STAMP: return
    p.I("s_memtime", S(76 + 2 * k, 2))
    if wait:
        p.I("s_waitcnt", "lgkmcnt(0)"); p.lg_done = p.lg_issued
def stamp_out(p, n, sws, kern):
    if not STAMP: return
    for k in range(n): p.I("v_mov_b32", V(8 + k), S(76 + 2 * k))
    for k in range(n, 8): p.I("v_mov_b32", V(8 + k), 0)
    p.I("v_lshrrev_b32", V(16), 6, V(0)); p.I("v_lshlrev_b32", V(16), 5, V(16))
    p.I("s_lshl_b32", S(74), S(2), 8); p.I("s_add_u32", S(74), S(74), WS_DBG + kern * 0x20000)
    p.I("v_and_b32", V(17), 63, V(0)); p.I("v_cmp_eq_u32", VCC, 0, V(17))
    p.I("s_and_saveexec_b64", S(72, 2), VCC)
    p.I("buffer_store_dwordx4", V(8, 4), V(16), sws, S(74), mods="offen")
    p.I("buffer_store_dwordx4", V(12, 4), V(16), sws, S(74), mods="offen offset:16")
    p.I("s_mov_b64", EXEC, S(72, 2))

STAMP_GROUPS = {0: [(0, 88), (88, 216), (216, 440)], 1: [(0, 224)], 2: [(0, 256)], 3: [(0, 224)]}
def load_kernargs(p):
    p.I("s_load_dwordx16", S(16, 16), S(0, 2), 0)
    p.I("s_load_dwordx8", S(32, 8), S(0, 2), 64)
    p.I("s_load_dwordx4", S(40, 4), S(0, 2), 96)
    p.I("s_load_dwordx2", S(44, 2), S(0, 2), 112)

def srd(p, dst, ptr, size, off=0):
    if isinstance(off, int) and off == 0:
        p.I("s_mov_b32", S(dst), S(ptr)); p.I("s_mov_b32", S(dst + 1), S(ptr + 1))
    else:
        p.I("s_add_u32", S(dst), S(ptr), off); p.I("s_addc_u32", S(dst + 1), S(ptr + 1), 0)
    p.I("s_mov_b32", S(dst + 2), size); p.I("s_mov_b32", S(dst + 3), 0x20000)
    return S(dst, 4)

def unpack(p, dst_pair, src, smask):
    p.I("v_lshlrev_b32", dst_pair[0], 16, src)
    p.I("v_and_b32", dst_pair[1], smask, src)

def rnd_pair(p, pair, tmp, smask):
    p.I("v_cvt_pk_bf16_f32", tmp, pair[0], pair[1])
    unpack(p, pair, tmp, smask)

def rnd1(p, r, smask=None):
    p.I("v_cvt_pk_bf16_f32", r, r, r)
    p.I("v_lshlrev_b32", r, 16, r)

def xrow_sum(p, x, t):
    p.I("v_mov_b32", t, x); p.I("v_permlane16_swap_b32", t, x); p.I("v_add_f32", x, x, t)
    p.I("v_mov_b32", t, x); p.I("v_permlane32_swap_b32", t, x); p.I("v_add_f32", x, x, t)

def wave_sum_multi(p, xs, ts):
    for m in ("quad_perm:[1,0,3,2]", "quad_perm:[2,3,0,1]", "row_half_mirror", "row_mirror"):
        for x in xs:
            p.I("v_add_f32_dpp", x, x, x, mods=m + " row_mask:0xf bank_mask:0xf")
    for swap in ("v_permlane16_swap_b32", "v_permlane32_swap_b32"):
        for x, t in zip(xs, ts): p.I("v_mov_b32", t, x)
        for x, t in zip(xs, ts): p.I(swap, t, x)
        for x, t in zip(xs, ts): p.I("v_add_f32", x, x, t)

def gemv64(p, wsrd, rowbytes, colbyte_s, ncoef, coef_fn, out_fn, tag, swsx, fl=''):
    SM = S(6)
    stamp(p, 1, False)
    p.I("s_mov_b32", SM, 0xffff0000)
    vco = V(1); vrg = V(2); voff = V(3)
    p.I("v_and_b32", vco, 7, V(0))
    p.I("v_lshrrev_b32", vrg, 3, V(0))
    p.I("s_mov_b32", S(7), rowbytes)
    p.I("v_mul_lo_u32", voff, vrg, S(7))
    p.I("v_lshl_add_u32", voff, vco, 4, voff)
    W = [V(8 + 4 * i, 4) for i in range(7)]
    tk = []
    tc = coef_fn[0](p, vrg)
    for i in range(7):
        p.I("s_add_u32", S(8), colbyte_s, i * 32 * rowbytes)
        tk.append(p.I("buffer_load_dwordx4", W[i], voff, wsrd, S(8), mods="offen " + fl))
    coefs = coef_fn[1](p, tc)
    stamp(p, 2, False)
    ACC = [V(108 + 8 * c, 8) for c in range(ncoef)]
    for c in range(ncoef):
        for j in range(8): p.I("v_mov_b32", ACC[c][j], 0)
    for i in range(7):
        U = V(124 + 8 * (i & 1), 8)
        p.wait_vm(tk[i])
        for j in range(4): unpack(p, U[2 * j:2 * j + 2], W[i][j], SM)
        for c in range(ncoef):
            for j in range(8):
                p.I("v_fmac_f32", ACC[c][j], coefs[c][i], U[j])
    stamp(p, 3, False)
    allacc = [ACC[c][j] for c in range(ncoef) for j in range(8)]
    for x in allacc:
        p.I("v_add_f32_dpp", x, x, x, mods="row_ror:8 row_mask:0xf bank_mask:0xf")
    T = [V(8 + i) for i in range(len(allacc))]
    for swap in ("v_permlane16_swap_b32", "v_permlane32_swap_b32"):
        for x, t in zip(allacc, T): p.I("v_mov_b32", t, x)
        for x, t in zip(allacc, T): p.I(swap, t, x)
        for x, t in zip(allacc, T): p.I("v_add_f32", x, x, t)
    vw = V(4); va = V(5)
    p.I("v_lshrrev_b32", vw, 6, V(0))
    p.I("v_lshlrev_b32", va, 8, vw)
    p.I("v_lshl_add_u32", va, vco, 5, va)
    p.I("v_and_b32", V(6), 63, V(0))
    p.I("v_cmp_gt_u32", VCC, 8, V(6))
    p.I("s_and_saveexec_b64", S(10, 2), VCC)
    for c in range(ncoef):
        p.I("ds_write_b128", va, ACC[c][0:4], mods=f"offset:{c*1024}")
        p.I("ds_write_b128", va, ACC[c][4:8], mods=f"offset:{c*1024+16}")
    p.I("s_mov_b64", EXEC, S(10, 2))
    p.wait_lg0()
    p.I("s_barrier")
    stamp(p, 4)
    stamp_out(p, 5, swsx, 0 if tag == "k1mod" else 1)
    p.I("v_readfirstlane_b32", S(10), vw)
    p.I("s_cmp_lg_u32", S(10), 0)
    p.I("s_cbranch_scc1", f"L_{tag}_done")
    p.I("v_lshlrev_b32", va, 2, V(0))
    res = []
    for c in range(ncoef):
        Rr = V(8 + 4 * c, 4)
        for w in range(4):
            p.I("ds_read_b32", Rr[w], va, mods=f"offset:{c*1024 + w*256}")
        res.append(Rr)
    p.wait_lg0()
    for c in range(ncoef):
        Rr = res[c]
        p.I("v_add_f32", Rr[0], Rr[0], Rr[1]); p.I("v_add_f32", Rr[2], Rr[2], Rr[3]); p.I("v_add_f32", Rr[0], Rr[0], Rr[2])
    out_fn(p, [r[0] for r in res], va)
    p.label(f"L_{tag}_done")
    p.I("s_endpgm")

NMOD = 88; NTR = 224; NST = 128
NT_IN = os.environ.get('NT_IN', 'nt')
CPF = int(os.environ.get('CPF', '1'))
def gen_k1():
    p = Prog()
    if CPF:
        p.I("s_cmp_ge_u32", S(2), 8)
        p.I("s_cbranch_scc1", "L_k1_main")
        p.I("s_getpc_b64", S(4, 2))
        p.raw("L_k1_pc:")
        p.I("v_lshlrev_b32", V(1), 7, V(0))
        p.raw("    v_cmp_gt_u32 vcc, (L_code_end - L_k1_pc), v1")
        p.I("s_and_saveexec_b64", S(6, 2), VCC)
        p.I("global_load_dword", V(2), V(1), S(4, 2))
        p.I("v_add_u32", V(1), 32768, V(1))
        p.raw("    v_cmp_gt_u32 vcc, (L_code_end - L_k1_pc), v1")
        p.I("s_and_saveexec_b64", S(6, 2), VCC)
        p.I("s_cbranch_execz", "L_k1_pfdone")
        p.I("global_load_dword", V(3), V(1), S(4, 2))
        p.label("L_k1_pfdone")
        p.I("s_waitcnt", "vmcnt(0)")
        p.I("s_endpgm")
        p.label("L_k1_main")
        p.reset_counters()
        p.I("s_sub_u32", S(2), S(2), 8)
    load_kernargs(p)
    stamp(p, 0, False)
    p.I("s_cmp_lt_u32", S(2), NMOD)
    p.I("s_cbranch_scc1", "L_k1_mod")
    p.I("s_sub_u32", S(3), S(2), NMOD)
    p.I("s_cmp_lt_u32", S(3), NST)
    p.I("s_cbranch_scc1", "L_k1_stats")
    p.I("s_sub_u32", S(3), S(3), NST)
    p.I("s_cmp_ge_u32", S(3), NTR)
    p.I("s_cbranch_scc1", "L_k1_exit")
    p.I("s_mul_hi_u32", S(4), S(3), 613566757)
    p.I("s_mul_i32", S(5), S(4), 7); p.I("s_sub_u32", S(5), S(3), S(5))
    SM = S(6)
    p.I("s_mov_b32", SM, 0xffff0000)
    p.I("s_mul_i32", S(7), S(4), 64 * ROWB); p.I("s_lshl_b32", S(8), S(5), 7); p.I("s_add_u32", S(7), S(7), S(8))
    vo = V(1); vo2 = V(2); voh = V(3); vsh = V(4); vcp = V(5); vtg = V(6)
    p.I("v_and_b32", vcp, 31, V(0)); p.I("v_lshrrev_b32", vtg, 5, V(0))
    p.I("v_mul_u32_u24", vo, 8 * ROWB, vtg); p.I("v_lshl_add_u32", vo, vcp, 2, vo); p.I("v_add_u32", vo, S(7), vo)
    p.I("v_add_u32", vo2, 4480, vo)
    p.I("v_subrev_u32", voh, 2688, vo)
    p.I("s_lshl_b32", S(8), S(5), 9)
    p.I("v_lshl_add_u32", vsh, vcp, 4, S(8))
    p.I("s_waitcnt", "lgkmcnt(0)")
    sq = srd(p, 48, P_Q, ARR); sk = srd(p, 52, P_K, ARR); sv = srd(p, 56, P_V, ARR)
    ssh = srd(p, 60, P_SH, D * 8); sws = srd(p, 64, P_WS, WS_SIZE)
    stamp(p, 1, False)
    KR = [V(8 + j) for j in range(11)]
    VR = [V(20 + j) for j in range(8)]
    QR = [V(28 + j) for j in range(8)]
    SH = V(36, 4)
    def rowload(dst, srdx, j, fl):
        if j < 5: return p.I("buffer_load_dword", dst, vo, srdx, 0, mods=f"offen offset:{j*896} {fl}")
        return p.I("buffer_load_dword", dst, vo2, srdx, 0, mods=f"offen offset:{(j-5)*896} {fl}")
    tsh = p.I("buffer_load_dwordx4", SH, vsh, ssh, 0, mods="offen")
    tk = []
    for j in range(3): tk.append(p.I("buffer_load_dword", KR[j], voh, sk, 0, mods=f"offen offset:{j*896} {NT_IN}"))
    for j in range(8): tk.append(rowload(KR[3 + j], sk, j, NT_IN))
    tv = [rowload(VR[j], sv, j, NT_IN) for j in range(8)]
    tq = [rowload(QR[j], sq, j, "") for j in range(8)]
    vlw = V(40); vlr = V(41); vgo = V(42); vt = V(43)
    p.I("v_and_b32", vt, 7, vcp); p.I("v_xor_b32", vt, vt, vtg)
    p.I("v_lshlrev_b32", vlw, 8, vcp); p.I("v_lshl_add_u32", vlw, vt, 4, vlw)
    p.I("v_lshrrev_b32", vt, 4, V(0)); p.I("v_xor_b32", vt, vt, V(0)); p.I("v_and_b32", vt, 7, vt)
    p.I("v_lshrrev_b32", vlr, 3, V(0)); p.I("v_lshlrev_b32", vgo, 12, vlr)
    p.I("v_lshlrev_b32", vlr, 7, vlr); p.I("v_lshl_add_u32", vlr, vt, 4, vlr)
    p.I("v_and_b32", vt, 7, V(0)); p.I("v_lshl_add_u32", vgo, vt, 4, vgo)
    p.I("s_lshl_b32", S(7), S(5), 18); p.I("s_lshl_b32", S(8), S(4), 7); p.I("s_add_u32", S(7), S(7), S(8))
    stamp(p, 2, False)
    Wt = [V(48 + 2 * t, 2) for t in range(4)]
    p.wait_vm(tsh)
    p.I("v_lshlrev_b32", Wt[0][0], 16, SH[0]); p.I("v_and_b32", Wt[1][0], SM, SH[0])
    p.I("v_lshlrev_b32", Wt[2][0], 16, SH[1]); p.I("v_and_b32", Wt[3][0], SM, SH[1])
    p.I("v_lshlrev_b32", Wt[0][1], 16, SH[2]); p.I("v_and_b32", Wt[1][1], SM, SH[2])
    p.I("v_lshlrev_b32", Wt[2][1], 16, SH[3]); p.I("v_and_b32", Wt[3][1], SM, SH[3])
    KF = [V(56 + 2 * j, 2) for j in range(11)]
    p.wait_vm(tk[-1])
    stamp(p, 3, False)
    for j in range(11): unpack(p, KF[j], KR[j], SM)
    ACC = [V(78 + 2 * s, 2) for s in range(8)]
    PR = [V(94 + 2 * s, 2) for s in range(8)]
    TM = [V(110 + s) for s in range(8)]
    for s in range(8): p.I("v_pk_mul_f32", ACC[s], KF[s], Wt[3])
    for s in range(8): p.I("v_cvt_pk_bf16_f32", TM[s], ACC[s][0], ACC[s][1])
    for s in range(8): unpack(p, ACC[s], TM[s], SM)
    for step in (1, 2, 3):
        for s in range(8): p.I("v_pk_mul_f32", PR[s], KF[s + step], Wt[3 - step])
        for s in range(8): p.I("v_cvt_pk_bf16_f32", TM[s], PR[s][0], PR[s][1])
        for s in range(8): unpack(p, PR[s], TM[s], SM)
        for s in range(8): p.I("v_pk_add_f32", ACC[s], ACC[s], PR[s])
        for s in range(8): p.I("v_cvt_pk_bf16_f32", TM[s], ACC[s][0], ACC[s][1])
        for s in range(8): unpack(p, ACC[s], TM[s], SM)
    stamp(p, 4, False)
    p.wait_vm(tv[-1])
    for s in range(8): unpack(p, PR[s], VR[s], SM)
    for s in range(8): p.I("v_pk_mul_f32", ACC[s], ACC[s], PR[s])
    G = [V(8, 4), V(12, 4)]
    for ch in range(2):
        for e2 in range(4):
            p.I("v_cvt_pk_bf16_f32", G[ch][e2], ACC[7 - 2 * e2][ch], ACC[6 - 2 * e2][ch])
    p.I("ds_write_b128", vlw, G[0]); p.I("ds_write_b128", vlw, G[1], mods="offset:128")
    p.I("s_mov_b32", S(9), 0x05040100); p.I("s_mov_b32", S(10), 0x07060302)
    XG = [V(20, 4), V(24, 4)]
    p.wait_vm(tq[-1])
    for e2 in range(4):
        p.I("v_perm_b32", XG[0][e2], QR[2 * e2 + 1], QR[2 * e2], S(9))
        p.I("v_perm_b32", XG[1][e2], QR[2 * e2 + 1], QR[2 * e2], S(10))
    p.I("ds_write_b128", vlw, XG[0], mods="offset:8192"); p.I("ds_write_b128", vlw, XG[1], mods="offset:8320")
    p.wait_lg0()
    stamp(p, 5)
    p.I("s_barrier")
    O = [V(56 + 4 * i, 4) for i in range(4)]
    to = [p.I("ds_read_b128", O[i], vlr, mods=f"offset:{4096*i}") for i in range(4)]
    for i in range(4):
        p.I("s_add_u32", S(8), S(7), (WS_X if i >= 2 else WS_KV) + (i & 1) * 32 * 4096)
        p.wait_lg(to[i])
        p.I("buffer_store_dwordx4", O[i], vgo, sws, S(8), mods="offen")
    stamp(p, 6)
    if STAMP:
        p.wait_vm0(); stamp(p, 7)
    stamp_out(p, 8, sws, 0)
    p.I("s_endpgm")
    p.label("L_k1_stats")
    p.reset_counters()
    SM = S(6)
    p.I("s_mov_b32", SM, 0xffff0000)
    vlane = V(6); vst = V(5)
    p.I("v_and_b32", vlane, 63, V(0))
    p.I("v_lshrrev_b32", vst, 6, V(0))
    p.I("v_mul_u32_u24", vst, 4 * ROWB, vst)
    p.I("v_lshl_add_u32", vst, vlane, 4, vst)
    p.I("s_mul_i32", S(4), S(3), 16 * ROWB)
    p.I("v_cmp_gt_u32", S(14, 2), 56, vlane)
    p.I("s_mov_b64", S(10, 2), EXEC)
    p.I("s_waitcnt", "lgkmcnt(0)")
    sq = srd(p, 48, P_Q, ARR); sws = srd(p, 64, P_WS, WS_SIZE)
    stamp(p, 1, False)
    XS = [V(8 + 4 * i, 4) for i in range(4)]
    SU = [V(24 + i) for i in range(4)]; TT = [V(28 + i) for i in range(4)]; VA = [V(32 + i) for i in range(4)]
    for i in range(4): p.I("v_mov_b32", SU[i], 0); p.I("v_mov_b32", VA[i], 0)
    p.I("s_mov_b32", S(7), 0x3f803f80)
    p.I("s_mov_b64", EXEC, S(14, 2))
    tx = [p.I("buffer_load_dwordx4", XS[i], vst, sq, S(4), mods=f"offen offset:{i*896}") for i in range(4)]
    for i in range(4):
        p.wait_vm(tx[i])
        for j in range(4): p.I("v_dot2_f32_bf16", SU[i], XS[i][j], S(7), SU[i])
    stamp(p, 2, False)
    p.I("s_mov_b64", EXEC, S(10, 2))
    wave_sum_multi(p, SU, TT)
    p.I("s_mov_b32", S(8), 0x3b124925)
    for i in range(4): p.I("v_mul_f32", SU[i], S(8), SU[i])
    p.I("s_mov_b64", EXEC, S(14, 2))
    for i in range(4):
        U = V(40 + 8 * i, 8)
        for j in range(4): unpack(p, U[2 * j:2 * j + 2], XS[i][j], SM)
        for j in range(8): p.I("v_sub_f32", U[j], U[j], SU[i])
    for j in range(8):
        for i in range(4):
            U = V(40 + 8 * i, 8)
            p.I("v_fmac_f32", VA[i], U[j], U[j])
    p.I("s_mov_b64", EXEC, S(10, 2))
    wave_sum_multi(p, VA, TT)
    O = V(36, 4)
    p.I("s_mov_b32", S(9), 0x3727c5ac)
    for i in range(4): p.I("v_mul_f32", VA[i], S(8), VA[i])
    for i in range(4): rnd1(p, VA[i])
    for i in range(4): p.I("v_add_f32", VA[i], S(9), VA[i])
    for i in range(4): rnd1(p, VA[i])
    for i in range(4): p.I("v_sqrt_f32", VA[i], VA[i])
    for i in range(4): p.I("v_cvt_pk_bf16_f32", O[i], SU[i], VA[i])
    p.I("v_lshrrev_b32", V(1), 6, V(0))
    p.I("v_lshlrev_b32", V(1), 4, V(1))
    p.I("s_lshl_b32", S(4), S(3), 6)
    p.I("s_add_u32", S(4), S(4), WS_ST1)
    p.I("v_cmp_eq_u32", VCC, 0, vlane)
    p.I("s_and_saveexec_b64", S(10, 2), VCC)
    p.I("buffer_store_dwordx4", O, V(1), sws, S(4), mods="offen")
    p.I("s_mov_b64", EXEC, S(10, 2))
    stamp(p, 3)
    stamp_out(p, 4, sws, 0)
    p.label("L_k1_exit")
    p.I("s_endpgm")
    p.label("L_k1_mod")
    p.reset_counters()
    p.I("s_cmp_ge_u32", S(2), 84)
    p.I("s_cbranch_scc1", "L_k1_exit")
    p.I("s_lshr_b32", S(3), S(2), 1); p.I("s_and_b32", S(5), S(2), 1)
    p.I("s_waitcnt", "lgkmcnt(0)")
    swm = srd(p, 48, P_WM, D * 6 * D * 2); sc = srd(p, 52, P_C, D * 2); sws = srd(p, 64, P_WS, WS_SIZE)
    p.I("s_lshl_b32", S(4), S(3), 7); p.I("s_mul_i32", S(12), S(5), 224 * 6 * D * 2); p.I("s_add_u32", S(4), S(4), S(12))
    p.I("s_mul_i32", S(12), S(5), 448)
    def coef_ld(p, vrg):
        C = [V(64 + i) for i in range(7)]
        p.I("v_lshlrev_b32", V(92), 1, vrg)
        return [p.I("buffer_load_ushort", C[i], V(92), sc, S(12), mods=f"offen offset:{i*64}") for i in range(7)]
    def coef(p, t):
        C = [V(64 + i) for i in range(7)]; E = [V(78 + i) for i in range(7)]
        p.I("s_mov_b32", S(9), 0xbfb8aa3b)
        p.wait_vm(t[-1])
        for i in range(7): p.I("v_lshlrev_b32", C[i], 16, C[i])
        for i in range(7): p.I("v_mul_f32", E[i], S(9), C[i])
        for i in range(7): p.I("v_exp_f32", E[i], E[i])
        for i in range(7): p.I("v_add_f32", E[i], 1.0, E[i])
        for i in range(7): p.I("v_rcp_f32", E[i], E[i])
        for i in range(7): p.I("v_mul_f32", C[i], C[i], E[i])
        for i in range(7): rnd1(p, C[i])
        return [C]
    def outf(p, res, va):
        p.I("s_lshl_b32", S(4), S(3), 8); p.I("s_mul_i32", S(12), S(5), MODP); p.I("s_add_u32", S(4), S(4), S(12))
        p.I("s_add_u32", S(4), S(4), WS_MOD)
        p.I("buffer_store_dword", res[0], va, sws, S(4), mods="offen")
    gemv64(p, swm, 6 * D * 2, S(4), 1, (coef_ld, coef), outf, "k1mod", sws, NT_IN)
    return p

KC0 = 0; KCS = 4160; KCC = 4 * KCS
KV0 = 2 * KCC; KVC = 5120
P0 = KV0 + 2 * KVC; PS = 9216
SIDE0 = P0 + 4 * PS
HK0 = SIDE0 + 4096
K2_LDS = HK0
NCONV = 224
PKSIDE = int(os.environ.get('PKSIDE', '1'))
def k2_post(p, c, SM, sws, X, H, KVD, GA2, base):
    vr = V(base); vt = V(base + 1); PPa = V(base + 2, 8); PPb = V(base + 10, 8); TM = V(base + 18, 4)
    def pr(R_, j): return R_[2 * j:2 * j + 2]
    tp = []
    for h, PPx in enumerate((PPa, PPb)):
        for k_ in range(2):
            tp.append(p.I("ds_read_b128", PPx[4 * k_:4 * k_ + 4], vr, mods=f"offset:{(2*c+h)*PS + 16*k_}"))
    def rnd8(R_):
        for j in range(4): p.I("v_cvt_pk_bf16_f32", TM[j], R_[2 * j], R_[2 * j + 1])
        for j in range(4): unpack(p, pr(R_, j), TM[j], SM)
    Y = PPa
    p.wait_lg(tp[-1])
    for j in range(4): p.I("v_pk_add_f32", pr(Y, j), pr(PPa, j), pr(PPb, j))
    rnd8(Y)
    for j in range(4): p.I("v_pk_add_f32", pr(Y, j), pr(Y, j), pr(KVD, j))
    rnd8(Y)
    for j in range(4): p.I("v_pk_mul_f32", pr(Y, j), pr(Y, j), pr(H, j))
    rnd8(Y)
    for j in range(4): p.I("v_pk_mul_f32", pr(Y, j), pr(Y, j), GA2)
    rnd8(Y)
    for j in range(4): p.I("v_pk_add_f32", pr(Y, j), pr(Y, j), pr(X, j))
    for j in range(4): p.I("v_cvt_pk_bf16_f32", TM[j], Y[2 * j], Y[2 * j + 1])
    p.I("buffer_store_dwordx4", TM, vt, sws, S(12), mods="offen")

def k2_post_addr(p, c, base, vtid):
    vr = V(base); vt = V(base + 1)
    p.I("v_lshrrev_b32", vr, 2, vtid); p.I("v_lshlrev_b32", vr, 4, vr); p.I("v_lshl_add_u32", vr, vtid, 5, vr); p.I("v_add_u32", vr, P0, vr)
    p.I("v_lshlrev_b32", vt, 4, vtid)
    p.I("s_mul_i32", S(12), S(3), 2 * X1P); p.I("s_add_u32", S(12), S(12), WS_X1 + c * X1P)

def k2_pre_ops(SM, XG, SPk, KG, X, H, KVD, M_, R_, TM, ca1, sa, dd):
    L = []
    def F_(*a, **k): L.append((a, k))
    for j in range(4): F_("v_lshlrev_b32", X[2 * j], 16, XG[j]); F_("v_and_b32", X[2 * j + 1], SM, XG[j])
    for i in range(8): F_("v_and_b32", R_[i], SM, SPk[i]); F_("v_lshlrev_b32", M_[i], 16, SPk[i])
    for i in range(8): F_("v_rcp_f32", R_[i], R_[i]); F_("v_sub_f32", H[i], X[i], M_[i])
    def rnd(R__):
        for j in range(4): F_("v_cvt_pk_bf16_f32", TM[j], R__[2 * j], R__[2 * j + 1])
        for j in range(4): F_("v_lshlrev_b32", R__[2 * j], 16, TM[j]); F_("v_and_b32", R__[2 * j + 1], SM, TM[j])
    rnd(H)
    for i in range(8): F_("v_mul_f32", H[i], H[i], R_[i])
    rnd(H)
    for i in range(8): F_("v_mul_f32", H[i], H[i], ca1)
    rnd(H)
    for i in range(8): F_("v_add_f32", H[i], H[i], sa)
    rnd(H)
    F_("KGWAIT")
    for e2 in range(4): F_("v_lshlrev_b32", KVD[7 - 2 * e2], 16, KG[e2]); F_("v_and_b32", KVD[6 - 2 * e2], SM, KG[e2])
    for i in range(8): F_("v_mul_f32", KVD[i], KVD[i], dd)
    rnd(KVD)
    return L

def k2_consts(p, SM, c, ca1, sa, dd, GA2, tmp):
    P_ = V(ca1.n, 2)
    p.I("v_mov_b32", ca1, S(61)); p.I("v_mov_b32", sa, S(60)); p.I("v_mov_b32", GA2[0], S(62))
    p.I("v_add_f32", ca1, S(64), ca1); p.I("v_add_f32", sa, S(63), sa); p.I("v_add_f32", GA2[0], S(65), GA2[0])
    rnd_pair(p, P_, tmp, SM); rnd1(p, GA2[0]); p.I("v_mov_b32", GA2[1], GA2[0])
    p.I("v_add_f32", ca1, 1.0, ca1); rnd1(p, ca1)
    p.I("v_mov_b32", dd, S(66))
    if c == 0: p.I("v_lshlrev_b32", dd, 16, dd)
    else: p.I("v_and_b32", dd, SM, dd)

def k2_const_loads(p, c):
    p.I("s_add_u32", S(98), S(P_WS), S(9)); p.I("s_addc_u32", S(99), S(P_WS + 1), 0)
    for i in range(3):
        p.I("s_load_dword", S(60 + i), S(98, 2), i * D * 4 + 4 * c); p.I("s_load_dword", S(63 + i), S(98, 2), MODP + i * D * 4 + 4 * c)
    p.I("s_lshl_b32", S(9), S(3), 2)
    p.I("s_add_u32", S(58), S(P_SD), S(9)); p.I("s_addc_u32", S(59), S(P_SD + 1), 0)
    p.I("s_load_dword", S(66), S(58, 2), 0)

def k2_kvaddr(p, vk, vt, vtid, c):
    p.I("v_and_b32", vk, 3, vtid); p.I("v_lshlrev_b32", vk, 8, vk)
    p.I("v_bfe_u32", vt, vtid, 2, 4); p.I("v_lshl_add_u32", vk, vt, 4, vk)
    p.I("v_lshrrev_b32", vt, 6, vtid); p.I("v_lshl_add_u32", vk, vt, 10, vk)

def gen_k2():
    p = Prog()
    load_kernargs(p)
    stamp(p, 0, False)
    p.I("s_cmp_ge_u32", S(2), NCONV)
    p.I("s_cbranch_scc1", "L_k2_exit")
    SM = S(6)
    p.I("s_mov_b32", SM, 0xffff0000)
    p.I("s_and_b32", S(3), S(2), 7); p.I("s_mul_i32", S(3), S(3), 28); p.I("s_lshr_b32", S(4), S(2), 3)
    p.I("s_add_u32", S(3), S(3), S(4))
    vlane = V(1); vw = V(2)
    p.I("v_and_b32", vlane, 63, V(0))
    p.I("v_lshrrev_b32", vw, 6, V(0))
    p.I("v_readfirstlane_b32", S(4), vw)
    p.I("s_lshl_b32", S(9), S(3), 3); p.I("s_add_u32", S(9), S(9), WS_MOD)
    p.I("s_cmp_ge_u32", S(4), 4)
    p.I("s_cbranch_scc1", "L_k2_side")
    p.I("s_lshr_b32", S(5), S(4), 1)
    p.I("s_and_b32", S(7), S(4), 1)
    p.I("s_lshl_b32", S(8), S(3), 1); p.I("s_add_u32", S(8), S(8), S(5))
    p.I("s_lshl_b32", S(10), S(8), 12)
    KW = [V(88 + 6 * i, 6) for i in range(2)]
    vkl = V(3); vd = V(32); vd2 = V(33); vxo = V(6)
    p.I("s_lshl_b32", S(12), S(7), 11)
    p.I("v_lshl_add_u32", vkl, vlane, 4, S(12))
    p.I("v_and_b32", vd, 15, vlane); p.I("v_lshlrev_b32", vd, 6, vd)
    p.I("v_lshrrev_b32", vd2, 4, vlane); p.I("v_lshl_add_u32", vd, vd2, 4, vd)
    p.I("s_add_u32", S(13), S(12), S(10))
    p.I("s_mul_i32", S(14), S(5), KVC); p.I("s_add_u32", S(14), S(14), KV0)
    p.I("s_add_u32", S(15), S(12), S(14))
    p.I("s_lshl_b32", S(11), S(3), 13); p.I("s_add_u32", S(11), S(11), WS_X + 4096)
    p.I("v_lshlrev_b32", vxo, 4, V(0))
    p.I("s_waitcnt", "lgkmcnt(0)")
    ssk = srd(p, 48, P_SK, ARR); sws = srd(p, 52, P_WS, WS_SIZE)
    stamp(p, 1, False)
    tkw = []
    for i in range(2):
        p.I("buffer_load_dwordx4", KW[i][0:4], vkl, ssk, S(10), mods=f"offen offset:{1024*i} {NT_IN}")
        tkw.append(p.I("buffer_load_dwordx2", KW[i][4:6], vkl, ssk, S(10), mods=f"offen offset:{1024*i+16} {NT_IN}"))
    for qq in range(2):
        p.I("s_add_u32", M0, S(15), 1024 + qq * 1024)
        p.I("s_add_u32", S(70), S(13), WS_KV + qq * 1024)
        tdma = p.I("buffer_load_dwordx4", vd, sws, S(70), mods="offen lds")
    XG = V(8, 4); SPk = V(16, 8); vso = V(7)
    p.I("v_lshlrev_b32", vso, 5, V(0)); p.I("s_mov_b32", S(71), WS_ST1)
    txg = p.I("buffer_load_dwordx4", XG, vxo, sws, S(11), mods="offen")
    for i in range(2): txg = p.I("buffer_load_dwordx4", SPk[4 * i:4 * i + 4], vso, sws, S(71), mods=f"offen offset:{16*i}")
    k2_const_loads(p, 1)
    stamp(p, 2, False)
    p.I("s_mul_i32", S(15), S(5), KCC)
    Z = V(36, 4); va = V(35); vb = V(40)
    for i in range(4): p.I("v_mov_b32", Z[i], 0)
    p.I("s_lshl_b32", S(12), S(7), 9); p.I("s_add_u32", S(12), S(12), S(14))
    p.I("v_lshl_add_u32", va, vlane, 4, S(12))
    p.I("v_bfe_u32", vb, vlane, 2, 2); p.I("v_mul_u32_u24", vb, KCS, vb)
    p.I("v_and_b32", V(41), 3, vlane); p.I("v_lshl_add_u32", vb, V(41), 4, vb); p.I("v_add_u32", vb, S(15), vb)
    p.I("v_cmp_gt_u32", VCC, 32, vlane)
    p.I("v_cndmask_b32", va, vb, va, VCC)
    p.I("s_lshl_b32", S(13), S(7), 4); p.I("s_sub_u32", S(13), 48, S(13))
    p.I("v_cmp_gt_u32", VCC, S(13), vlane)
    p.I("s_and_saveexec_b64", S(68, 2), VCC)
    p.I("ds_write_b128", va, Z)
    p.I("s_mov_b64", EXEC, S(68, 2))
    vA = V(42); vB = V(43); vi = V(44); vq = V(45); vt = V(46); vp = V(47); vk = V(49)
    p.I("v_and_b32", vi, 15, vlane); p.I("v_lshrrev_b32", vq, 4, vlane)
    p.I("v_add_u32", vt, 1, vi)
    p.I("v_and_b32", vA, 3, vt); p.I("v_mul_u32_u24", vA, KCS, vA)
    p.I("v_and_b32", vt, 28, vt); p.I("v_lshl_add_u32", vA, vt, 1, vA)
    p.I("v_lshlrev_b32", vt, 4, vq); p.I("v_sub_u32", vA, vA, vt)
    p.I("s_lshl_b32", S(13), S(7), 9); p.I("s_add_u32", S(12), S(15), S(13))
    p.I("s_add_u32", S(12), S(12), KC0 + 48)
    p.I("v_add_u32", vA, S(12), vA)
    VB = [V(24 + r) for r in range(8)]
    p.I("s_lshl_b32", S(12), S(7), 3); p.I("s_sub_u32", S(12), 16, S(12))
    p.I("v_lshl_add_u32", vB, vq, 8, S(14))
    p.I("v_add_u32", V(48), S(12), vi)
    for r in range(8):
        p.I("v_subrev_u32", vt, r, V(48))
        p.I("v_and_b32", VB[r], 15, vt); p.I("v_lshl_add_u32", VB[r], VB[r], 4, vB)
        p.I("v_lshrrev_b32", vt, 4, vt); p.I("v_lshl_add_u32", VB[r], vt, 10, VB[r])
    p.I("v_mul_u32_u24", vp, 144, vi); p.I("v_lshl_add_u32", vp, vq, 4, vp)
    p.I("s_mul_i32", S(12), S(4), PS); p.I("s_add_u32", S(12), S(12), P0)
    p.I("v_add_u32", vp, S(12), vp)
    k2_kvaddr(p, vk, vt, V(0), 1)
    k2_post_addr(p, 1, 120, V(0))
    vcw = V(34); FX = V(4, 2)
    p.I("v_add_u32", vcw, S(15), vkl)
    p.I("v_lshlrev_b32", vb, 4, vlane); p.I("v_sub_u32", vb, 48, vb)
    p.I("v_mul_u32_u24", va, KCS, vlane); p.I("v_add_u32", va, S(15), va)
    p.I("s_lshl_b32", S(13), S(7), 2); p.I("s_sub_u32", S(13), 4, S(13))
    p.I("v_cmp_gt_u32", S(72, 2), S(13), vlane)
    ACC = [[A(8 * j + 4 * m, 4) for m in range(2)] for j in range(4)]
    for i in range(2):
        AL = V(100 + 6 * i, 6)
        p.wait_vm(tkw[i])
        if i == 0: stamp(p, 3, False)
        o = KC0 + 64 + 1024 * i
        p.I("ds_write_b128", vcw, KW[i][0:4], mods=f"offset:{o}")
        for j in range(5): p.I("v_alignbit_b32", AL[j], KW[i][j + 1], KW[i][j], 16)
        p.I("ds_write_b128", vcw, AL[0:4], mods=f"offset:{o + KCS}")
        C2 = V(112, 4); C3 = V(116, 4)
        for j in range(4): p.I("v_mov_b32", C2[j], KW[i][j + 1])
        p.I("ds_write_b128", vcw, C2, mods=f"offset:{o + 2*KCS}")
        for j in range(4): p.I("v_mov_b32", C3[j], AL[j + 1])
        p.I("ds_write_b128", vcw, C3, mods=f"offset:{o + 3*KCS}")
    p.I("v_readfirstlane_b32", S(70), KW[0][0]); p.I("v_readfirstlane_b32", S(71), KW[0][1])
    p.I("v_mov_b32", FX[0], S(70)); p.I("v_mov_b32", FX[1], S(71))
    p.I("v_lshlrev_b64", FX, vb, FX)
    p.I("v_lshlrev_b64", FX, 16, FX)
    p.I("s_mov_b64", EXEC, S(72, 2))
    p.I("ds_write_b64", va, FX, mods="offset:56")
    p.I("s_mov_b64", EXEC, S(68, 2))
    stamp(p, 4, False)
    p.I("s_waitcnt", "lgkmcnt(0)"); p.lg_done = p.lg_issued
    ca1 = V(50); sa = V(51); dd = V(52); GA2 = V(12, 2)
    k2_consts(p, SM, 1, ca1, sa, dd, GA2, V(53))
    X = V(144, 8); H = V(152, 8); KVD = V(160, 8); M_ = V(168, 8); R_ = V(176, 8); TMf = V(184, 4); KG = V(188, 4)
    fill = k2_pre_ops(SM, XG, SPk, KG, X, H, KVD, M_, R_, TMf, ca1, sa, dd)
    p.wait_vm(tdma)
    stamp(p, 5)
    p.I("s_barrier")
    stamp(p, 6)
    BB = [[V(56 + 16 * s_ + 4 * t, 4) for t in range(4)] for s_ in range(2)]
    AR = [V(88 + 4 * i, 4) for i in range(8)]
    loads = []; mf = []
    acount = 0
    for rp in range(8):
        bs = BB[rp & 1]
        bidx = {}
        def addB(t):
            loads.append(("b128", bs[t], VB[rp], 1024 * t)); bidx[t] = len(loads) - 1
        first = True
        for ip in range(4):
            for m in range(2):
                ar = AR[acount % 8]; acount += 1
                off = 64 * rp + 1024 * ip + 32 * m
                if first: addB(0)
                loads.append(("b64", ar[0:2], vA, off)); loads.append(("b64", ar[2:4], vA, off + 8))
                aidx = len(loads) - 1
                if first:
                    addB(1); addB(2); addB(3); first = False
                for j in range(ip, 4):
                    mf.append((ACC[j][m], ar, bs[j - ip], max(aidx, bidx[j - ip]), rp == 0 and ip == 0))
    LOOK = 13
    tick = {}
    lastuse = {}
    for mi, (acc, a_, b_, need, z) in enumerate(mf):
        for rr in a_.regs() + b_.regs(): lastuse.setdefault(rr, []).append((mi, need))
    def issue(li, mi_done):
        kind, dst, va_, off = loads[li]
        for rr in dst.regs():
            for (mi, need) in lastuse[rr]:
                if need < li and mi >= mi_done: raise AssertionError(("WAR", li, mi, rr))
        tick[li] = p.I("ds_read_b128" if kind == "b128" else "ds_read_b64", dst, va_, mods=f"offset:{off}")
    nl = 0
    tkg = p.I("ds_read_b128", KG, vk, mods=f"offset:{KV0 + KVC + 1024}")
    while nl < LOOK: issue(nl, 0); nl += 1
    p.wait_vm(txg)
    def emitf():
        a, k = fill.pop(0)
        if a[0] == "KGWAIT": p.wait_lg(tkg)
        else: p.I(*a, **k)
    for mi, (acc, a_, b_, need, z) in enumerate(mf):
        assert need < nl
        p.wait_lg(tick[need])
        p.I("v_mfma_f32_16x16x32_bf16", acc, a_, b_, 0 if z else acc)
        if nl < len(loads): issue(nl, mi + 1); nl += 1
        if fill: emitf()
    while fill: emitf()
    stamp(p, 7)
    for j in range(4):
        for m in range(2):
            p.I("ds_write_b128", vp, ACC[j][m], mods=f"offset:{2304*j + 64*m}")
    p.wait_lg0()
    p.I("s_barrier")
    k2_post(p, 1, SM, sws, X, H, KVD, GA2, 120)
    stamp_out(p, 8, sws, 1)
    p.I("s_endpgm")
    p.label("L_k2_side")
    p.reset_counters()
    p.I("s_sub_u32", S(4), S(4), 4)
    p.I("s_mul_hi_u32", S(7), S(2), 153391690); p.I("s_mul_i32", S(8), S(7), 28); p.I("s_sub_u32", S(8), S(2), S(8))
    vtt = V(3); vt = V(6); vo = V(7); vco = V(8); vst = V(9); vt2 = V(10); vxo = V(4); vso = V(5); vk = V(11); vhk = V(12)
    p.I("v_subrev_u32", vtt, 256, V(0))
    p.I("v_lshlrev_b32", vo, 2, vlane)
    p.I("v_and_b32", vco, 7, vlane); p.I("v_lshlrev_b32", vco, 2, vco)
    p.I("s_cmp_ge_u32", S(8), 14)
    p.I("s_cselect_b32", S(13), 14, 0); p.I("s_cselect_b32", S(10), 256, 0)
    p.I("s_sub_u32", S(13), S(8), S(13))
    p.I("s_lshl_b32", S(11), S(13), 3)
    p.I("v_lshrrev_b32", vt, 3, vlane); p.I("v_add_u32", vt, S(11), vt)
    p.I("s_mov_b32", S(11), 28672)
    p.I("v_mul_lo_u32", vst, vt, S(11))
    p.I("v_and_b32", vt, 1, vlane); p.I("v_lshl_add_u32", vst, vt, 5, vst)
    p.I("v_bfe_u32", vt, vlane, 1, 1); p.I("v_lshl_add_u32", vst, vt, 7, vst)
    p.I("v_bfe_u32", vt, vlane, 2, 1); p.I("v_lshl_add_u32", vst, vt, 6, vst)
    p.I("s_mul_i32", S(14), S(7), 7); p.I("s_add_u32", S(14), S(14), S(4))
    p.I("s_lshl_b32", S(11), S(14), 9); p.I("s_add_u32", S(11), S(11), S(10)); p.I("s_add_u32", S(11), S(11), WS_WP)
    p.I("s_mul_i32", S(56), S(14), 8 * 3584); p.I("s_lshl_b32", S(57), S(13), 8); p.I("s_add_u32", S(56), S(56), S(57))
    p.I("s_lshl_b32", S(57), S(14), 5); p.I("s_add_u32", S(57), S(57), WS_MOD + 3 * D * 4)
    p.I("s_lshl_b32", S(15), S(3), 13); p.I("s_add_u32", S(15), S(15), WS_X)
    p.I("v_lshlrev_b32", vxo, 4, vtt); p.I("v_lshlrev_b32", vso, 5, vtt)
    k2_kvaddr(p, vk, vt, vtt, 0)
    p.I("s_waitcnt", "lgkmcnt(0)")
    stamp(p, 1, False)
    p.I("s_cmp_ge_u32", S(8), 14)
    p.I("s_cselect_b32", S(46), S(P_WU), S(P_WG)); p.I("s_cselect_b32", S(47), S(P_WU + 1), S(P_WG + 1))
    sw = srd(p, 48, 46, D * F * 2); sws = srd(p, 52, P_WS, WS_SIZE)
    k2_const_loads(p, 0)
    WR = [[V(16 + 8 * ps + j) for j in range(8)] for ps in range(2)]
    CF = [V(32 + 4 * ps, 4) for ps in range(2)]
    tw = {}; tcf = {}
    for ps in range(2):
        for a_ in range(4):
            p.I("s_add_u32", S(70), S(57), (a_ & 1) * D * 4 + (a_ >> 1) * MODP + ps * 128)
            tcf[ps] = p.I("buffer_load_dword", CF[ps][a_], vco, sws, S(70), mods="offen")
        for j in range(8):
            p.I("s_add_u32", S(70), S(56), (32 * ps + j) * 3584)
            tw[ps] = p.I("buffer_load_dword", WR[ps][j], vo, sw, S(70), mods=f"offen {NT_IN}")
    XG = V(40, 4); SPk = V(48, 8)
    p.I("s_mov_b32", S(71), WS_ST1)
    p.I("buffer_load_dwordx4", XG, vxo, sws, S(15), mods="offen")
    for i in range(2): tst = p.I("buffer_load_dwordx4", SPk[4 * i:4 * i + 4], vso, sws, S(71), mods=f"offen offset:{16*i}")
    AS = V(96, 4); AS2 = V(124, 4)
    for i in range(4): p.I("v_mov_b32", AS[i], 0); p.I("v_mov_b32", AS2[i], 0)
    p.I("s_mov_b32", S(59), 0x3f803f80)
    k2_post_addr(p, 0, 144, vtt)
    p.I("s_mov_b32", S(97), S(12))
    stamp(p, 2, False)
    p.I("s_barrier")
    stamp(p, 3, False)
    for ps in range(2):
        if ps == 1:
            p.I("s_cmp_eq_u32", S(4), 3); p.I("s_cbranch_scc1", "L_k2_skip1")
        cf = CF[ps]
        p.wait_vm(tcf[ps])
        p.I("v_add_f32", cf[0], cf[0], cf[2]); p.I("v_add_f32", cf[1], cf[1], cf[3])
        rnd_pair(p, cf[0:2], cf[2], SM)
        p.I("v_add_f32", cf[1], 1.0, cf[1]); rnd1(p, cf[1])
        for j in range(8): p.I("v_readlane_b32", S(16 + j), cf[0], j); p.I("v_readlane_b32", S(24 + j), cf[1], j)
        U0 = V(100, 8); U1 = V(108, 8); O = [V(116, 4), V(120, 4)]
        p.wait_vm(tw[ps])
        if ps == 0: stamp(p, 4, False)
        for j in range(8): p.I("v_lshlrev_b32", U0[j], 16, WR[ps][j]); p.I("v_and_b32", U1[j], SM, WR[ps][j])
        for j in range(8):
            A_ = AS if j & 1 else AS2
            p.I("v_fmac_f32", A_[2], S(16 + j), U0[j]); p.I("v_fmac_f32", A_[3], S(16 + j), U1[j])
            p.I("v_mul_f32", U0[j], S(24 + j), U0[j]); p.I("v_mul_f32", U1[j], S(24 + j), U1[j])
        for j in range(4): p.I("v_cvt_pk_bf16_f32", O[0][j], U0[2 * j], U0[2 * j + 1]); p.I("v_cvt_pk_bf16_f32", O[1][j], U1[2 * j], U1[2 * j + 1])
        p.I("s_add_u32", S(70), S(11), ps * 2048)
        if ps == 0:
            p.I("buffer_store_dwordx4", O[0], vst, sws, S(70), mods=f"offen {ST_WT}")
            p.I("buffer_store_dwordx4", O[1], vst, sws, S(70), mods=f"offen offset:16 {ST_WT}")
        else:
            p.raw(f"    buffer_store_dwordx4 {O[0]}, {vst}, {sws}, s70 offen {ST_WT}")
            p.raw(f"    buffer_store_dwordx4 {O[1]}, {vst}, {sws}, s70 offen offset:16 {ST_WT}")
            p.I("s_nop", 1)
        for j in range(4):
            unpack(p, U0[2 * j:2 * j + 2], O[0][j], SM); unpack(p, U1[2 * j:2 * j + 2], O[1][j], SM)
        for j in range(4):
            p.I("v_add_f32", U0[j], U0[j], U0[4 + j]); p.I("v_add_f32", U1[j], U1[j], U1[4 + j])
        for j in range(2):
            p.I("v_add_f32", U0[j], U0[j], U0[2 + j]); p.I("v_add_f32", U1[j], U1[j], U1[2 + j])
        p.I("v_add_f32", AS[0], AS[0], U0[0]); p.I("v_add_f32", AS[1], AS[1], U1[0]); p.I("v_add_f32", AS2[0], AS2[0], U0[1]); p.I("v_add_f32", AS2[1], AS2[1], U1[1])
    p.label("L_k2_skip1")
    p.I("s_nop", 4)
    p.wait_vm(tst)
    for i in range(4):
        p.I("v_add_f32", AS[i], AS[i], AS2[i])
    p.I("s_lshl_b32", S(70), S(4), 10); p.I("s_add_u32", S(70), S(70), SIDE0)
    p.I("v_lshl_add_u32", vt, vlane, 4, S(70))
    p.I("ds_write_b128", vt, AS)
    stamp(p, 5, False)
    KG = V(16, 4)
    p.I("s_waitcnt", "lgkmcnt(0)"); p.lg_done = p.lg_issued
    tkg = p.I("ds_read_b128", KG, vk, mods=f"offset:{KV0 + 1024}")
    ca1 = V(24); sa = V(25); dd = V(26); GA2 = V(36, 2)
    k2_consts(p, SM, 0, ca1, sa, dd, GA2, V(38))
    X = V(72, 8); H = V(88, 8); KVD = V(108, 8)
    p.wait_vm(tst)
    for a_, k_ in k2_pre_ops(SM, XG, SPk, KG, X, H, KVD, V(56, 8), V(64, 8), V(124, 4), ca1, sa, dd):
        if a_[0] == "KGWAIT": p.wait_lg(tkg)
        else: p.I(*a_, **k_)
    p.wait_lg0()
    stamp(p, 6)
    p.I("s_barrier")
    p.I("s_mov_b32", S(12), S(97))
    k2_post(p, 0, SM, sws, X, H, KVD, GA2, 144)
    stamp(p, 7)
    stamp_out(p, 8, sws, 1)
    p.I("s_cmp_lg_u32", S(4), 0)
    p.I("s_cbranch_scc1", "L_k2_exit")
    p.I("v_lshlrev_b32", vt, 4, vlane); p.I("v_add_u32", vt, SIDE0, vt)
    RR = [V(16 + 4 * w, 4) for w in range(4)]
    for w in range(4): p.I("ds_read_b128", RR[w], vt, mods=f"offset:{1024*w}")
    p.wait_lg0()
    for i in range(4):
        p.I("v_add_f32", RR[0][i], RR[0][i], RR[1][i]); p.I("v_add_f32", RR[2][i], RR[2][i], RR[3][i]); p.I("v_add_f32", RR[0][i], RR[0][i], RR[2][i])
    p.I("s_mul_i32", S(58), S(7), 3584 * 4); p.I("s_lshl_b32", S(59), S(8), 9); p.I("s_add_u32", S(58), S(58), S(59))
    p.I("s_add_u32", S(59), S(58), WS_BI); p.I("s_add_u32", S(58), S(58), WS_CS)
    p.I("v_lshlrev_b32", vt, 3, vlane)
    p.I("buffer_store_dwordx2", RR[0][0:2], vt, sws, S(58), mods="offen")
    p.I("buffer_store_dwordx2", RR[0][2:4], vt, sws, S(59), mods="offen")
    p.label("L_k2_exit")
    p.I("s_endpgm")
    return p

WA = 126976
WSLOT = [WA, 0, 32768, 65536, 98304, WA, 0]
TAB0 = 155648
K4_LDS = TAB0 + 1792
EMU = int(os.environ.get('EMU', '0'))
K4MAP = int(os.environ.get('K4MAP', '0'))
PER = int(os.environ.get('PER', '4'))
XP = os.environ.get('XP', '')
ACT_ST = os.environ.get('ACT_ST', 'sc1')
K5_LD = os.environ.get('K5_LD', '')
K4_LD = os.environ.get('K4_LD', '')
def gen_k4():
    p = Prog()
    load_kernargs(p)
    stamp(p, 0, False)
    p.I("s_cmp_ge_u32", S(2), 256)
    p.I("s_cbranch_scc1", "L_k4_exit")
    SM = S(6)
    p.I("s_mov_b32", SM, 0xffff0000)
    if K4MAP == 0:
        p.I("s_bfe_u32", S(3), S(2), 0x10002); p.I("s_lshl_b32", S(3), S(3), 3); p.I("s_lshr_b32", S(4), S(2), 5); p.I("s_add_u32", S(3), S(3), S(4))
        p.I("s_and_b32", S(5), S(2), 3); p.I("s_lshl_b32", S(5), S(5), 2); p.I("s_bfe_u32", S(4), S(2), 0x20003); p.I("s_add_u32", S(5), S(5), S(4))
    elif K4MAP == 1:
        p.I("s_and_b32", S(3), S(2), 7); p.I("s_lshl_b32", S(3), S(3), 1); p.I("s_lshr_b32", S(4), S(2), 7); p.I("s_add_u32", S(3), S(3), S(4))
        p.I("s_bfe_u32", S(5), S(2), 0x40003)
    else:
        p.I("s_bfe_u32", S(3), S(2), 0x20001); p.I("s_lshl_b32", S(3), S(3), 2); p.I("s_lshr_b32", S(4), S(2), 6); p.I("s_add_u32", S(3), S(3), S(4))
        p.I("s_and_b32", S(5), S(2), 1); p.I("s_lshl_b32", S(5), S(5), 3); p.I("s_bfe_u32", S(4), S(2), 0x30003); p.I("s_add_u32", S(5), S(5), S(4))
    vlane = V(1); vw = V(2)
    p.I("v_and_b32", vlane, 63, V(0))
    p.I("v_lshrrev_b32", vw, 6, V(0))
    p.I("v_readfirstlane_b32", S(4), vw)
    p.I("s_cmp_ge_u32", S(4), 4)
    p.I("s_cbranch_scc1", "L_k4_load")
    vr = V(4); vc = V(5); vt = V(6); vh = V(7)
    p.I("v_bfe_u32", vr, vlane, 2, 2); p.I("v_and_b32", vc, 3, vlane); p.I("v_lshrrev_b32", vh, 5, vlane)
    VA0 = V(8); VA1 = V(9); VX0 = V(10); VX1 = V(11); vtab = V(12); vo = V(13)
    p.I("v_lshlrev_b32", VA0, 4, vlane); p.I("v_add_u32", VA1, 98304, VA0); VAm = V(3); p.I("v_add_u32", VAm, 65536, VA0)
    p.I("v_lshl_add_u32", vt, vh, 3, vr); p.I("v_lshlrev_b32", VX0, 8, vt)
    p.I("v_xor_b32", vt, S(4), vr); p.I("v_lshl_add_u32", VX0, vt, 6, VX0)
    p.I("v_bfe_u32", vt, vlane, 4, 1); p.I("v_lshl_add_u32", VX0, vt, 5, VX0)
    p.I("v_lshl_add_u32", VX0, vc, 3, VX0); p.I("v_add_u32", VX1, 65536, VX0)
    p.I("v_lshlrev_b32", vtab, 5, vh); p.I("v_add_u32", vtab, TAB0, vtab)
    p.I("v_and_b32", vo, 31, vlane); p.I("v_lshlrev_b32", vo, 4, vo); p.I("v_mul_u32_u24", vt, ACP, vh); p.I("v_add_u32", vo, vo, vt)
    p.I("s_mul_i32", S(7), S(5), 14 * ACP); p.I("s_lshl_b32", S(13), S(3), 11); p.I("s_add_u32", S(7), S(7), S(13))
    p.I("s_lshl_b32", S(13), S(4), 9); p.I("s_add_u32", S(7), S(7), S(13)); p.I("s_add_u32", S(7), S(7), WS_ACT)
    p.I("s_mov_b32", S(8), 0x3b124925); p.I("s_mov_b32", S(9), 0x3727c5ac); p.I("s_mov_b32", S(10), 0xbfb8aa3b)
    XF = [V(96 + 4 * n, 4) for n in range(28)]
    ACC = [V(208, 16), V(224, 16)]
    ONES = V(14, 4)
    for i in range(4): p.I("v_mov_b32", ONES[i], 0x3f803f80)
    GRAM = V(64, 16); OSUM = V(80, 16)
    vi_ = V(18); ve_ = V(19)
    p.I("v_and_b32", vi_, 31, vlane); p.I("v_lshrrev_b32", ve_, 3, vi_); p.I("v_lshlrev_b32", ve_, 2, ve_); p.I("v_and_b32", vt, 3, vi_); p.I("v_add_u32", ve_, ve_, vt)
    p.I("v_bfe_u32", vt, vi_, 2, 1); p.I("v_xor_b32", vt, vt, vh); p.I("v_lshl_add_u32", ve_, vt, 4, ve_)
    for e in range(16): p.I("v_cmp_eq_u32", S(56 + 2 * e, 2), e, ve_)
    p.I("s_waitcnt", "lgkmcnt(0)")
    sws = srd(p, 52, P_WS, WS_SIZE)
    stamp(p, 1, False)
    def areads(addr):
        return (VA0, addr) if addr < 65536 else ((VAm, addr - 65536) if addr < 98304 else (VA1, addr - 98304))
    def xaddr(n, s_):
        ad = n * 4096 + s_ * 1024
        return (VX0, ad) if ad < 65536 else (VX1, ad - 65536)
    FW = [[V(32 + 16 * b_ + 4 * k_, 4) for k_ in range(4)] for b_ in range(2)]
    def procA(c):
        for k_ in range(4):
            n = 4 * c + k_
            p.I("v_mfma_f32_32x32x16_bf16", ACC[0], FW[c & 1][k_], XF[n], 0 if n == 0 else ACC[0])
            p.I("v_mfma_f32_32x32x16_bf16", GRAM, XF[n], XF[n], 0 if n == 0 else GRAM)
            p.I("v_mfma_f32_32x32x16_bf16", OSUM, ONES, XF[n], 0 if n == 0 else OSUM)
    for c in range(7):
        p.I("s_barrier")
        if c == 0: stamp(p, 2)
        for k_ in range(4):
            n = 4 * c + k_
            for s_ in range(2):
                vb, im = xaddr(n, s_); p.I("ds_read_b64_tr_b16", XF[n][2 * s_:2 * s_ + 2], vb, mods=f"offset:{im}")
            vb, im = areads(WA + n * 1024); tl = p.I("ds_read_b128", FW[c & 1][k_], vb, mods=f"offset:{im}")
        if c > 0: procA(c - 1)
        p.wait_lg(tl)
    AR = [V(48, 4), V(52, 4), V(56, 4), V(60, 4), V(240, 4), V(244, 4), V(248, 4), V(252, 4)]
    TB = [V(64, 8), V(72, 8), V(80, 8), V(88, 8)]; E = V(40, 8); TMp = V(28, 4)
    NR = 8; LA = int(os.environ.get('LA', '7'))
    vm = V(18); vv = V(19); vrr = V(20); vrm = V(21); SP = V(22, 2); TT = V(24, 2); vden = V(26); vd2 = V(27); vlr = V(14); vnm = V(15)
    def stats_ops():
        L = []
        def F_(*a, **k): L.append((a, k))
        F_("v_mov_b32", SP[1], 0)
        for e in range(16): F_("v_cndmask_b32", SP[1], SP[1], GRAM[e], S(56 + 2 * e, 2))
        F_("v_mul_f32", vm, S(8), OSUM[0])
        F_("TABREAD", 0)
        F_("v_mov_b32", TT[1], SP[1]); F_("s_nop", 0); F_("v_permlane32_swap_b32", TT[1], SP[1]); F_("v_add_f32", SP[1], SP[1], TT[1])
        F_("v_mul_f32", vv, S(8), SP[1])
        F_("v_fma_f32", vv, Neg(vm), vm, vv); F_("v_max_f32", vv, 0, vv)
        def r1(r): F_("v_cvt_pk_bf16_f32", r, r, r); F_("v_lshlrev_b32", r, 16, r)
        r1(vv); F_("v_add_f32", vv, S(9), vv); r1(vv); F_("v_sqrt_f32", vden, vv); r1(vm); r1(vden)
        F_("v_rcp_f32", vrr, vden); F_("v_mul_f32", vd2, vden, vden); F_("v_sub_f32", vnm, 0, vm); F_("v_mul_f32", vlr, S(10), vrr)
        return L
    def tinit_ops(dst):
        L = []
        def F_(*a, **k): L.append((a, k))
        F_("TABWAIT")
        for j in range(8):
            F_("v_mul_f32", TB[2][j], TB[2][j], vden); F_("v_mul_f32", TB[3][j], TB[3][j], vden)
        return L
    def epi_ops(T):
        L = []
        def F_(*a, **k): L.append((a, k))
        acc = ACC[T & 1]; Gs = acc[0:8]; Us = acc[8:16]; tb = TB
        if True:
            F_("TABWAIT")
            for j in range(8):
                F_("v_fma_f32", tb[2][j], tb[2][j], vden, Gs[j]); F_("v_fma_f32", tb[3][j], tb[3][j], vden, Us[j])
            for j in range(8):
                F_("v_fma_f32", Gs[j], vnm, tb[0][j], tb[2][j]); F_("v_fma_f32", Us[j], vnm, tb[1][j], tb[3][j])
            if T < 6: F_("TABREAD", T + 1)
        for j in range(8): F_("v_mul_f32", E[j], vlr, Gs[j])
        for j in range(8): F_("v_exp_f32", E[j], E[j]); F_("v_mul_f32", Gs[j], Gs[j], Us[j])
        for j in range(8): F_("v_fma_f32", E[j], E[j], vd2, vd2)
        for j in range(8): F_("v_rcp_f32", E[j], E[j])
        for j in range(8): F_("v_mul_f32", Gs[j], Gs[j], E[j])
        for j in range(4): F_("v_cvt_pk_bf16_f32", TMp[j], Gs[2 * j], Gs[2 * j + 1])
        F_("s_add_u32", S(13), S(7), T * 2 * ACP)
        F_("buffer_store_dwordx4", TMp, vo, sws, S(13), mods="offen " + ACT_ST)
        if 1 <= T + 2 <= 6 and T >= 0:
            if T == 0: pass
        return L
    def init_ops(T):
        L = []
        def F_(*a, **k): L.append((a, k))
        acc = ACC[T & 1]
        F_("TABWAIT")
        for j in range(8):
            F_("v_mul_f32", TB[2][j], TB[2][j], vden); F_("v_mul_f32", TB[3][j], TB[3][j], vden)
        for j in range(8):
            F_("v_fma_f32", acc[j], vnm, TB[0][j], TB[2][j]); F_("v_fma_f32", acc[8 + j], vnm, TB[1][j], TB[3][j])
        if T < 6: F_("TABREAD", T + 1)
        return L
    tabt = [None]
    def tabread(T):
        for a_ in range(4):
            for k_ in range(2):
                tabt[0] = p.I("ds_read_b128", TB[a_][4 * k_:4 * k_ + 4], vtab, mods=f"offset:{a_*448 + T*64 + 16*k_}")
    def emit(op):
        a_, k_ = op
        if a_[0] == "TABWAIT": p.wait_lg(tabt[0])
        elif a_[0] == "TABREAD": tabread(a_[1])
        elif 'nofill' in XP and a_[0].startswith("v_"): pass
        elif 'notrans' in XP and a_[0] in TRANS: p.I("v_mov_b32", a_[1], a_[2])
        elif 'nofma' in XP and a_[0] == "v_fma_f32": p.I("v_mov_b32", a_[1], a_[3])
        else: p.I(*a_, **k_)
    p.I("s_barrier")
    stamp(p, 3)
    seq = [(t, n) for t in range(1, 7) for n in range(28)]
    tick = {}
    def rdA(i):
        t, n = seq[i]
        if 'nord' in XP and i > 8:
            tick[i] = p.lg_issued; return
        vb, im = areads(WSLOT[t] + n * 1024)
        tick[i] = p.I("ds_read_b128", AR[i % NR], vb, mods=f"offset:{im}")
    for i in range(LA): rdA(i)
    procA(6)
    fill = stats_ops() + epi_ops(0)
    nxt = LA
    for i, (t, n) in enumerate(seq):
        if n == 0 and t > 1:
            while fill: emit(fill.pop(0))
            fill = epi_ops(t - 1)
        p.wait_lg(tick[i])
        if 'alt' in XP: p.I("v_mfma_f32_32x32x16_bf16", ACC[n & 1], AR[i % NR], XF[n], ACC[n & 1])
        else: p.I("v_mfma_f32_32x32x16_bf16", ACC[t & 1], AR[i % NR], XF[n], 0 if n == 0 else ACC[t & 1])
        if nxt < len(seq):
            if seq[nxt][1] == 0 and seq[nxt][0] in (2, 4):
                p.wait_lg(tick[nxt - 1])
                p.I("s_barrier")
            rdA(nxt); nxt += 1
        per = PER if n >= 1 else 2
        cost = 0
        while fill and cost < per:
            op = fill.pop(0); emit(op)
            cost += 2 if op[0][0] in TRANS else 1
    while fill: emit(fill.pop(0))
    stamp(p, 4)
    for op in epi_ops(6): emit(op)
    stamp(p, 5)
    stamp_out(p, 6, sws, 2)
    p.label("L_k4_exit")
    p.I("s_endpgm")
    p.label("L_k4_load")
    p.reset_counters()
    p.I("s_sub_u32", S(4), S(4), 4)
    vL = V(3); vt = V(6); vt2 = V(7); vwl = V(8); vxg = V(9)
    p.I("v_subrev_u32", vL, 256, V(0))
    p.I("v_lshlrev_b32", vwl, 4, vlane)
    p.I("v_lshrrev_b32", vt, 4, vlane); p.I("v_mul_u32_u24", vxg, X1P, vt)
    p.I("v_bfe_u32", vt2, vlane, 2, 2); p.I("v_xor_b32", vt, vt, vt2); p.I("v_lshl_add_u32", vxg, vt, 6, vxg)
    p.I("v_and_b32", vt, 3, vlane); p.I("v_lshl_add_u32", vxg, vt, 4, vxg)
    p.I("s_lshl_b32", S(7), S(3), 8); p.I("s_mul_i32", S(8), S(4), 16 * X1P); p.I("s_add_u32", S(7), S(7), S(8)); p.I("s_add_u32", S(7), S(7), WS_X1)
    p.I("s_lshl_b32", S(10), S(4), 10)
    p.I("s_mul_i32", S(12), S(5), 200704); p.I("s_add_u32", S(12), S(12), S(10)); p.I("s_add_u32", S(12), S(12), WS_WP)
    p.I("s_lshl_b32", S(11), S(4), 12)
    vtg = V(10); vtl = V(11)
    p.I("v_cmp_le_u32", VCC, 112, vL)
    p.I("v_mov_b32", vt, 0); p.I("v_mov_b32", vt2, (1792 - 112) * 4); p.I("v_cndmask_b32", vt, vt, vt2, VCC)
    p.I("v_lshl_add_u32", vtg, vL, 2, vt)
    p.I("v_lshlrev_b32", vtl, 2, vL); p.I("v_add_u32", vtl, TAB0, vtl)
    p.I("s_mul_i32", S(13), S(5), 448); p.I("s_add_u32", S(13), S(13), WS_CS)
    p.I("v_cmp_gt_u32", VCC, 224, vL); p.I("s_mov_b64", S(60, 2), VCC)
    p.I("s_mul_hi_u32", S(56), S(2), 613566757); p.I("s_mul_i32", S(57), S(56), 7); p.I("s_sub_u32", S(57), S(2), S(57))
    vdg = V(12); vds = V(13)
    p.I("v_lshrrev_b32", vt, 5, vL); p.I("v_and_b32", vt2, 31, vL)
    p.I("v_mul_u32_u24", vdg, 8 * ROWB, vt); p.I("v_lshl_add_u32", vdg, vt2, 2, vdg)
    p.I("v_lshlrev_b32", vds, 5, vt2)
    p.I("v_and_b32", vds, 511, vds); p.I("v_lshrrev_b32", vt2, 4, vt2); p.I("v_lshl_add_u32", vds, vt2, 10, vds)
    p.I("v_and_b32", vt2, 1, vt); p.I("v_lshl_add_u32", vds, vt2, 9, vds)
    p.I("v_lshrrev_b32", vt, 1, vt); p.I("v_lshl_add_u32", vds, vt, 11, vds)
    p.I("s_mul_i32", S(58), S(56), 64 * ROWB); p.I("s_lshl_b32", S(59), S(57), 7); p.I("s_add_u32", S(58), S(58), S(59))
    p.I("s_mul_i32", S(59), S(57), 229376); p.I("s_lshl_b32", S(62), S(56), 13); p.I("s_add_u32", S(59), S(59), S(62)); p.I("s_add_u32", S(59), S(59), WS_WD)
    p.I("s_waitcnt", "lgkmcnt(0)")
    stamp(p, 1, False)
    sws = srd(p, 52, P_WS, WS_SIZE); swd = srd(p, 48, P_WD, D * F * 2)
    def issueX(c):
        for i in range(4):
            p.I("s_add_u32", M0, S(11), c * 16384 + i * 1024)
            p.I("s_add_u32", S(15), S(7), (64 * c + 4 * i) * X1P)
            p.I("buffer_load_dwordx4", vxg, sws, S(15), mods="offen lds")
        p.I("s_add_u32", M0, S(10), WA + c * 4096)
        p.I("s_add_u32", S(15), S(12), c * 4096)
        return p.I("buffer_load_dwordx4", vwl, sws, S(15), mods="offen lds")
    def issueW(t):
        for i in range(7):
            p.I("s_add_u32", M0, S(10), WSLOT[t] + i * 4096)
            p.I("s_add_u32", S(15), S(12), t * 28672 + i * 4096)
            tk_ = p.I("buffer_load_dwordx4", vwl, sws, S(15), mods="offen lds")
        return tk_
    tX = {}; tW = {}
    for c in range(3): tX[c] = issueX(c)
    stamp(p, 2, False)
    TBL = [V(48 + i) for i in range(16)]; WDR = [V(24 + i) for i in range(8)]
    for c in range(7):
        p.wait_vm(tX[c])
        if c == 0: stamp(p, 3, False)
        p.I("s_barrier")
        if c + 3 < 7: tX[c + 3] = issueX(c + 3)
        if c == 3:
            p.I("s_mov_b64", S(68, 2), EXEC); p.I("s_mov_b64", EXEC, S(60, 2))
            for i in range(16):
                p.I("s_add_u32", S(15), S(13), (i & 7) * 3584 * 4 + (i >> 3) * (WS_BI - WS_CS))
                ttb = p.I("buffer_load_dword", TBL[i], vtg, sws, S(15), mods="offen")
            p.I("s_mov_b64", EXEC, S(68, 2))
        if c >= 4: tW[c - 3] = issueW(c - 3)
        if c == 5:
            p.wait_vm(ttb)
            for st_ in (1, 2, 4):
                for i in range(0, 16, 2 * st_): p.I("v_add_f32", TBL[i], TBL[i], TBL[i + st_])
            p.I("s_mov_b64", EXEC, S(60, 2))
            p.I("ds_write_b32", vtl, TBL[0]); p.I("ds_write_b32", vtl, TBL[8], mods="offset:896")
            p.I("s_mov_b64", EXEC, S(68, 2))
            p.wait_lg0()
    for t in (1, 2, 4):
        p.wait_vm(tW[{1: 1, 2: 3, 4: 6}[t]])
        p.I("s_barrier")
        if t == 1: tW[4] = issueW(4)
        if t == 2: tW[5] = issueW(5); tW[6] = issueW(6)
        if t == 4:
            for j in range(8):
                p.I("s_add_u32", S(15), S(58), j * ROWB)
                twd = p.I("buffer_load_dword", WDR[j], vdg, swd, S(15), mods=f"offen {NT_IN}")
    p.I("s_cmp_ge_u32", S(2), 196)
    p.I("s_cbranch_scc1", "L_k4_nowd")
    p.I("s_mov_b32", S(62), 0x05040100); p.I("s_mov_b32", S(63), 0x07060302)
    p.wait_vm(twd)
    OG = [V(32, 4), V(36, 4)]
    for e2 in range(4):
        p.I("v_perm_b32", OG[0][e2], WDR[2 * e2 + 1], WDR[2 * e2], S(62)); p.I("v_perm_b32", OG[1][e2], WDR[2 * e2 + 1], WDR[2 * e2], S(63))
    p.I("buffer_store_dwordx4", OG[0], vds, sws, S(59), mods="offen " + ST_WT)
    p.I("buffer_store_dwordx4", OG[1], vds, sws, S(59), mods="offen offset:16 " + ST_WT)
    p.label("L_k4_nowd")
    stamp(p, 4)
    stamp_out(p, 5, sws, 2)
    p.I("s_endpgm")
    return p

K5_PR = 64 * 272
K5_XT = 4 * K5_PR
K5_LDS = K5_XT + 8192
def gen_k5():
    p = Prog()
    load_kernargs(p)
    stamp(p, 0, False)
    p.I("s_cmp_ge_u32", S(2), 224)
    p.I("s_cbranch_scc1", "L_k5_exit")
    SM = S(6)
    p.I("s_mov_b32", SM, 0xffff0000)
    p.I("s_lshr_b32", S(4), S(2), 3); p.I("s_mul_hi_u32", S(3), S(4), 613566757); p.I("s_mul_i32", S(5), S(3), 7); p.I("s_sub_u32", S(5), S(4), S(5))
    p.I("s_and_b32", S(4), S(2), 7); p.I("s_lshl_b32", S(4), S(4), 2); p.I("s_add_u32", S(3), S(3), S(4))
    vlane = V(1); vw = V(2); vh = V(3); vt = V(4); vaa = V(5); vwa = V(6); vxa = V(7); vgb = V(8)
    p.I("v_and_b32", vlane, 63, V(0)); p.I("v_lshrrev_b32", vw, 6, V(0)); p.I("v_readfirstlane_b32", S(4), vw)
    p.I("v_lshrrev_b32", vh, 5, vlane)
    p.I("v_and_b32", vaa, 31, vlane); p.I("v_lshlrev_b32", vaa, 4, vaa); p.I("v_mul_u32_u24", vt, ACP, vh); p.I("v_add_u32", vaa, vaa, vt)
    p.I("v_lshlrev_b32", vwa, 4, vlane)
    p.I("v_lshrrev_b32", vt, 3, vlane); p.I("v_mul_u32_u24", vxa, X1P, vt); p.I("v_and_b32", vt, 7, vlane); p.I("v_lshl_add_u32", vxa, vt, 4, vxa)
    p.I("v_lshrrev_b32", vgb, 4, vlane); p.I("v_lshlrev_b32", vgb, 5, vgb)
    p.I("s_mul_i32", S(7), S(4), 56 * ACP); p.I("s_lshl_b32", S(8), S(3), 10); p.I("s_add_u32", S(7), S(7), S(8)); p.I("s_add_u32", S(7), S(7), WS_ACT)
    p.I("s_mul_i32", S(8), S(5), 229376); p.I("s_mul_i32", S(9), S(4), 28 * 2048); p.I("s_add_u32", S(8), S(8), S(9)); p.I("s_add_u32", S(8), S(8), WS_WD)
    p.I("s_mul_i32", S(9), S(5), 64 * X1P); p.I("s_mul_i32", S(10), S(4), 16 * X1P); p.I("s_add_u32", S(9), S(9), S(10)); p.I("s_lshl_b32", S(10), S(3), 7)
    p.I("s_add_u32", S(9), S(9), S(10)); p.I("s_add_u32", S(9), S(9), WS_X1)
    p.I("s_lshl_b32", S(10), S(4), 11); p.I("s_add_u32", S(10), S(10), K5_XT)
    p.I("s_lshl_b32", S(11), S(5), 8); p.I("s_add_u32", S(11), S(11), WS_MOD + 5 * D * 4)
    for i in range(64): p.I("v_accvgpr_write_b32", A(i), 0)
    p.I("s_waitcnt", "lgkmcnt(0)")
    sws = srd(p, 52, P_WS, WS_SIZE); so = srd(p, 48, P_OUT, ARR)
    stamp(p, 1, False)
    NB = 13; LA = 12
    BUF = [V(40 + 16 * b, 16) for b in range(NB)]
    ACC = [[A(32 * dl + 16 * th, 16) for th in range(2)] for dl in range(2)]
    tk = {}
    def issue(n):
        bf_ = BUF[n % NB]
        p.I("s_add_u32", S(12), S(7), n * 2 * ACP); p.I("s_add_u32", S(13), S(8), n * 2048)
        p.I("buffer_load_dwordx4", bf_[0:4], vwa, sws, S(13), mods="offen")
        p.I("buffer_load_dwordx4", bf_[8:12], vaa, sws, S(12), mods="offen " + K5_LD)
        t1 = p.I("buffer_load_dwordx4", bf_[12:16], vaa, sws, S(12), mods="offen offset:512 " + K5_LD)
        t2 = p.I("buffer_load_dwordx4", bf_[4:8], vwa, sws, S(13), mods="offen offset:1024")
        tk[n] = (t1, t2)
    for n in range(LA): issue(n)
    stamp(p, 2, False)
    GB = [[V(10 + 16 * og + 8 * pp, 8) for pp in range(2)] for og in range(2)]
    GB = [[A(64 + 16 * og + 8 * pp, 8) for pp in range(2)] for og in range(2)]
    tgb = None
    for n in range(28):
        bf_ = BUF[n % NB]
        p.wait_vm(tk[n][0])
        if n == 0: stamp(p, 3, False)
        p.I("v_mfma_f32_32x32x16_bf16", ACC[0][0], bf_[0:4], bf_[8:12], ACC[0][0])
        p.I("v_mfma_f32_32x32x16_bf16", ACC[0][1], bf_[0:4], bf_[12:16], ACC[0][1])
        p.wait_vm(tk[n][1])
        p.I("v_mfma_f32_32x32x16_bf16", ACC[1][0], bf_[4:8], bf_[8:12], ACC[1][0])
        p.I("v_mfma_f32_32x32x16_bf16", ACC[1][1], bf_[4:8], bf_[12:16], ACC[1][1])
        if n + LA < 28: issue(n + LA)
        if n == 16:
            for i in range(2):
                p.I("s_add_u32", M0, S(10), i * 1024); p.I("s_add_u32", S(12), S(9), i * 8 * X1P)
                p.I("buffer_load_dwordx4", vxa, sws, S(12), mods="offen lds")
            for og in range(2):
                for pp in range(2):
                    p.I("s_add_u32", S(12), S(11), pp * MODP)
                    for k_ in range(2):
                        tgb = p.I("buffer_load_dwordx4", GB[og][pp][4 * k_:4 * k_ + 4], vgb, sws, S(12), mods=f"offen offset:{128*og + 16*k_}")
    stamp(p, 4)
    vpw = V(9)
    p.I("v_and_b32", vt, 31, vlane); p.I("v_mul_u32_u24", vpw, 272, vt); p.I("v_lshl_add_u32", vpw, vh, 4, vpw)
    p.I("s_mul_i32", S(12), S(4), K5_PR); p.I("v_add_u32", vpw, S(12), vpw)
    for dl in range(2):
        for th in range(2):
            for j in range(4):
                p.I("ds_write_b128", vpw, ACC[dl][th][4 * j:4 * j + 4], mods=f"offset:{th*32*272 + dl*128 + j*32}")
    vq = V(10); vtk = V(11); vpr = V(12); vxr = V(13); voo = V(14)
    p.I("v_lshrrev_b32", vq, 4, vlane); p.I("v_and_b32", vtk, 15, vlane); p.I("s_lshl_b32", S(12), S(4), 4); p.I("v_add_u32", vtk, S(12), vtk)
    p.I("v_mul_u32_u24", vpr, 272, vtk); p.I("v_lshl_add_u32", vpr, vq, 5, vpr)
    p.I("v_bfe_u32", vt, vlane, 2, 2); p.I("v_lshl_add_u32", vt, vq, 3, vt); p.I("v_lshlrev_b32", vxr, 7, vt)
    p.I("v_and_b32", vt, 3, vlane); p.I("v_lshl_add_u32", vxr, vt, 3, vxr); p.I("s_lshl_b32", S(12), S(4), 5); p.I("s_add_u32", S(12), S(12), K5_XT); p.I("v_add_u32", vxr, S(12), vxr)
    p.I("v_mul_u32_u24", voo, ROWB, vtk); p.I("v_lshl_add_u32", voo, vq, 4, voo)
    p.I("s_mul_i32", S(12), S(3), 64 * ROWB); p.I("s_lshl_b32", S(13), S(5), 7); p.I("s_add_u32", S(12), S(12), S(13))
    G = [V(16 + 8 * og, 8) for og in range(2)]; TM = V(32, 4); G2 = V(40, 8)
    p.wait_vm(tgb)
    for og in range(2):
        for j in range(8): p.I("v_accvgpr_read_b32", G[og][j], GB[og][0][j]); p.I("v_accvgpr_read_b32", G2[j], GB[og][1][j])
        for j in range(8): p.I("v_add_f32", G[og][j], G[og][j], G2[j])
        for j in range(4): p.I("v_cvt_pk_bf16_f32", TM[j], G[og][2 * j], G[og][2 * j + 1])
        for j in range(4): unpack(p, G[og][2 * j:2 * j + 2], TM[j], SM)
    p.wait_lg0()
    p.I("s_barrier")
    stamp(p, 5)
    for og in range(2):
        PPs = [V(48 + 40 * og + 8 * w, 8) for w in range(4)]; XR = V(80 + 40 * og, 4); XF = V(128 + 8 * og, 8)
        tx = [p.I("ds_read_b64_tr_b16", XR[2 * s_:2 * s_ + 2], vxr, mods=f"offset:{4096*og + 512*s_}") for s_ in range(2)]
        tp = [p.I("ds_read_b128", PPs[w][4 * k_:4 * k_ + 4], vpr, mods=f"offset:{w*K5_PR + 128*og + 16*k_}") for w in range(4) for k_ in range(2)]
        p.wait_lg(tx[-1])
        for j in range(4): unpack(p, XF[2 * j:2 * j + 2], XR[j], SM)
        p.wait_lg(tp[3])
        for j in range(8): p.I("v_add_f32", PPs[0][j], PPs[0][j], PPs[1][j])
        p.wait_lg(tp[7])
        for j in range(8): p.I("v_add_f32", PPs[2][j], PPs[2][j], PPs[3][j])
        Y = PPs[0]
        for j in range(8): p.I("v_add_f32", Y[j], Y[j], PPs[2][j])
        for j in range(4): p.I("v_cvt_pk_bf16_f32", TM[j], Y[2 * j], Y[2 * j + 1])
        for j in range(4): unpack(p, Y[2 * j:2 * j + 2], TM[j], SM)
        for j in range(8): p.I("v_mul_f32", Y[j], Y[j], G[og][j])
        for j in range(4): p.I("v_cvt_pk_bf16_f32", TM[j], Y[2 * j], Y[2 * j + 1])
        for j in range(4): unpack(p, Y[2 * j:2 * j + 2], TM[j], SM)
        for j in range(8): p.I("v_add_f32", Y[j], Y[j], XF[j])
        O = PPs[1][0:4]
        for j in range(4): p.I("v_cvt_pk_bf16_f32", O[j], Y[2 * j], Y[2 * j + 1])
        p.I("buffer_store_dwordx4", O, voo, so, S(12), mods=f"offen offset:{64*og}")
    stamp(p, 6)
    stamp_out(p, 7, sws, 3)
    p.label("L_k5_exit")
    p.I("s_endpgm")
    return p

HEADER = open("adaLN_cond__ssm_conv_h3__swiglu_ffn__prompt.s.ref").read().split("; Override")[0]

def build(kernels):
    s = HEADER
    for name, p, grid, block, lds in kernels:
        s += f"; @launch kernel={name} grid=({grid},1,1) block=({block},1,1) lds={lds}\n"
    s += '.amdgcn_target "amdgcn-amd-amdhsa--gfx950"\n.text\n'
    for name, p, grid, block, lds in kernels:
        s += kernel_header(name) + p.finalize()
        s += kernel_desc(name, p.maxv + 1, p.maxa + 1, max(p.maxs + 1, 16))
    s += "L_code_end:\n    s_endpgm\n"
    return s

if __name__ == "__main__":
    ks = [("k1_kernel", gen_k1(), NMOD + NTR + NST + 8 * CPF, 256, 16384), ("k2_kernel", gen_k2(), NCONV, 512, K2_LDS),
          ("k4_kernel", gen_k4(), 256, 512, K4_LDS),
          ("k5_kernel", gen_k5(), 224, 256, K5_LDS)]
    for i in range(int(os.environ.get('EXTRA', '0'))):
        pe = Prog(); pe.I("v_mov_b32", V(1), 0); pe.I("s_endpgm"); ks.append((f"e{i}_kernel", pe, 256, 256, 0))
    open(sys.argv[1] if len(sys.argv) > 1 else "out.s", "w").write(build(ks))
```

```python
import sys, os
from asmgen import *

S_TOK = 2048; D = 448; F = 1792
ROWB = D * 2
TBB = D * 16
ARR = S_TOK * D * 2
WS_KV = 0x000000
WS_X = 0x200000
WS_X1 = 0x400000
X1P = 4096 + 256
ACP = 32768 + 1024
WS_ST1 = 0x600000
WS_MOD = 0x610000
MODP = 2688 * 4
WS_CS = 0x620000
WS_BI = 0x640000
WS_FLAG = 0x680000
WS_ACT = 0x800000
WS_WP = 0x1000000
WS_WD = 0x1400000
WS_SIZE = 0x1400000 + 1792 * 448 * 2
ST_WT = os.environ.get('ST_WT', 'sc1')

P_Q, P_K, P_V, P_SH, P_SK, P_SD, P_BX, P_WG, P_WU, P_WD, P_C, P_WM, P_OUT, P_DBG, P_WS = [16 + 2 * i for i in range(15)]

STAMP = int(os.environ.get('STAMP', '0'))
WS_DBG = 0x700000
def stamp(p, k, wait=True):
    if not STAMP: return
    p.I("s_memtime", S(76 + 2 * k, 2))
    if wait:
        p.I("s_waitcnt", "lgkmcnt(0)"); p.lg_done = p.lg_issued
def stamp_out(p, n, sws, kern):
    if not STAMP: return
    for k in range(n): p.I("v_mov_b32", V(8 + k), S(76 + 2 * k))
    for k in range(n, 8): p.I("v_mov_b32", V(8 + k), 0)
    p.I("v_lshrrev_b32", V(16), 6, V(0)); p.I("v_lshlrev_b32", V(16), 5, V(16))
    p.I("s_lshl_b32", S(74), S(2), 8); p.I("s_add_u32", S(74), S(74), WS_DBG + kern * 0x20000)
    p.I("v_and_b32", V(17), 63, V(0)); p.I("v_cmp_eq_u32", VCC, 0, V(17))
    p.I("s_and_saveexec_b64", S(72, 2), VCC)
    p.I("buffer_store_dwordx4", V(8, 4), V(16), sws, S(74), mods="offen")
    p.I("buffer_store_dwordx4", V(12, 4), V(16), sws, S(74), mods="offen offset:16")
    p.I("s_mov_b64", EXEC, S(72, 2))

STAMP_GROUPS = {0: [(0, 88), (88, 216), (216, 440)], 1: [(0, 224)], 2: [(0, 256)], 3: [(0, 224)]}
def load_kernargs(p):
    p.I("s_load_dwordx16", S(16, 16), S(0, 2), 0)
    p.I("s_load_dwordx8", S(32, 8), S(0, 2), 64)
    p.I("s_load_dwordx4", S(40, 4), S(0, 2), 96)
    p.I("s_load_dwordx2", S(44, 2), S(0, 2), 112)

def srd(p, dst, ptr, size, off=0):
    if isinstance(off, int) and off == 0:
        p.I("s_mov_b32", S(dst), S(ptr)); p.I("s_mov_b32", S(dst + 1), S(ptr + 1))
    else:
        p.I("s_add_u32", S(dst), S(ptr), off); p.I("s_addc_u32", S(dst + 1), S(ptr + 1), 0)
    p.I("s_mov_b32", S(dst + 2), size); p.I("s_mov_b32", S(dst + 3), 0x20000)
    return S(dst, 4)

def unpack(p, dst_pair, src, smask):
    p.I("v_lshlrev_b32", dst_pair[0], 16, src)
    p.I("v_and_b32", dst_pair[1], smask, src)

def rnd_pair(p, pair, tmp, smask):
    p.I("v_cvt_pk_bf16_f32", tmp, pair[0], pair[1])
    unpack(p, pair, tmp, smask)

def rnd1(p, r, smask=None):
    p.I("v_cvt_pk_bf16_f32", r, r, r)
    p.I("v_lshlrev_b32", r, 16, r)

def xrow_sum(p, x, t):
    p.I("v_mov_b32", t, x); p.I("v_permlane16_swap_b32", t, x); p.I("v_add_f32", x, x, t)
    p.I("v_mov_b32", t, x); p.I("v_permlane32_swap_b32", t, x); p.I("v_add_f32", x, x, t)

def wave_sum_multi(p, xs, ts):
    for m in ("quad_perm:[1,0,3,2]", "quad_perm:[2,3,0,1]", "row_half_mirror", "row_mirror"):
        for x in xs:
            p.I("v_add_f32_dpp", x, x, x, mods=m + " row_mask:0xf bank_mask:0xf")
    for swap in ("v_permlane16_swap_b32", "v_permlane32_swap_b32"):
        for x, t in zip(xs, ts): p.I("v_mov_b32", t, x)
        for x, t in zip(xs, ts): p.I(swap, t, x)
        for x, t in zip(xs, ts): p.I("v_add_f32", x, x, t)

def gemv64(p, wsrd, rowbytes, colbyte_s, ncoef, coef_fn, out_fn, tag, swsx, fl=''):
    SM = S(6)
    stamp(p, 1, False)
    p.I("s_mov_b32", SM, 0xffff0000)
    vco = V(1); vrg = V(2); voff = V(3)
    p.I("v_and_b32", vco, 7, V(0))
    p.I("v_lshrrev_b32", vrg, 3, V(0))
    p.I("s_mov_b32", S(7), rowbytes)
    p.I("v_mul_lo_u32", voff, vrg, S(7))
    p.I("v_lshl_add_u32", voff, vco, 4, voff)
    W = [V(8 + 4 * i, 4) for i in range(7)]
    tk = []
    tc = coef_fn[0](p, vrg)
    for i in range(7):
        p.I("s_add_u32", S(8), colbyte_s, i * 32 * rowbytes)
        tk.append(p.I("buffer_load_dwordx4", W[i], voff, wsrd, S(8), mods="offen " + fl))
    coefs = coef_fn[1](p, tc)
    stamp(p, 2, False)
    ACC = [V(108 + 8 * c, 8) for c in range(ncoef)]
    for c in range(ncoef):
        for j in range(8): p.I("v_mov_b32", ACC[c][j], 0)
    for i in range(7):
        U = V(124 + 8 * (i & 1), 8)
        p.wait_vm(tk[i])
        for j in range(4): unpack(p, U[2 * j:2 * j + 2], W[i][j], SM)
        for c in range(ncoef):
            for j in range(8):
                p.I("v_fmac_f32", ACC[c][j], coefs[c][i], U[j])
    stamp(p, 3, False)
    allacc = [ACC[c][j] for c in range(ncoef) for j in range(8)]
    for x in allacc:
        p.I("v_add_f32_dpp", x, x, x, mods="row_ror:8 row_mask:0xf bank_mask:0xf")
    T = [V(8 + i) for i in range(len(allacc))]
    for swap in ("v_permlane16_swap_b32", "v_permlane32_swap_b32"):
        for x, t in zip(allacc, T): p.I("v_mov_b32", t, x)
        for x, t in zip(allacc, T): p.I(swap, t, x)
        for x, t in zip(allacc, T): p.I("v_add_f32", x, x, t)
    vw = V(4); va = V(5)
    p.I("v_lshrrev_b32", vw, 6, V(0))
    p.I("v_lshlrev_b32", va, 8, vw)
    p.I("v_lshl_add_u32", va, vco, 5, va)
    p.I("v_and_b32", V(6), 63, V(0))
    p.I("v_cmp_gt_u32", VCC, 8, V(6))
    p.I("s_and_saveexec_b64", S(10, 2), VCC)
    for c in range(ncoef):
        p.I("ds_write_b128", va, ACC[c][0:4], mods=f"offset:{c*1024}")
        p.I("ds_write_b128", va, ACC[c][4:8], mods=f"offset:{c*1024+16}")
    p.I("s_mov_b64", EXEC, S(10, 2))
    p.wait_lg0()
    p.I("s_barrier")
    stamp(p, 4)
    stamp_out(p, 5, swsx, 0 if tag == "k1mod" else 1)
    p.I("v_readfirstlane_b32", S(10), vw)
    p.I("s_cmp_lg_u32", S(10), 0)
    p.I("s_cbranch_scc1", f"L_{tag}_done")
    p.I("v_lshlrev_b32", va, 2, V(0))
    res = []
    for c in range(ncoef):
        Rr = V(8 + 4 * c, 4)
        for w in range(4):
            p.I("ds_read_b32", Rr[w], va, mods=f"offset:{c*1024 + w*256}")
        res.append(Rr)
    p.wait_lg0()
    for c in range(ncoef):
        Rr = res[c]
        p.I("v_add_f32", Rr[0], Rr[0], Rr[1]); p.I("v_add_f32", Rr[2], Rr[2], Rr[3]); p.I("v_add_f32", Rr[0], Rr[0], Rr[2])
    out_fn(p, [r[0] for r in res], va)
    p.label(f"L_{tag}_done")
    p.I("s_endpgm")

NMOD = 88; NTR = 224; NST = 128; NWD = 196
NT_IN = os.environ.get('NT_IN', 'nt')
CPF = int(os.environ.get('CPF', '1'))
def gen_k1():
    p = Prog()
    if CPF:
        p.I("s_cmp_ge_u32", S(2), 8)
        p.I("s_cbranch_scc1", "L_k1_main")
        p.I("s_getpc_b64", S(4, 2))
        p.raw("L_k1_pc:")
        p.I("v_lshlrev_b32", V(1), 7, V(0))
        p.raw("    v_cmp_gt_u32 vcc, (L_code_end - L_k1_pc), v1")
        p.I("s_and_saveexec_b64", S(6, 2), VCC)
        p.I("global_load_dword", V(2), V(1), S(4, 2))
        p.I("v_add_u32", V(1), 32768, V(1))
        p.raw("    v_cmp_gt_u32 vcc, (L_code_end - L_k1_pc), v1")
        p.I("s_and_saveexec_b64", S(6, 2), VCC)
        p.I("s_cbranch_execz", "L_k1_pfdone")
        p.I("global_load_dword", V(3), V(1), S(4, 2))
        p.label("L_k1_pfdone")
        p.I("s_waitcnt", "vmcnt(0)")
        p.I("s_endpgm")
        p.label("L_k1_main")
        p.reset_counters()
        p.I("s_sub_u32", S(2), S(2), 8)
    load_kernargs(p)
    stamp(p, 0, False)
    p.I("s_cmp_lt_u32", S(2), NMOD)
    p.I("s_cbranch_scc1", "L_k1_mod")
    p.I("s_sub_u32", S(3), S(2), NMOD)
    p.I("s_cmp_lt_u32", S(3), NST)
    p.I("s_cbranch_scc1", "L_k1_stats")
    p.I("s_sub_u32", S(3), S(3), NST)
    p.I("s_cmp_ge_u32", S(3), NTR)
    p.I("s_cbranch_scc1", "L_k1_wd")
    p.I("s_mul_hi_u32", S(4), S(3), 613566757)
    p.I("s_mul_i32", S(5), S(4), 7); p.I("s_sub_u32", S(5), S(3), S(5))
    SM = S(6)
    p.I("s_mov_b32", SM, 0xffff0000)
    p.I("s_mul_i32", S(7), S(4), 64 * ROWB); p.I("s_lshl_b32", S(8), S(5), 7); p.I("s_add_u32", S(7), S(7), S(8))
    vo = V(1); vo2 = V(2); voh = V(3); vsh = V(4); vcp = V(5); vtg = V(6)
    p.I("v_and_b32", vcp, 31, V(0)); p.I("v_lshrrev_b32", vtg, 5, V(0))
    p.I("v_mul_u32_u24", vo, 8 * ROWB, vtg); p.I("v_lshl_add_u32", vo, vcp, 2, vo); p.I("v_add_u32", vo, S(7), vo)
    p.I("v_add_u32", vo2, 4480, vo)
    p.I("v_subrev_u32", voh, 2688, vo)
    p.I("s_lshl_b32", S(8), S(5), 9)
    p.I("v_lshl_add_u32", vsh, vcp, 4, S(8))
    p.I("s_waitcnt", "lgkmcnt(0)")
    sq = srd(p, 48, P_Q, ARR); sk = srd(p, 52, P_K, ARR); sv = srd(p, 56, P_V, ARR)
    ssh = srd(p, 60, P_SH, D * 8); sws = srd(p, 64, P_WS, WS_SIZE)
    stamp(p, 1, False)
    KR = [V(8 + j) for j in range(11)]
    VR = [V(20 + j) for j in range(8)]
    QR = [V(28 + j) for j in range(8)]
    SH = V(36, 4)
    def rowload(dst, srdx, j, fl):
        if j < 5: return p.I("buffer_load_dword", dst, vo, srdx, 0, mods=f"offen offset:{j*896} {fl}")
        return p.I("buffer_load_dword", dst, vo2, srdx, 0, mods=f"offen offset:{(j-5)*896} {fl}")
    tsh = p.I("buffer_load_dwordx4", SH, vsh, ssh, 0, mods="offen")
    tk = []
    for j in range(3): tk.append(p.I("buffer_load_dword", KR[j], voh, sk, 0, mods=f"offen offset:{j*896} {NT_IN}"))
    for j in range(8): tk.append(rowload(KR[3 + j], sk, j, NT_IN))
    tv = [rowload(VR[j], sv, j, NT_IN) for j in range(8)]
    tq = [rowload(QR[j], sq, j, "") for j in range(8)]
    vlw = V(40); vlr = V(41); vgo = V(42); vt = V(43)
    p.I("v_and_b32", vt, 7, vcp); p.I("v_xor_b32", vt, vt, vtg)
    p.I("v_lshlrev_b32", vlw, 8, vcp); p.I("v_lshl_add_u32", vlw, vt, 4, vlw)
    p.I("v_lshrrev_b32", vt, 4, V(0)); p.I("v_xor_b32", vt, vt, V(0)); p.I("v_and_b32", vt, 7, vt)
    p.I("v_lshrrev_b32", vlr, 3, V(0)); p.I("v_lshlrev_b32", vgo, 12, vlr)
    p.I("v_lshlrev_b32", vlr, 7, vlr); p.I("v_lshl_add_u32", vlr, vt, 4, vlr)
    p.I("v_and_b32", vt, 7, V(0)); p.I("v_lshl_add_u32", vgo, vt, 4, vgo)
    p.I("s_lshl_b32", S(7), S(5), 18); p.I("s_lshl_b32", S(8), S(4), 7); p.I("s_add_u32", S(7), S(7), S(8))
    stamp(p, 2, False)
    Wt = [V(48 + 2 * t, 2) for t in range(4)]
    p.wait_vm(tsh)
    p.I("v_lshlrev_b32", Wt[0][0], 16, SH[0]); p.I("v_and_b32", Wt[1][0], SM, SH[0])
    p.I("v_lshlrev_b32", Wt[2][0], 16, SH[1]); p.I("v_and_b32", Wt[3][0], SM, SH[1])
    p.I("v_lshlrev_b32", Wt[0][1], 16, SH[2]); p.I("v_and_b32", Wt[1][1], SM, SH[2])
    p.I("v_lshlrev_b32", Wt[2][1], 16, SH[3]); p.I("v_and_b32", Wt[3][1], SM, SH[3])
    KF = [V(56 + 2 * j, 2) for j in range(11)]
    p.wait_vm(tk[-1])
    stamp(p, 3, False)
    for j in range(11): unpack(p, KF[j], KR[j], SM)
    ACC = [V(78 + 2 * s, 2) for s in range(8)]
    PR = [V(94 + 2 * s, 2) for s in range(8)]
    TM = [V(110 + s) for s in range(8)]
    for s in range(8): p.I("v_pk_mul_f32", ACC[s], KF[s], Wt[3])
    for s in range(8): p.I("v_cvt_pk_bf16_f32", TM[s], ACC[s][0], ACC[s][1])
    for s in range(8): unpack(p, ACC[s], TM[s], SM)
    for step in (1, 2, 3):
        for s in range(8): p.I("v_pk_mul_f32", PR[s], KF[s + step], Wt[3 - step])
        for s in range(8): p.I("v_cvt_pk_bf16_f32", TM[s], PR[s][0], PR[s][1])
        for s in range(8): unpack(p, PR[s], TM[s], SM)
        for s in range(8): p.I("v_pk_add_f32", ACC[s], ACC[s], PR[s])
        for s in range(8): p.I("v_cvt_pk_bf16_f32", TM[s], ACC[s][0], ACC[s][1])
        for s in range(8): unpack(p, ACC[s], TM[s], SM)
    stamp(p, 4, False)
    p.wait_vm(tv[-1])
    for s in range(8): unpack(p, PR[s], VR[s], SM)
    for s in range(8): p.I("v_pk_mul_f32", ACC[s], ACC[s], PR[s])
    G = [V(8, 4), V(12, 4)]
    for ch in range(2):
        for e2 in range(4):
            p.I("v_cvt_pk_bf16_f32", G[ch][e2], ACC[7 - 2 * e2][ch], ACC[6 - 2 * e2][ch])
    p.I("ds_write_b128", vlw, G[0]); p.I("ds_write_b128", vlw, G[1], mods="offset:128")
    p.I("s_mov_b32", S(9), 0x05040100); p.I("s_mov_b32", S(10), 0x07060302)
    XG = [V(20, 4), V(24, 4)]
    p.wait_vm(tq[-1])
    for e2 in range(4):
        p.I("v_perm_b32", XG[0][e2], QR[2 * e2 + 1], QR[2 * e2], S(9))
        p.I("v_perm_b32", XG[1][e2], QR[2 * e2 + 1], QR[2 * e2], S(10))
    p.I("ds_write_b128", vlw, XG[0], mods="offset:8192"); p.I("ds_write_b128", vlw, XG[1], mods="offset:8320")
    p.wait_lg0()
    stamp(p, 5)
    p.I("s_barrier")
    O = [V(56 + 4 * i, 4) for i in range(4)]
    to = [p.I("ds_read_b128", O[i], vlr, mods=f"offset:{4096*i}") for i in range(4)]
    for i in range(4):
        p.I("s_add_u32", S(8), S(7), (WS_X if i >= 2 else WS_KV) + (i & 1) * 32 * 4096)
        p.wait_lg(to[i])
        p.I("buffer_store_dwordx4", O[i], vgo, sws, S(8), mods="offen")
    stamp(p, 6)
    if STAMP:
        p.wait_vm0(); stamp(p, 7)
    stamp_out(p, 8, sws, 0)
    p.I("s_endpgm")
    p.label("L_k1_wd")
    p.reset_counters()
    p.I("s_sub_u32", S(3), S(3), NTR)
    p.I("s_cmp_ge_u32", S(3), NWD)
    p.I("s_cbranch_scc1", "L_k1_exit")
    p.I("s_mul_hi_u32", S(56), S(3), 613566757); p.I("s_mul_i32", S(57), S(56), 7); p.I("s_sub_u32", S(57), S(3), S(57))
    vdg = V(12); vds = V(13); vt = V(6); vt2 = V(7); vt3 = V(5)
    p.I("v_lshrrev_b32", vt, 5, V(0)); p.I("v_and_b32", vt2, 31, V(0))
    p.I("v_mul_u32_u24", vdg, 8 * ROWB, vt); p.I("v_lshl_add_u32", vdg, vt2, 2, vdg)
    p.I("v_lshlrev_b32", vds, 9, vt); p.I("v_and_b32", vds, 512, vds)
    p.I("v_lshrrev_b32", vt, 1, vt); p.I("v_lshl_add_u32", vds, vt, 11, vds)
    p.I("v_and_b32", vt3, 1, vt2); p.I("v_lshl_add_u32", vds, vt3, 5, vds)
    p.I("v_bfe_u32", vt3, vt2, 1, 1); p.I("v_lshl_add_u32", vds, vt3, 7, vds)
    p.I("v_bfe_u32", vt3, vt2, 2, 1); p.I("v_lshl_add_u32", vds, vt3, 6, vds)
    p.I("v_bfe_u32", vt3, vt2, 3, 1); p.I("v_lshl_add_u32", vds, vt3, 8, vds)
    p.I("v_lshrrev_b32", vt3, 4, vt2); p.I("v_lshl_add_u32", vds, vt3, 10, vds)
    p.I("s_mul_i32", S(58), S(56), 64 * ROWB); p.I("s_lshl_b32", S(59), S(57), 7); p.I("s_add_u32", S(58), S(58), S(59))
    p.I("s_mul_i32", S(59), S(57), 229376); p.I("s_lshl_b32", S(62), S(56), 13); p.I("s_add_u32", S(59), S(59), S(62)); p.I("s_add_u32", S(59), S(59), WS_WD)
    p.I("s_mov_b32", S(62), 0x05040100); p.I("s_mov_b32", S(63), 0x07060302)
    p.I("s_waitcnt", "lgkmcnt(0)")
    sws = srd(p, 52, P_WS, WS_SIZE); swd = srd(p, 48, P_WD, D * F * 2)
    WDR = [V(24 + i) for i in range(8)]
    for j in range(8):
        p.I("s_add_u32", S(15), S(58), j * ROWB)
        twd = p.I("buffer_load_dword", WDR[j], vdg, swd, S(15), mods=f"offen {NT_IN}")
    p.wait_vm(twd)
    OG = [V(32, 4), V(36, 4)]
    for e2 in range(4):
        p.I("v_perm_b32", OG[0][e2], WDR[2 * e2 + 1], WDR[2 * e2], S(62)); p.I("v_perm_b32", OG[1][e2], WDR[2 * e2 + 1], WDR[2 * e2], S(63))
    p.I("buffer_store_dwordx4", OG[0], vds, sws, S(59), mods="offen " + ST_WT)
    p.I("buffer_store_dwordx4", OG[1], vds, sws, S(59), mods="offen offset:16 " + ST_WT)
    p.I("s_endpgm")
    p.label("L_k1_stats")
    p.reset_counters()
    SM = S(6)
    p.I("s_mov_b32", SM, 0xffff0000)
    vlane = V(6); vst = V(5)
    p.I("v_and_b32", vlane, 63, V(0))
    p.I("v_lshrrev_b32", vst, 6, V(0))
    p.I("v_mul_u32_u24", vst, 4 * ROWB, vst)
    p.I("v_lshl_add_u32", vst, vlane, 4, vst)
    p.I("s_mul_i32", S(4), S(3), 16 * ROWB)
    p.I("v_cmp_gt_u32", S(14, 2), 56, vlane)
    p.I("s_mov_b64", S(10, 2), EXEC)
    p.I("s_waitcnt", "lgkmcnt(0)")
    sq = srd(p, 48, P_Q, ARR); sws = srd(p, 64, P_WS, WS_SIZE)
    stamp(p, 1, False)
    XS = [V(8 + 4 * i, 4) for i in range(4)]
    SU = [V(24 + i) for i in range(4)]; TT = [V(28 + i) for i in range(4)]; VA = [V(32 + i) for i in range(4)]
    for i in range(4): p.I("v_mov_b32", SU[i], 0); p.I("v_mov_b32", VA[i], 0)
    p.I("s_mov_b32", S(7), 0x3f803f80)
    p.I("s_mov_b64", EXEC, S(14, 2))
    tx = [p.I("buffer_load_dwordx4", XS[i], vst, sq, S(4), mods=f"offen offset:{i*896}") for i in range(4)]
    for i in range(4):
        p.wait_vm(tx[i])
        for j in range(4): p.I("v_dot2_f32_bf16", SU[i], XS[i][j], S(7), SU[i])
    stamp(p, 2, False)
    p.I("s_mov_b64", EXEC, S(10, 2))
    wave_sum_multi(p, SU, TT)
    p.I("s_mov_b32", S(8), 0x3b124925)
    for i in range(4): p.I("v_mul_f32", SU[i], S(8), SU[i])
    p.I("s_mov_b64", EXEC, S(14, 2))
    for i in range(4):
        U = V(40 + 8 * i, 8)
        for j in range(4): unpack(p, U[2 * j:2 * j + 2], XS[i][j], SM)
        for j in range(8): p.I("v_sub_f32", U[j], U[j], SU[i])
    for j in range(8):
        for i in range(4):
            U = V(40 + 8 * i, 8)
            p.I("v_fmac_f32", VA[i], U[j], U[j])
    p.I("s_mov_b64", EXEC, S(10, 2))
    wave_sum_multi(p, VA, TT)
    O = V(36, 4)
    p.I("s_mov_b32", S(9), 0x3727c5ac)
    for i in range(4): p.I("v_mul_f32", VA[i], S(8), VA[i])
    for i in range(4): rnd1(p, VA[i])
    for i in range(4): p.I("v_add_f32", VA[i], S(9), VA[i])
    for i in range(4): rnd1(p, VA[i])
    for i in range(4): p.I("v_sqrt_f32", VA[i], VA[i])
    for i in range(4): p.I("v_cvt_pk_bf16_f32", O[i], SU[i], VA[i])
    p.I("v_lshrrev_b32", V(1), 6, V(0))
    p.I("v_lshlrev_b32", V(1), 4, V(1))
    p.I("s_lshl_b32", S(4), S(3), 6)
    p.I("s_add_u32", S(4), S(4), WS_ST1)
    p.I("v_cmp_eq_u32", VCC, 0, vlane)
    p.I("s_and_saveexec_b64", S(10, 2), VCC)
    p.I("buffer_store_dwordx4", O, V(1), sws, S(4), mods="offen")
    p.I("s_mov_b64", EXEC, S(10, 2))
    stamp(p, 3)
    stamp_out(p, 4, sws, 0)
    p.label("L_k1_exit")
    p.I("s_endpgm")
    p.label("L_k1_mod")
    p.reset_counters()
    p.I("s_cmp_ge_u32", S(2), 84)
    p.I("s_cbranch_scc1", "L_k1_exit")
    p.I("s_lshr_b32", S(3), S(2), 1); p.I("s_and_b32", S(5), S(2), 1)
    p.I("s_waitcnt", "lgkmcnt(0)")
    swm = srd(p, 48, P_WM, D * 6 * D * 2); sc = srd(p, 52, P_C, D * 2); sws = srd(p, 64, P_WS, WS_SIZE)
    p.I("s_lshl_b32", S(4), S(3), 7); p.I("s_mul_i32", S(12), S(5), 224 * 6 * D * 2); p.I("s_add_u32", S(4), S(4), S(12))
    p.I("s_mul_i32", S(12), S(5), 448)
    def coef_ld(p, vrg):
        C = [V(64 + i) for i in range(7)]
        p.I("v_lshlrev_b32", V(92), 1, vrg)
        return [p.I("buffer_load_ushort", C[i], V(92), sc, S(12), mods=f"offen offset:{i*64}") for i in range(7)]
    def coef(p, t):
        C = [V(64 + i) for i in range(7)]; E = [V(78 + i) for i in range(7)]
        p.I("s_mov_b32", S(9), 0xbfb8aa3b)
        p.wait_vm(t[-1])
        for i in range(7): p.I("v_lshlrev_b32", C[i], 16, C[i])
        for i in range(7): p.I("v_mul_f32", E[i], S(9), C[i])
        for i in range(7): p.I("v_exp_f32", E[i], E[i])
        for i in range(7): p.I("v_add_f32", E[i], 1.0, E[i])
        for i in range(7): p.I("v_rcp_f32", E[i], E[i])
        for i in range(7): p.I("v_mul_f32", C[i], C[i], E[i])
        for i in range(7): rnd1(p, C[i])
        return [C]
    def outf(p, res, va):
        p.I("s_lshl_b32", S(4), S(3), 8); p.I("s_mul_i32", S(12), S(5), MODP); p.I("s_add_u32", S(4), S(4), S(12))
        p.I("s_add_u32", S(4), S(4), WS_MOD)
        p.I("buffer_store_dword", res[0], va, sws, S(4), mods="offen")
    gemv64(p, swm, 6 * D * 2, S(4), 1, (coef_ld, coef), outf, "k1mod", sws, NT_IN)
    return p

KC0 = 0; KCS = 4160; KCC = 4 * KCS
KV0 = 2 * KCC; KVC = 5120
P0 = KV0 + 2 * KVC; PS = 9216
SIDE0 = P0 + 4 * PS
HK0 = SIDE0 + 4096
K2_LDS = HK0
NCONV = 224
PKSIDE = int(os.environ.get('PKSIDE', '1'))
def k2_post(p, c, SM, sws, X, H, KVD, GA2, base):
    vr = V(base); vt = V(base + 1); PPa = V(base + 2, 8); PPb = V(base + 10, 8); TM = V(base + 18, 4)
    def pr(R_, j): return R_[2 * j:2 * j + 2]
    tp = []
    for h, PPx in enumerate((PPa, PPb)):
        for k_ in range(2):
            tp.append(p.I("ds_read_b128", PPx[4 * k_:4 * k_ + 4], vr, mods=f"offset:{(2*c+h)*PS + 16*k_}"))
    def rnd8(R_):
        for j in range(4): p.I("v_cvt_pk_bf16_f32", TM[j], R_[2 * j], R_[2 * j + 1])
        for j in range(4): unpack(p, pr(R_, j), TM[j], SM)
    Y = PPa
    p.wait_lg(tp[-1])
    for j in range(4): p.I("v_pk_add_f32", pr(Y, j), pr(PPa, j), pr(PPb, j))
    rnd8(Y)
    for j in range(4): p.I("v_pk_add_f32", pr(Y, j), pr(Y, j), pr(KVD, j))
    rnd8(Y)
    for j in range(4): p.I("v_pk_mul_f32", pr(Y, j), pr(Y, j), pr(H, j))
    rnd8(Y)
    for j in range(4): p.I("v_pk_mul_f32", pr(Y, j), pr(Y, j), GA2)
    rnd8(Y)
    for j in range(4): p.I("v_pk_add_f32", pr(Y, j), pr(Y, j), pr(X, j))
    for j in range(4): p.I("v_cvt_pk_bf16_f32", TM[j], Y[2 * j], Y[2 * j + 1])
    p.I("buffer_store_dwordx4", TM, vt, sws, S(12), mods="offen")

def k2_post_addr(p, c, base, vtid):
    vr = V(base); vt = V(base + 1)
    p.I("v_lshrrev_b32", vr, 2, vtid); p.I("v_lshlrev_b32", vr, 4, vr); p.I("v_lshl_add_u32", vr, vtid, 5, vr); p.I("v_add_u32", vr, P0, vr)
    p.I("v_lshlrev_b32", vt, 4, vtid)
    p.I("s_mul_i32", S(12), S(3), 2 * X1P); p.I("s_add_u32", S(12), S(12), WS_X1 + c * X1P)

def k2_pre_ops(SM, XG, SPk, KG, X, H, KVD, M_, R_, TM, ca1, sa, dd):
    L = []
    def F_(*a, **k): L.append((a, k))
    for j in range(4): F_("v_lshlrev_b32", X[2 * j], 16, XG[j]); F_("v_and_b32", X[2 * j + 1], SM, XG[j])
    for i in range(8): F_("v_and_b32", R_[i], SM, SPk[i]); F_("v_lshlrev_b32", M_[i], 16, SPk[i])
    for i in range(8): F_("v_rcp_f32", R_[i], R_[i]); F_("v_sub_f32", H[i], X[i], M_[i])
    def rnd(R__):
        for j in range(4): F_("v_cvt_pk_bf16_f32", TM[j], R__[2 * j], R__[2 * j + 1])
        for j in range(4): F_("v_lshlrev_b32", R__[2 * j], 16, TM[j]); F_("v_and_b32", R__[2 * j + 1], SM, TM[j])
    rnd(H)
    for i in range(8): F_("v_mul_f32", H[i], H[i], R_[i])
    rnd(H)
    for i in range(8): F_("v_mul_f32", H[i], H[i], ca1)
    rnd(H)
    for i in range(8): F_("v_add_f32", H[i], H[i], sa)
    rnd(H)
    F_("KGWAIT")
    for e2 in range(4): F_("v_lshlrev_b32", KVD[7 - 2 * e2], 16, KG[e2]); F_("v_and_b32", KVD[6 - 2 * e2], SM, KG[e2])
    for i in range(8): F_("v_mul_f32", KVD[i], KVD[i], dd)
    rnd(KVD)
    return L

def k2_consts(p, SM, c, ca1, sa, dd, GA2, tmp):
    P_ = V(ca1.n, 2)
    p.I("v_mov_b32", ca1, S(61)); p.I("v_mov_b32", sa, S(60)); p.I("v_mov_b32", GA2[0], S(62))
    p.I("v_add_f32", ca1, S(64), ca1); p.I("v_add_f32", sa, S(63), sa); p.I("v_add_f32", GA2[0], S(65), GA2[0])
    rnd_pair(p, P_, tmp, SM); rnd1(p, GA2[0]); p.I("v_mov_b32", GA2[1], GA2[0])
    p.I("v_add_f32", ca1, 1.0, ca1); rnd1(p, ca1)
    p.I("v_mov_b32", dd, S(66))
    if c == 0: p.I("v_lshlrev_b32", dd, 16, dd)
    else: p.I("v_and_b32", dd, SM, dd)

def k2_const_loads(p, c):
    p.I("s_add_u32", S(98), S(P_WS), S(9)); p.I("s_addc_u32", S(99), S(P_WS + 1), 0)
    for i in range(3):
        p.I("s_load_dword", S(60 + i), S(98, 2), i * D * 4 + 4 * c); p.I("s_load_dword", S(63 + i), S(98, 2), MODP + i * D * 4 + 4 * c)
    p.I("s_lshl_b32", S(9), S(3), 2)
    p.I("s_add_u32", S(58), S(P_SD), S(9)); p.I("s_addc_u32", S(59), S(P_SD + 1), 0)
    p.I("s_load_dword", S(66), S(58, 2), 0)

def k2_kvaddr(p, vk, vt, vtid, c):
    p.I("v_and_b32", vk, 3, vtid); p.I("v_lshlrev_b32", vk, 8, vk)
    p.I("v_bfe_u32", vt, vtid, 2, 4); p.I("v_lshl_add_u32", vk, vt, 4, vk)
    p.I("v_lshrrev_b32", vt, 6, vtid); p.I("v_lshl_add_u32", vk, vt, 10, vk)

def gen_k2():
    p = Prog()
    load_kernargs(p)
    stamp(p, 0, False)
    p.I("s_cmp_ge_u32", S(2), NCONV)
    p.I("s_cbranch_scc1", "L_k2_exit")
    SM = S(6)
    p.I("s_mov_b32", SM, 0xffff0000)
    p.I("s_and_b32", S(3), S(2), 7); p.I("s_mul_i32", S(3), S(3), 28); p.I("s_lshr_b32", S(4), S(2), 3)
    p.I("s_add_u32", S(3), S(3), S(4))
    vlane = V(1); vw = V(2)
    p.I("v_and_b32", vlane, 63, V(0))
    p.I("v_lshrrev_b32", vw, 6, V(0))
    p.I("v_readfirstlane_b32", S(4), vw)
    p.I("s_lshl_b32", S(9), S(3), 3); p.I("s_add_u32", S(9), S(9), WS_MOD)
    p.I("s_cmp_ge_u32", S(4), 4)
    p.I("s_cbranch_scc1", "L_k2_side")
    p.I("s_lshr_b32", S(5), S(4), 1)
    p.I("s_and_b32", S(7), S(4), 1)
    p.I("s_lshl_b32", S(8), S(3), 1); p.I("s_add_u32", S(8), S(8), S(5))
    p.I("s_lshl_b32", S(10), S(8), 12)
    KW = [V(88 + 6 * i, 6) for i in range(2)]
    vkl = V(3); vd = V(32); vd2 = V(33); vxo = V(6)
    p.I("s_lshl_b32", S(12), S(7), 11)
    p.I("v_lshl_add_u32", vkl, vlane, 4, S(12))
    p.I("v_and_b32", vd, 15, vlane); p.I("v_lshlrev_b32", vd, 6, vd)
    p.I("v_lshrrev_b32", vd2, 4, vlane); p.I("v_lshl_add_u32", vd, vd2, 4, vd)
    p.I("s_add_u32", S(13), S(12), S(10))
    p.I("s_mul_i32", S(14), S(5), KVC); p.I("s_add_u32", S(14), S(14), KV0)
    p.I("s_add_u32", S(15), S(12), S(14))
    p.I("s_lshl_b32", S(11), S(3), 13); p.I("s_add_u32", S(11), S(11), WS_X + 4096)
    p.I("v_lshlrev_b32", vxo, 4, V(0))
    p.I("s_waitcnt", "lgkmcnt(0)")
    ssk = srd(p, 48, P_SK, ARR); sws = srd(p, 52, P_WS, WS_SIZE)
    stamp(p, 1, False)
    tkw = []
    for i in range(2):
        p.I("buffer_load_dwordx4", KW[i][0:4], vkl, ssk, S(10), mods=f"offen offset:{1024*i} {NT_IN}")
        tkw.append(p.I("buffer_load_dwordx2", KW[i][4:6], vkl, ssk, S(10), mods=f"offen offset:{1024*i+16} {NT_IN}"))
    for qq in range(2):
        p.I("s_add_u32", M0, S(15), 1024 + qq * 1024)
        p.I("s_add_u32", S(70), S(13), WS_KV + qq * 1024)
        tdma = p.I("buffer_load_dwordx4", vd, sws, S(70), mods="offen lds")
    XG = V(8, 4); SPk = V(16, 8); vso = V(7)
    p.I("v_lshlrev_b32", vso, 5, V(0)); p.I("s_mov_b32", S(71), WS_ST1)
    txg = p.I("buffer_load_dwordx4", XG, vxo, sws, S(11), mods="offen")
    for i in range(2): txg = p.I("buffer_load_dwordx4", SPk[4 * i:4 * i + 4], vso, sws, S(71), mods=f"offen offset:{16*i}")
    k2_const_loads(p, 1)
    stamp(p, 2, False)
    p.I("s_mul_i32", S(15), S(5), KCC)
    Z = V(36, 4); va = V(35); vb = V(40)
    for i in range(4): p.I("v_mov_b32", Z[i], 0)
    p.I("s_lshl_b32", S(12), S(7), 9); p.I("s_add_u32", S(12), S(12), S(14))
    p.I("v_lshl_add_u32", va, vlane, 4, S(12))
    p.I("v_bfe_u32", vb, vlane, 2, 2); p.I("v_mul_u32_u24", vb, KCS, vb)
    p.I("v_and_b32", V(41), 3, vlane); p.I("v_lshl_add_u32", vb, V(41), 4, vb); p.I("v_add_u32", vb, S(15), vb)
    p.I("v_cmp_gt_u32", VCC, 32, vlane)
    p.I("v_cndmask_b32", va, vb, va, VCC)
    p.I("s_lshl_b32", S(13), S(7), 4); p.I("s_sub_u32", S(13), 48, S(13))
    p.I("v_cmp_gt_u32", VCC, S(13), vlane)
    p.I("s_and_saveexec_b64", S(68, 2), VCC)
    p.I("ds_write_b128", va, Z)
    p.I("s_mov_b64", EXEC, S(68, 2))
    vA = V(42); vB = V(43); vi = V(44); vq = V(45); vt = V(46); vp = V(47); vk = V(49)
    p.I("v_and_b32", vi, 15, vlane); p.I("v_lshrrev_b32", vq, 4, vlane)
    p.I("v_add_u32", vt, 1, vi)
    p.I("v_and_b32", vA, 3, vt); p.I("v_mul_u32_u24", vA, KCS, vA)
    p.I("v_and_b32", vt, 28, vt); p.I("v_lshl_add_u32", vA, vt, 1, vA)
    p.I("v_lshlrev_b32", vt, 4, vq); p.I("v_sub_u32", vA, vA, vt)
    p.I("s_lshl_b32", S(13), S(7), 9); p.I("s_add_u32", S(12), S(15), S(13))
    p.I("s_add_u32", S(12), S(12), KC0 + 48)
    p.I("v_add_u32", vA, S(12), vA)
    VB = [V(24 + r) for r in range(8)]
    p.I("s_lshl_b32", S(12), S(7), 3); p.I("s_sub_u32", S(12), 16, S(12))
    p.I("v_lshl_add_u32", vB, vq, 8, S(14))
    p.I("v_add_u32", V(48), S(12), vi)
    for r in range(8):
        p.I("v_subrev_u32", vt, r, V(48))
        p.I("v_and_b32", VB[r], 15, vt); p.I("v_lshl_add_u32", VB[r], VB[r], 4, vB)
        p.I("v_lshrrev_b32", vt, 4, vt); p.I("v_lshl_add_u32", VB[r], vt, 10, VB[r])
    p.I("v_mul_u32_u24", vp, 144, vi); p.I("v_lshl_add_u32", vp, vq, 4, vp)
    p.I("s_mul_i32", S(12), S(4), PS); p.I("s_add_u32", S(12), S(12), P0)
    p.I("v_add_u32", vp, S(12), vp)
    k2_kvaddr(p, vk, vt, V(0), 1)
    k2_post_addr(p, 1, 120, V(0))
    vcw = V(34); FX = V(4, 2)
    p.I("v_add_u32", vcw, S(15), vkl)
    p.I("v_lshlrev_b32", vb, 4, vlane); p.I("v_sub_u32", vb, 48, vb)
    p.I("v_mul_u32_u24", va, KCS, vlane); p.I("v_add_u32", va, S(15), va)
    p.I("s_lshl_b32", S(13), S(7), 2); p.I("s_sub_u32", S(13), 4, S(13))
    p.I("v_cmp_gt_u32", S(72, 2), S(13), vlane)
    ACC = [[A(8 * j + 4 * m, 4) for m in range(2)] for j in range(4)]
    for i in range(2):
        AL = V(100 + 6 * i, 6)
        p.wait_vm(tkw[i])
        if i == 0: stamp(p, 3, False)
        o = KC0 + 64 + 1024 * i
        p.I("ds_write_b128", vcw, KW[i][0:4], mods=f"offset:{o}")
        for j in range(5): p.I("v_alignbit_b32", AL[j], KW[i][j + 1], KW[i][j], 16)
        p.I("ds_write_b128", vcw, AL[0:4], mods=f"offset:{o + KCS}")
        C2 = V(112, 4); C3 = V(116, 4)
        for j in range(4): p.I("v_mov_b32", C2[j], KW[i][j + 1])
        p.I("ds_write_b128", vcw, C2, mods=f"offset:{o + 2*KCS}")
        for j in range(4): p.I("v_mov_b32", C3[j], AL[j + 1])
        p.I("ds_write_b128", vcw, C3, mods=f"offset:{o + 3*KCS}")
    p.I("v_readfirstlane_b32", S(70), KW[0][0]); p.I("v_readfirstlane_b32", S(71), KW[0][1])
    p.I("v_mov_b32", FX[0], S(70)); p.I("v_mov_b32", FX[1], S(71))
    p.I("v_lshlrev_b64", FX, vb, FX)
    p.I("v_lshlrev_b64", FX, 16, FX)
    p.I("s_mov_b64", EXEC, S(72, 2))
    p.I("ds_write_b64", va, FX, mods="offset:56")
    p.I("s_mov_b64", EXEC, S(68, 2))
    stamp(p, 4, False)
    p.I("s_waitcnt", "lgkmcnt(0)"); p.lg_done = p.lg_issued
    ca1 = V(50); sa = V(51); dd = V(52); GA2 = V(12, 2)
    k2_consts(p, SM, 1, ca1, sa, dd, GA2, V(53))
    X = V(144, 8); H = V(152, 8); KVD = V(160, 8); M_ = V(168, 8); R_ = V(176, 8); TMf = V(184, 4); KG = V(188, 4)
    fill = k2_pre_ops(SM, XG, SPk, KG, X, H, KVD, M_, R_, TMf, ca1, sa, dd)
    p.wait_vm(tdma)
    stamp(p, 5)
    p.I("s_barrier")
    stamp(p, 6)
    BB = [[V(56 + 16 * s_ + 4 * t, 4) for t in range(4)] for s_ in range(2)]
    AR = [V(88 + 4 * i, 4) for i in range(8)]
    loads = []; mf = []
    acount = 0
    for rp in range(8):
        bs = BB[rp & 1]
        bidx = {}
        def addB(t):
            loads.append(("b128", bs[t], VB[rp], 1024 * t)); bidx[t] = len(loads) - 1
        first = True
        for ip in range(4):
            for m in range(2):
                ar = AR[acount % 8]; acount += 1
                off = 64 * rp + 1024 * ip + 32 * m
                if first: addB(0)
                loads.append(("b64", ar[0:2], vA, off)); loads.append(("b64", ar[2:4], vA, off + 8))
                aidx = len(loads) - 1
                if first:
                    addB(1); addB(2); addB(3); first = False
                for j in range(ip, 4):
                    mf.append((ACC[j][m], ar, bs[j - ip], max(aidx, bidx[j - ip]), rp == 0 and ip == 0))
    LOOK = 13
    tick = {}
    lastuse = {}
    for mi, (acc, a_, b_, need, z) in enumerate(mf):
        for rr in a_.regs() + b_.regs(): lastuse.setdefault(rr, []).append((mi, need))
    def issue(li, mi_done):
        kind, dst, va_, off = loads[li]
        for rr in dst.regs():
            for (mi, need) in lastuse[rr]:
                if need < li and mi >= mi_done: raise AssertionError(("WAR", li, mi, rr))
        tick[li] = p.I("ds_read_b128" if kind == "b128" else "ds_read_b64", dst, va_, mods=f"offset:{off}")
    nl = 0
    tkg = p.I("ds_read_b128", KG, vk, mods=f"offset:{KV0 + KVC + 1024}")
    while nl < LOOK: issue(nl, 0); nl += 1
    p.wait_vm(txg)
    def emitf():
        a, k = fill.pop(0)
        if a[0] == "KGWAIT": p.wait_lg(tkg)
        else: p.I(*a, **k)
    for mi, (acc, a_, b_, need, z) in enumerate(mf):
        assert need < nl
        p.wait_lg(tick[need])
        p.I("v_mfma_f32_16x16x32_bf16", acc, a_, b_, 0 if z else acc)
        if nl < len(loads): issue(nl, mi + 1); nl += 1
        if fill: emitf()
    while fill: emitf()
    stamp(p, 7)
    for j in range(4):
        for m in range(2):
            p.I("ds_write_b128", vp, ACC[j][m], mods=f"offset:{2304*j + 64*m}")
    p.wait_lg0()
    p.I("s_barrier")
    k2_post(p, 1, SM, sws, X, H, KVD, GA2, 120)
    stamp_out(p, 8, sws, 1)
    p.I("s_endpgm")
    p.label("L_k2_side")
    p.reset_counters()
    p.I("s_sub_u32", S(4), S(4), 4)
    p.I("s_mul_hi_u32", S(7), S(2), 153391690); p.I("s_mul_i32", S(8), S(7), 28); p.I("s_sub_u32", S(8), S(2), S(8))
    vtt = V(3); vt = V(6); vo = V(7); vco = V(8); vst = V(9); vt2 = V(10); vxo = V(4); vso = V(5); vk = V(11); vhk = V(12)
    p.I("v_subrev_u32", vtt, 256, V(0))
    p.I("v_lshlrev_b32", vo, 2, vlane)
    p.I("v_and_b32", vco, 7, vlane); p.I("v_lshlrev_b32", vco, 2, vco)
    p.I("s_cmp_ge_u32", S(8), 14)
    p.I("s_cselect_b32", S(13), 14, 0); p.I("s_cselect_b32", S(10), 256, 0)
    p.I("s_sub_u32", S(13), S(8), S(13))
    p.I("s_lshl_b32", S(11), S(13), 3)
    p.I("v_lshrrev_b32", vt, 3, vlane); p.I("v_add_u32", vt, S(11), vt)
    p.I("s_mov_b32", S(11), 28672)
    p.I("v_mul_lo_u32", vst, vt, S(11))
    p.I("v_and_b32", vt, 1, vlane); p.I("v_lshl_add_u32", vst, vt, 5, vst)
    p.I("v_bfe_u32", vt, vlane, 1, 1); p.I("v_lshl_add_u32", vst, vt, 7, vst)
    p.I("v_bfe_u32", vt, vlane, 2, 1); p.I("v_lshl_add_u32", vst, vt, 6, vst)
    p.I("s_mul_i32", S(14), S(7), 7); p.I("s_add_u32", S(14), S(14), S(4))
    p.I("s_lshl_b32", S(11), S(14), 9); p.I("s_add_u32", S(11), S(11), S(10)); p.I("s_add_u32", S(11), S(11), WS_WP)
    p.I("s_mul_i32", S(56), S(14), 8 * 3584); p.I("s_lshl_b32", S(57), S(13), 8); p.I("s_add_u32", S(56), S(56), S(57))
    p.I("s_lshl_b32", S(57), S(14), 5); p.I("s_add_u32", S(57), S(57), WS_MOD + 3 * D * 4)
    p.I("s_lshl_b32", S(15), S(3), 13); p.I("s_add_u32", S(15), S(15), WS_X)
    p.I("v_lshlrev_b32", vxo, 4, vtt); p.I("v_lshlrev_b32", vso, 5, vtt)
    k2_kvaddr(p, vk, vt, vtt, 0)
    p.I("s_waitcnt", "lgkmcnt(0)")
    stamp(p, 1, False)
    p.I("s_cmp_ge_u32", S(8), 14)
    p.I("s_cselect_b32", S(46), S(P_WU), S(P_WG)); p.I("s_cselect_b32", S(47), S(P_WU + 1), S(P_WG + 1))
    sw = srd(p, 48, 46, D * F * 2); sws = srd(p, 52, P_WS, WS_SIZE)
    k2_const_loads(p, 0)
    WR = [[V(16 + 8 * ps + j) for j in range(8)] for ps in range(2)]
    CF = [V(32 + 4 * ps, 4) for ps in range(2)]
    tw = {}; tcf = {}
    for ps in range(2):
        for a_ in range(4):
            p.I("s_add_u32", S(70), S(57), (a_ & 1) * D * 4 + (a_ >> 1) * MODP + ps * 128)
            tcf[ps] = p.I("buffer_load_dword", CF[ps][a_], vco, sws, S(70), mods="offen")
        for j in range(8):
            p.I("s_add_u32", S(70), S(56), (32 * ps + j) * 3584)
            tw[ps] = p.I("buffer_load_dword", WR[ps][j], vo, sw, S(70), mods=f"offen {NT_IN}")
    XG = V(40, 4); SPk = V(48, 8)
    p.I("s_mov_b32", S(71), WS_ST1)
    p.I("buffer_load_dwordx4", XG, vxo, sws, S(15), mods="offen")
    for i in range(2): tst = p.I("buffer_load_dwordx4", SPk[4 * i:4 * i + 4], vso, sws, S(71), mods=f"offen offset:{16*i}")
    AS = V(96, 4); AS2 = V(124, 4)
    for i in range(4): p.I("v_mov_b32", AS[i], 0); p.I("v_mov_b32", AS2[i], 0)
    p.I("s_mov_b32", S(59), 0x3f803f80)
    k2_post_addr(p, 0, 144, vtt)
    p.I("s_mov_b32", S(97), S(12))
    stamp(p, 2, False)
    p.I("s_barrier")
    stamp(p, 3, False)
    for ps in range(2):
        if ps == 1:
            p.I("s_cmp_eq_u32", S(4), 3); p.I("s_cbranch_scc1", "L_k2_skip1")
        cf = CF[ps]
        p.wait_vm(tcf[ps])
        p.I("v_add_f32", cf[0], cf[0], cf[2]); p.I("v_add_f32", cf[1], cf[1], cf[3])
        rnd_pair(p, cf[0:2], cf[2], SM)
        p.I("v_add_f32", cf[1], 1.0, cf[1]); rnd1(p, cf[1])
        for j in range(8): p.I("v_readlane_b32", S(16 + j), cf[0], j); p.I("v_readlane_b32", S(24 + j), cf[1], j)
        U0 = V(100, 8); U1 = V(108, 8); O = [V(116, 4), V(120, 4)]
        p.wait_vm(tw[ps])
        if ps == 0: stamp(p, 4, False)
        for j in range(8): p.I("v_lshlrev_b32", U0[j], 16, WR[ps][j]); p.I("v_and_b32", U1[j], SM, WR[ps][j])
        for j in range(8):
            A_ = AS if j & 1 else AS2
            p.I("v_fmac_f32", A_[2], S(16 + j), U0[j]); p.I("v_fmac_f32", A_[3], S(16 + j), U1[j])
            p.I("v_mul_f32", U0[j], S(24 + j), U0[j]); p.I("v_mul_f32", U1[j], S(24 + j), U1[j])
        for j in range(4): p.I("v_cvt_pk_bf16_f32", O[0][j], U0[2 * j], U0[2 * j + 1]); p.I("v_cvt_pk_bf16_f32", O[1][j], U1[2 * j], U1[2 * j + 1])
        p.I("s_add_u32", S(70), S(11), ps * 2048)
        if ps == 0:
            p.I("buffer_store_dwordx4", O[0], vst, sws, S(70), mods=f"offen {ST_WT}")
            p.I("buffer_store_dwordx4", O[1], vst, sws, S(70), mods=f"offen offset:16 {ST_WT}")
        else:
            p.raw(f"    buffer_store_dwordx4 {O[0]}, {vst}, {sws}, s70 offen {ST_WT}")
            p.raw(f"    buffer_store_dwordx4 {O[1]}, {vst}, {sws}, s70 offen offset:16 {ST_WT}")
            p.I("s_nop", 1)
        for j in range(4):
            unpack(p, U0[2 * j:2 * j + 2], O[0][j], SM); unpack(p, U1[2 * j:2 * j + 2], O[1][j], SM)
        for j in range(4):
            p.I("v_add_f32", U0[j], U0[j], U0[4 + j]); p.I("v_add_f32", U1[j], U1[j], U1[4 + j])
        for j in range(2):
            p.I("v_add_f32", U0[j], U0[j], U0[2 + j]); p.I("v_add_f32", U1[j], U1[j], U1[2 + j])
        p.I("v_add_f32", AS[0], AS[0], U0[0]); p.I("v_add_f32", AS[1], AS[1], U1[0]); p.I("v_add_f32", AS2[0], AS2[0], U0[1]); p.I("v_add_f32", AS2[1], AS2[1], U1[1])
    p.label("L_k2_skip1")
    p.I("s_nop", 4)
    p.wait_vm(tst)
    for i in range(4):
        p.I("v_add_f32", AS[i], AS[i], AS2[i])
    p.I("s_lshl_b32", S(70), S(4), 10); p.I("s_add_u32", S(70), S(70), SIDE0)
    p.I("v_lshl_add_u32", vt, vlane, 4, S(70))
    p.I("ds_write_b128", vt, AS)
    stamp(p, 5, False)
    KG = V(16, 4)
    p.I("s_waitcnt", "lgkmcnt(0)"); p.lg_done = p.lg_issued
    tkg = p.I("ds_read_b128", KG, vk, mods=f"offset:{KV0 + 1024}")
    ca1 = V(24); sa = V(25); dd = V(26); GA2 = V(36, 2)
    k2_consts(p, SM, 0, ca1, sa, dd, GA2, V(38))
    X = V(72, 8); H = V(88, 8); KVD = V(108, 8)
    p.wait_vm(tst)
    for a_, k_ in k2_pre_ops(SM, XG, SPk, KG, X, H, KVD, V(56, 8), V(64, 8), V(124, 4), ca1, sa, dd):
        if a_[0] == "KGWAIT": p.wait_lg(tkg)
        else: p.I(*a_, **k_)
    p.wait_lg0()
    stamp(p, 6)
    p.I("s_barrier")
    p.I("s_mov_b32", S(12), S(97))
    k2_post(p, 0, SM, sws, X, H, KVD, GA2, 144)
    stamp(p, 7)
    stamp_out(p, 8, sws, 1)
    p.I("s_cmp_lg_u32", S(4), 0)
    p.I("s_cbranch_scc1", "L_k2_exit")
    p.I("v_lshlrev_b32", vt, 4, vlane); p.I("v_add_u32", vt, SIDE0, vt)
    RR = [V(16 + 4 * w, 4) for w in range(4)]
    for w in range(4): p.I("ds_read_b128", RR[w], vt, mods=f"offset:{1024*w}")
    p.wait_lg0()
    for i in range(4):
        p.I("v_add_f32", RR[0][i], RR[0][i], RR[1][i]); p.I("v_add_f32", RR[2][i], RR[2][i], RR[3][i]); p.I("v_add_f32", RR[0][i], RR[0][i], RR[2][i])
    p.I("s_mul_i32", S(58), S(7), 3584 * 4); p.I("s_lshl_b32", S(59), S(8), 9); p.I("s_add_u32", S(58), S(58), S(59))
    p.I("s_add_u32", S(59), S(58), WS_BI); p.I("s_add_u32", S(58), S(58), WS_CS)
    p.I("v_lshlrev_b32", vt, 3, vlane)
    p.I("buffer_store_dwordx2", RR[0][0:2], vt, sws, S(58), mods="offen")
    p.I("buffer_store_dwordx2", RR[0][2:4], vt, sws, S(59), mods="offen")
    p.I("s_cmp_lg_u32", S(2), 0)
    p.I("s_cbranch_scc1", "L_k2_exit")
    p.I("v_lshlrev_b32", vt, 6, vlane); p.I("v_mov_b32", V(16), 0); p.I("s_mov_b32", S(58), WS_FLAG)
    p.I("buffer_store_dword", V(16), vt, sws, S(58), mods="offen")
    p.label("L_k2_exit")
    p.I("s_endpgm")
    return p

WA = 126976
WSLOT = [WA, 0, 32768, 65536, 98304, WA, 0]
TAB0 = 155648
K4_LDS = TAB0 + 1792
EMU = int(os.environ.get('EMU', '0'))
K4MAP = int(os.environ.get('K4MAP', '0'))
PER = int(os.environ.get('PER', '4'))
XP = os.environ.get('XP', '')
ACT_ST = os.environ.get('ACT_ST', 'sc1')
K5_LD = os.environ.get('K5_LD', '')
K4_LD = os.environ.get('K4_LD', '')
def gen_k4():
    p = Prog()
    load_kernargs(p)
    stamp(p, 0, False)
    p.I("s_cmp_ge_u32", S(2), 256)
    p.I("s_cbranch_scc1", "L_k4_exit")
    SM = S(6)
    p.I("s_mov_b32", SM, 0xffff0000)
    if K4MAP == 0:
        p.I("s_bfe_u32", S(3), S(2), 0x10002); p.I("s_lshl_b32", S(3), S(3), 3); p.I("s_lshr_b32", S(4), S(2), 5); p.I("s_add_u32", S(3), S(3), S(4))
        p.I("s_and_b32", S(5), S(2), 3); p.I("s_lshl_b32", S(5), S(5), 2); p.I("s_bfe_u32", S(4), S(2), 0x20003); p.I("s_add_u32", S(5), S(5), S(4))
    elif K4MAP == 1:
        p.I("s_and_b32", S(3), S(2), 7); p.I("s_lshl_b32", S(3), S(3), 1); p.I("s_lshr_b32", S(4), S(2), 7); p.I("s_add_u32", S(3), S(3), S(4))
        p.I("s_bfe_u32", S(5), S(2), 0x40003)
    else:
        p.I("s_bfe_u32", S(3), S(2), 0x20001); p.I("s_lshl_b32", S(3), S(3), 2); p.I("s_lshr_b32", S(4), S(2), 6); p.I("s_add_u32", S(3), S(3), S(4))
        p.I("s_and_b32", S(5), S(2), 1); p.I("s_lshl_b32", S(5), S(5), 3); p.I("s_bfe_u32", S(4), S(2), 0x30003); p.I("s_add_u32", S(5), S(5), S(4))
    vlane = V(1); vw = V(2)
    p.I("v_and_b32", vlane, 63, V(0))
    p.I("v_lshrrev_b32", vw, 6, V(0))
    p.I("v_readfirstlane_b32", S(4), vw)
    p.I("s_cmp_ge_u32", S(4), 4)
    p.I("s_cbranch_scc1", "L_k4_load")
    vr = V(4); vc = V(5); vt = V(6); vh = V(7)
    p.I("v_bfe_u32", vr, vlane, 2, 2); p.I("v_and_b32", vc, 3, vlane); p.I("v_lshrrev_b32", vh, 5, vlane)
    VA0 = V(8); VA1 = V(9); VX0 = V(10); VX1 = V(11); vtab = V(12); vo = V(13)
    p.I("v_lshlrev_b32", VA0, 4, vlane); p.I("v_add_u32", VA1, 98304, VA0); VAm = V(3); p.I("v_add_u32", VAm, 65536, VA0)
    p.I("v_lshl_add_u32", vt, vh, 3, vr); p.I("v_lshlrev_b32", VX0, 8, vt)
    p.I("v_xor_b32", vt, S(4), vr); p.I("v_lshl_add_u32", VX0, vt, 6, VX0)
    p.I("v_bfe_u32", vt, vlane, 4, 1); p.I("v_lshl_add_u32", VX0, vt, 5, VX0)
    p.I("v_lshl_add_u32", VX0, vc, 3, VX0); p.I("v_add_u32", VX1, 65536, VX0)
    p.I("v_lshlrev_b32", vtab, 5, vh); p.I("v_add_u32", vtab, TAB0, vtab)
    p.I("v_and_b32", vo, 31, vlane); p.I("v_lshlrev_b32", vo, 4, vo); p.I("v_mul_u32_u24", vt, ACP, vh); p.I("v_add_u32", vo, vo, vt)
    p.I("s_mul_i32", S(7), S(5), 14 * ACP); p.I("s_lshl_b32", S(13), S(3), 11); p.I("s_add_u32", S(7), S(7), S(13))
    p.I("s_lshl_b32", S(13), S(4), 9); p.I("s_add_u32", S(7), S(7), S(13)); p.I("s_add_u32", S(7), S(7), WS_ACT)
    p.I("s_mov_b32", S(8), 0x3b124925); p.I("s_mov_b32", S(9), 0x3727c5ac); p.I("s_mov_b32", S(10), 0xbfb8aa3b)
    XF = [V(96 + 4 * n, 4) for n in range(28)]
    ACC = [V(208, 16), V(224, 16)]
    ONES = V(14, 4)
    for i in range(4): p.I("v_mov_b32", ONES[i], 0x3f803f80)
    GRAM = V(64, 16); OSUM = V(80, 16)
    vi_ = V(18); ve_ = V(19)
    p.I("v_and_b32", vi_, 31, vlane); p.I("v_lshrrev_b32", ve_, 3, vi_); p.I("v_lshlrev_b32", ve_, 2, ve_); p.I("v_and_b32", vt, 3, vi_); p.I("v_add_u32", ve_, ve_, vt)
    p.I("v_bfe_u32", vt, vi_, 2, 1); p.I("v_xor_b32", vt, vt, vh); p.I("v_lshl_add_u32", ve_, vt, 4, ve_)
    for e in range(16): p.I("v_cmp_eq_u32", S(56 + 2 * e, 2), e, ve_)
    p.I("s_waitcnt", "lgkmcnt(0)")
    sws = srd(p, 52, P_WS, WS_SIZE)
    stamp(p, 1, False)
    def areads(addr):
        return (VA0, addr) if addr < 65536 else ((VAm, addr - 65536) if addr < 98304 else (VA1, addr - 98304))
    def xaddr(n, s_):
        ad = n * 4096 + s_ * 1024
        return (VX0, ad) if ad < 65536 else (VX1, ad - 65536)
    FW = [[V(32 + 16 * b_ + 4 * k_, 4) for k_ in range(4)] for b_ in range(2)]
    def procA(c):
        for k_ in range(4):
            n = 4 * c + k_
            p.I("v_mfma_f32_32x32x16_bf16", ACC[0], FW[c & 1][k_], XF[n], 0 if n == 0 else ACC[0])
            p.I("v_mfma_f32_32x32x16_bf16", GRAM, XF[n], XF[n], 0 if n == 0 else GRAM)
            p.I("v_mfma_f32_32x32x16_bf16", OSUM, ONES, XF[n], 0 if n == 0 else OSUM)
    for c in range(7):
        p.I("s_barrier")
        if c == 0: stamp(p, 2)
        for k_ in range(4):
            n = 4 * c + k_
            for s_ in range(2):
                vb, im = xaddr(n, s_); p.I("ds_read_b64_tr_b16", XF[n][2 * s_:2 * s_ + 2], vb, mods=f"offset:{im}")
            vb, im = areads(WA + n * 1024); tl = p.I("ds_read_b128", FW[c & 1][k_], vb, mods=f"offset:{im}")
        if c > 0: procA(c - 1)
        p.wait_lg(tl)
    AR = [V(48, 4), V(52, 4), V(56, 4), V(60, 4), V(240, 4), V(244, 4), V(248, 4), V(252, 4)]
    TB = [V(64, 8), V(72, 8), V(80, 8), V(88, 8)]; E = V(40, 8); TMp = V(28, 4)
    NR = 8; LA = int(os.environ.get('LA', '7'))
    vm = V(18); vv = V(19); vrr = V(20); vrm = V(21); SP = V(22, 2); TT = V(24, 2); vden = V(26); vd2 = V(27); vlr = V(14); vnm = V(15)
    def stats_ops():
        L = []
        def F_(*a, **k): L.append((a, k))
        F_("v_mov_b32", SP[1], 0)
        for e in range(16): F_("v_cndmask_b32", SP[1], SP[1], GRAM[e], S(56 + 2 * e, 2))
        F_("v_mul_f32", vm, S(8), OSUM[0])
        F_("TABREAD", 0)
        F_("v_mov_b32", TT[1], SP[1]); F_("s_nop", 0); F_("v_permlane32_swap_b32", TT[1], SP[1]); F_("v_add_f32", SP[1], SP[1], TT[1])
        F_("v_mul_f32", vv, S(8), SP[1])
        F_("v_fma_f32", vv, Neg(vm), vm, vv); F_("v_max_f32", vv, 0, vv)
        def r1(r): F_("v_cvt_pk_bf16_f32", r, r, r); F_("v_lshlrev_b32", r, 16, r)
        r1(vv); F_("v_add_f32", vv, S(9), vv); r1(vv); F_("v_sqrt_f32", vden, vv); r1(vm); r1(vden)
        F_("v_rcp_f32", vrr, vden); F_("v_mul_f32", vd2, vden, vden); F_("v_sub_f32", vnm, 0, vm); F_("v_mul_f32", vlr, S(10), vrr)
        return L
    def tinit_ops(dst):
        L = []
        def F_(*a, **k): L.append((a, k))
        F_("TABWAIT")
        for j in range(8):
            F_("v_mul_f32", TB[2][j], TB[2][j], vden); F_("v_mul_f32", TB[3][j], TB[3][j], vden)
        return L
    def epi_ops(T):
        L = []
        def F_(*a, **k): L.append((a, k))
        acc = ACC[T & 1]; Gs = acc[0:8]; Us = acc[8:16]; tb = TB
        if True:
            F_("TABWAIT")
            for j in range(8):
                F_("v_fma_f32", tb[2][j], tb[2][j], vden, Gs[j]); F_("v_fma_f32", tb[3][j], tb[3][j], vden, Us[j])
            for j in range(8):
                F_("v_fma_f32", Gs[j], vnm, tb[0][j], tb[2][j]); F_("v_fma_f32", Us[j], vnm, tb[1][j], tb[3][j])
            if T < 6: F_("TABREAD", T + 1)
        for j in range(8): F_("v_mul_f32", E[j], vlr, Gs[j])
        for j in range(8): F_("v_exp_f32", E[j], E[j]); F_("v_mul_f32", Gs[j], Gs[j], Us[j])
        for j in range(8): F_("v_fma_f32", E[j], E[j], vd2, vd2)
        for j in range(8): F_("v_rcp_f32", E[j], E[j])
        for j in range(8): F_("v_mul_f32", Gs[j], Gs[j], E[j])
        for j in range(4): F_("v_cvt_pk_bf16_f32", TMp[j], Gs[2 * j], Gs[2 * j + 1])
        F_("s_add_u32", S(13), S(7), T * 2 * ACP)
        F_("buffer_store_dwordx4", TMp, vo, sws, S(13), mods="offen " + ACT_ST)
        if 1 <= T + 2 <= 6 and T >= 0:
            if T == 0: pass
        return L
    def init_ops(T):
        L = []
        def F_(*a, **k): L.append((a, k))
        acc = ACC[T & 1]
        F_("TABWAIT")
        for j in range(8):
            F_("v_mul_f32", TB[2][j], TB[2][j], vden); F_("v_mul_f32", TB[3][j], TB[3][j], vden)
        for j in range(8):
            F_("v_fma_f32", acc[j], vnm, TB[0][j], TB[2][j]); F_("v_fma_f32", acc[8 + j], vnm, TB[1][j], TB[3][j])
        if T < 6: F_("TABREAD", T + 1)
        return L
    tabt = [None]
    def tabread(T):
        for a_ in range(4):
            for k_ in range(2):
                tabt[0] = p.I("ds_read_b128", TB[a_][4 * k_:4 * k_ + 4], vtab, mods=f"offset:{a_*448 + T*64 + 16*k_}")
    def emit(op):
        a_, k_ = op
        if a_[0] == "TABWAIT": p.wait_lg(tabt[0])
        elif a_[0] == "TABREAD": tabread(a_[1])
        elif 'nofill' in XP and a_[0].startswith("v_"): pass
        elif 'notrans' in XP and a_[0] in TRANS: p.I("v_mov_b32", a_[1], a_[2])
        elif 'nofma' in XP and a_[0] == "v_fma_f32": p.I("v_mov_b32", a_[1], a_[3])
        else: p.I(*a_, **k_)
    p.I("s_barrier")
    stamp(p, 3)
    seq = [(t, n) for t in range(1, 7) for n in range(28)]
    tick = {}
    def rdA(i):
        t, n = seq[i]
        if 'nord' in XP and i > 8:
            tick[i] = p.lg_issued; return
        vb, im = areads(WSLOT[t] + n * 1024)
        tick[i] = p.I("ds_read_b128", AR[i % NR], vb, mods=f"offset:{im}")
    for i in range(LA): rdA(i)
    procA(6)
    fill = stats_ops() + epi_ops(0)
    nxt = LA
    for i, (t, n) in enumerate(seq):
        if n == 0 and t > 1:
            while fill: emit(fill.pop(0))
            fill = epi_ops(t - 1)
        p.wait_lg(tick[i])
        if 'alt' in XP: p.I("v_mfma_f32_32x32x16_bf16", ACC[n & 1], AR[i % NR], XF[n], ACC[n & 1])
        else: p.I("v_mfma_f32_32x32x16_bf16", ACC[t & 1], AR[i % NR], XF[n], 0 if n == 0 else ACC[t & 1])
        if nxt < len(seq):
            if seq[nxt][1] == 0 and seq[nxt][0] in (2, 4):
                p.wait_lg(tick[nxt - 1])
                p.I("s_barrier")
            rdA(nxt); nxt += 1
        per = PER if n >= 1 else 2
        cost = 0
        while fill and cost < per:
            op = fill.pop(0); emit(op)
            cost += 2 if op[0][0] in TRANS else 1
    while fill: emit(fill.pop(0))
    stamp(p, 4)
    for op in epi_ops(6): emit(op)
    p.wait_vm0()
    stamp(p, 5)
    p.I("s_barrier")
    stamp_out(p, 6, sws, 2)
    p.I("s_cmp_lg_u32", S(4), 0)
    p.I("s_cbranch_scc1", "L_k4_exit")
    sdb = sws
    p.I("v_mov_b32", V(2), 1); p.I("v_mov_b32", V(3), 0); p.I("s_lshl_b32", S(13), S(3), 8); p.I("s_add_u32", S(13), S(13), WS_FLAG)
    p.I("v_cmp_eq_u32", VCC, 0, vlane)
    p.I("s_and_saveexec_b64", S(10, 2), VCC)
    p.I("buffer_atomic_add", V(2), V(3), sdb, S(13), mods="offen sc1")
    p.label("L_k4_exit")
    p.I("s_endpgm")
    p.label("L_k4_load")
    p.reset_counters()
    p.I("s_sub_u32", S(4), S(4), 4)
    vL = V(3); vt = V(6); vt2 = V(7); vwl = V(8); vxg = V(9)
    p.I("v_subrev_u32", vL, 256, V(0))
    p.I("v_lshlrev_b32", vwl, 4, vlane)
    p.I("v_lshrrev_b32", vt, 4, vlane); p.I("v_mul_u32_u24", vxg, X1P, vt)
    p.I("v_bfe_u32", vt2, vlane, 2, 2); p.I("v_xor_b32", vt, vt, vt2); p.I("v_lshl_add_u32", vxg, vt, 6, vxg)
    p.I("v_and_b32", vt, 3, vlane); p.I("v_lshl_add_u32", vxg, vt, 4, vxg)
    p.I("s_lshl_b32", S(7), S(3), 8); p.I("s_mul_i32", S(8), S(4), 16 * X1P); p.I("s_add_u32", S(7), S(7), S(8)); p.I("s_add_u32", S(7), S(7), WS_X1)
    p.I("s_lshl_b32", S(10), S(4), 10)
    p.I("s_mul_i32", S(12), S(5), 200704); p.I("s_add_u32", S(12), S(12), S(10)); p.I("s_add_u32", S(12), S(12), WS_WP)
    p.I("s_lshl_b32", S(11), S(4), 12)
    vtg = V(10); vtl = V(11)
    p.I("v_cmp_le_u32", VCC, 112, vL)
    p.I("v_mov_b32", vt, 0); p.I("v_mov_b32", vt2, (1792 - 112) * 4); p.I("v_cndmask_b32", vt, vt, vt2, VCC)
    p.I("v_lshl_add_u32", vtg, vL, 2, vt)
    p.I("v_lshlrev_b32", vtl, 2, vL); p.I("v_add_u32", vtl, TAB0, vtl)
    p.I("s_mul_i32", S(13), S(5), 448); p.I("s_add_u32", S(13), S(13), WS_CS)
    p.I("v_cmp_gt_u32", VCC, 224, vL); p.I("s_mov_b64", S(60, 2), VCC)
    p.I("s_lshr_b32", S(58), S(2), 3); p.I("s_mul_hi_u32", S(56), S(58), 613566757); p.I("s_mul_i32", S(57), S(56), 7); p.I("s_sub_u32", S(57), S(58), S(57))
    p.I("s_and_b32", S(58), S(2), 7); p.I("s_lshl_b32", S(58), S(58), 2); p.I("s_add_u32", S(56), S(56), S(58))
    p.I("s_mul_i32", S(62), S(57), 229376); p.I("s_mul_i32", S(58), S(4), 28 * 2048); p.I("s_add_u32", S(62), S(62), S(58)); p.I("s_add_u32", S(62), S(62), WS_WD)
    p.I("s_lshr_b32", S(58), S(4), 1); p.I("s_lshl_b32", S(58), S(58), 10)
    p.I("s_add_u32", S(63), S(62), 1024); p.I("s_sub_u32", S(63), S(63), S(58)); p.I("s_add_u32", S(62), S(62), S(58))
    p.I("s_waitcnt", "lgkmcnt(0)")
    stamp(p, 1, False)
    sws = srd(p, 52, P_WS, WS_SIZE)
    def issueX(c):
        for i in range(4):
            p.I("s_add_u32", M0, S(11), c * 16384 + i * 1024)
            p.I("s_add_u32", S(15), S(7), (64 * c + 4 * i) * X1P)
            p.I("buffer_load_dwordx4", vxg, sws, S(15), mods="offen lds")
        p.I("s_add_u32", M0, S(10), WA + c * 4096)
        p.I("s_add_u32", S(15), S(12), c * 4096)
        return p.I("buffer_load_dwordx4", vwl, sws, S(15), mods="offen lds")
    def issueW(t):
        for i in range(7):
            p.I("s_add_u32", M0, S(10), WSLOT[t] + i * 4096)
            p.I("s_add_u32", S(15), S(12), t * 28672 + i * 4096)
            tk_ = p.I("buffer_load_dwordx4", vwl, sws, S(15), mods="offen lds")
        return tk_
    tX = {}; tW = {}
    for c in range(3): tX[c] = issueX(c)
    stamp(p, 2, False)
    TBL = [V(48 + i) for i in range(16)]; WDR = [V(24 + i) for i in range(8)]
    for c in range(7):
        p.wait_vm(tX[c])
        if c == 0: stamp(p, 3, False)
        p.I("s_barrier")
        if c + 3 < 7: tX[c + 3] = issueX(c + 3)
        if c == 3:
            p.I("s_mov_b64", S(68, 2), EXEC); p.I("s_mov_b64", EXEC, S(60, 2))
            for i in range(16):
                p.I("s_add_u32", S(15), S(13), (i & 7) * 3584 * 4 + (i >> 3) * (WS_BI - WS_CS))
                ttb = p.I("buffer_load_dword", TBL[i], vtg, sws, S(15), mods="offen")
            p.I("s_mov_b64", EXEC, S(68, 2))
        if c >= 4: tW[c - 3] = issueW(c - 3)
        if c == 5:
            p.wait_vm(ttb)
            for st_ in (1, 2, 4):
                for i in range(0, 16, 2 * st_): p.I("v_add_f32", TBL[i], TBL[i], TBL[i + st_])
            p.I("s_mov_b64", EXEC, S(60, 2))
            p.I("ds_write_b32", vtl, TBL[0]); p.I("ds_write_b32", vtl, TBL[8], mods="offset:896")
            p.I("s_mov_b64", EXEC, S(68, 2))
            p.wait_lg0()
    WRG = [V(16 + 8 * n, 8) for n in range(16)]
    ACC2 = [[V(144 + 32 * a_ + 16 * b_, 16) for b_ in range(2)] for a_ in range(2)]
    WDL = 32768
    def wd_reg(reg8, n):
        p.I("s_add_u32", S(15), S(62), n * 2048); p.I("s_add_u32", S(14), S(63), n * 2048)
        p.I("buffer_load_dwordx4", reg8[0:4], vwl, sws, S(15), mods="offen")
        return p.I("buffer_load_dwordx4", reg8[4:8], vwl, sws, S(14), mods="offen")
    for t in (1, 2, 4):
        p.wait_vm(tW[{1: 1, 2: 3, 4: 6}[t]])
        p.I("s_barrier")
        if t == 1:
            tW[4] = issueW(4)
            for n in range(0, 6): wd_reg(WRG[n], n)
        if t == 2:
            tW[5] = issueW(5); tW[6] = issueW(6)
        if t == 4:
            for n in range(6, 16): wd_reg(WRG[n], n)
            p.I("s_lshl_b32", S(58), S(4), 14); p.I("s_add_u32", S(58), S(58), WDL)
            for n in range(16, 24):
                for a_ in range(2):
                    p.I("s_add_u32", M0, S(58), (n - 16) * 2048 + a_ * 1024)
                    p.I("s_add_u32", S(15), S(62 + a_), n * 2048)
                    p.I("buffer_load_dwordx4", vwl, sws, S(15), mods="offen lds")
    vh = V(4); vaa0 = V(5); vaa1 = V(9); vxa = V(10); vgb = V(11); vwr = V(12); vz = V(13); vF = V(14); vo2 = V(15); vxr = V(3); vpr = V(2)
    p.I("v_lshrrev_b32", vh, 5, vlane)
    p.I("v_and_b32", vt, 31, vlane); p.I("v_lshlrev_b32", vaa0, 4, vt); p.I("v_mul_u32_u24", vt2, ACP, vh); p.I("v_add_u32", vaa0, vaa0, vt2)
    p.I("s_and_b32", S(58), S(4), 1); p.I("s_lshl_b32", S(58), S(58), 9)
    p.I("v_add_u32", vaa1, 512, vaa0); p.I("v_subrev_u32", vaa1, S(58), vaa1); p.I("v_add_u32", vaa0, S(58), vaa0)
    p.I("s_mul_i32", S(7), S(4), 56 * ACP); p.I("s_lshl_b32", S(8), S(56), 10); p.I("s_add_u32", S(7), S(7), S(8)); p.I("s_add_u32", S(7), S(7), WS_ACT)
    p.I("v_mul_u32_u24", vo2, ROWB, vt); p.I("v_lshl_add_u32", vo2, vh, 4, vo2)
    p.I("s_and_b32", S(58), S(4), 1); p.I("s_mul_i32", S(64), S(58), 32 * ROWB); p.I("s_mul_i32", S(59), S(56), 64 * ROWB); p.I("s_add_u32", S(64), S(64), S(59))
    p.I("s_lshl_b32", S(59), S(57), 7); p.I("s_add_u32", S(64), S(64), S(59)); p.I("s_lshr_b32", S(59), S(4), 1); p.I("s_lshl_b32", S(59), S(59), 6); p.I("s_add_u32", S(64), S(64), S(59))
    p.I("v_lshlrev_b32", vgb, 5, vh)
    p.I("s_lshl_b32", S(65), S(57), 8); p.I("s_lshl_b32", S(59), S(59), 1); p.I("s_add_u32", S(65), S(65), S(59)); p.I("s_add_u32", S(65), S(65), WS_MOD + 5 * D * 4)
    p.I("v_lshrrev_b32", vt, 3, vlane); p.I("v_mul_u32_u24", vxa, X1P, vt); p.I("v_and_b32", vt, 7, vlane); p.I("v_lshl_add_u32", vxa, vt, 4, vxa)
    p.I("s_mul_i32", S(9), S(57), 64 * X1P); p.I("s_mul_i32", S(10), S(4), 16 * X1P); p.I("s_add_u32", S(9), S(9), S(10)); p.I("s_lshl_b32", S(10), S(56), 7)
    p.I("s_add_u32", S(9), S(9), S(10)); p.I("s_add_u32", S(9), S(9), WS_X1)
    p.I("s_lshl_b32", S(10), S(4), 11)
    p.I("v_bfe_u32", vt, vlane, 2, 2); p.I("v_lshl_add_u32", vt, vh, 3, vt); p.I("v_lshlrev_b32", vxr, 7, vt)
    p.I("v_bfe_u32", vt, vlane, 4, 1); p.I("v_lshl_add_u32", vxr, vt, 5, vxr); p.I("v_and_b32", vt, 3, vlane); p.I("v_lshl_add_u32", vxr, vt, 3, vxr)
    p.I("s_lshr_b32", S(59), S(4), 1); p.I("s_lshl_b32", S(59), S(59), 12); p.I("s_lshl_b32", S(58), S(58), 6); p.I("s_add_u32", S(59), S(59), S(58)); p.I("v_add_u32", vxr, S(59), vxr)
    p.I("s_lshl_b32", S(58), S(4), 14); p.I("s_add_u32", S(58), S(58), WDL); p.I("v_add_u32", vwr, S(58), vwl)
    PB = 98304
    p.I("s_mul_i32", S(58), S(4), 12288); p.I("s_add_u32", S(58), S(58), PB); p.I("v_add_u32", vpr, S(58), vwl)
    p.I("v_mov_b32", vz, 0)
    sdb = sws; so = srd(p, 68, P_OUT, ARR)
    p.I("s_lshr_b32", S(66), S(56), 1); p.I("s_lshl_b32", S(66), S(66), 8); p.I("s_add_u32", S(66), S(66), WS_FLAG)
    stamp(p, 4)
    p.I("s_barrier")
    p.I("s_cmp_ge_u32", S(2), 224)
    p.I("s_cbranch_scc1", "L_k4_exit")
    for i in range(2):
        p.I("s_add_u32", M0, S(10), i * 1024); p.I("s_add_u32", S(15), S(9), i * 8 * X1P)
        p.I("buffer_load_dwordx4", vxa, sws, S(15), mods="offen lds")
    p.wait_vm0()
    p.I("s_cmp_lg_u32", S(4), 0)
    p.I("s_cbranch_scc1", "L_k4_go")
    p.I("s_mov_b32", S(67), 0)
    p.label("L_k4_poll")
    p.raw(f"    buffer_load_dword {vF}, {vz}, {sdb}, s66 offen sc1")
    p.raw("    s_waitcnt vmcnt(0)")
    p.I("v_readfirstlane_b32", S(58), vF)
    p.I("s_add_u32", S(67), S(67), 1)
    p.I("s_cmp_ge_u32", S(58), 16)
    p.I("s_cbranch_scc1", "L_k4_go")
    p.I("s_sleep", int(os.environ.get('SLP', '2')))
    p.I("s_cmp_lt_u32", S(67), 0x40000)
    p.I("s_cbranch_scc1", "L_k4_poll")
    p.label("L_k4_go")
    p.I("s_barrier")
    stamp(p, 5)
    pool = [V(208 + 8 * i, 8) for i in range(6)]
    pend = [("A", n) for n in range(24)]
    for n in range(24, 28): pend += [("W", n), ("A", n)]
    slotA = {}; slotW = {n: WRG[n] for n in range(16)}; tA = {}; tWg = {}; tWl = {}
    def issue_pending():
        while pool and pend:
            k_, n = pend[0]
            if k_ == "A" and 15 <= n <= 23 and len(pool) <= 0: break
            pend.pop(0); sl = pool.pop(0)
            if k_ == "A":
                p.I("s_add_u32", S(15), S(7), n * 2 * ACP)
                p.I("buffer_load_dwordx4", sl[0:4], vaa0, sws, S(15), mods="offen sc1")
                tA[n] = p.I("buffer_load_dwordx4", sl[4:8], vaa1, sws, S(15), mods="offen sc1")
                slotA[n] = sl
            else:
                tWg[n] = wd_reg(sl, n); slotW[n] = sl
    issue_pending()
    LW = [WRG[12], WRG[13]]
    GBr = [[WRG[2 + 2 * u_ + pp] for pp in range(2)] for u_ in range(2)]
    def ldsW(n):
        sl = LW[n & 1]
        p.I("ds_read_b128", sl[0:4], vwr, mods=f"offset:{(n-16)*2048}")
        tWl[n] = p.I("ds_read_b128", sl[4:8], vwr, mods=f"offset:{(n-16)*2048 + 1024}"); slotW[n] = sl
    for n in range(28):
        p.wait_vm(tA[n])
        if n in tWg: p.wait_vm(tWg[n])
        if n in tWl: p.wait_lg(tWl[n])
        if n == 0: stamp(p, 6)
        w = slotW[n]; a_ = slotA[n]
        for aa in range(2):
            for bb in range(2):
                p.I("v_mfma_f32_32x32x16_bf16", ACC2[aa][bb], w[4 * aa:4 * aa + 4], a_[4 * bb:4 * bb + 4], 0 if n == 0 else ACC2[aa][bb])
        pool.append(a_)
        if n < 16 and n not in (12, 13) and not (2 <= n <= 5): pool.append(w)
        if n >= 24: pool.append(w)
        if 14 <= n <= 21: ldsW(n + 2)
        issue_pending()
        if n == 8:
            for u_ in range(2):
                for pp in range(2):
                    p.I("s_add_u32", S(15), S(65), pp * MODP)
                    for k_ in range(2):
                        tgb = p.I("buffer_load_dwordx4", GBr[u_][pp][4 * k_:4 * k_ + 4], vgb, sws, S(15), mods=f"offen offset:{64*u_ + 16*k_}")
        if n == 20:
            TM = V(16, 4)
            p.wait_vm(tgb)
            for u_ in range(2):
                G = GBr[u_][0]
                for j in range(8): p.I("v_add_f32", G[j], G[j], GBr[u_][1][j])
                for j in range(4): p.I("v_cvt_pk_bf16_f32", GBr[u_][1][j], G[2 * j], G[2 * j + 1])
                for j in range(4): unpack(p, G[2 * j:2 * j + 2], GBr[u_][1][j], SM)
    assert not pend
    stamp(p, 7)
    for ab in (1, 2, 3):
        p.I("s_xor_b32", S(58), S(4), ab); p.I("s_mul_i32", S(58), S(58), 12288); p.I("s_add_u32", S(58), S(58), PB + (ab - 1) * 4096)
        va_ = V(5 + (ab > 1) * 3 + (ab > 2))
        va_ = {1: V(5), 2: V(9), 3: V(10)}[ab]
        p.I("v_add_u32", va_, S(58), vwl)
        for j in range(4):
            p.I("ds_write_b128", va_, ACC2[ab >> 1][ab & 1][4 * j:4 * j + 4], mods=f"offset:{1024*j}")
    XR = V(96, 8); XF_ = V(104, 16)
    tx = [p.I("ds_read_b64_tr_b16", XR[4 * u_ + 2 * s_:4 * u_ + 2 * s_ + 2], vxr, mods=f"offset:{2048*u_ + 512*s_}") for u_ in range(2) for s_ in range(2)]
    p.wait_lg(tx[-1])
    for j in range(8): unpack(p, XF_[2 * j:2 * j + 2], XR[j], SM)
    p.wait_lg0()
    p.I("s_barrier")
    PQ = [V(208 + 16 * i, 16) for i in range(3)]
    tp = [p.I("ds_read_b128", PQ[i][4 * j:4 * j + 4], vpr, mods=f"offset:{4096*i + 1024*j}") for i in range(3) for j in range(4)]
    Y = ACC2[0][0]; TM = V(96, 8)
    p.wait_lg(tp[3])
    for j in range(16): p.I("v_add_f32", Y[j], Y[j], PQ[0][j])
    p.wait_lg(tp[11])
    for j in range(16): p.I("v_add_f32", PQ[1][j], PQ[1][j], PQ[2][j])
    for j in range(16): p.I("v_add_f32", Y[j], Y[j], PQ[1][j])
    for j in range(8): p.I("v_cvt_pk_bf16_f32", TM[j], Y[2 * j], Y[2 * j + 1])
    for j in range(8): unpack(p, Y[2 * j:2 * j + 2], TM[j], SM)
    for j in range(16): p.I("v_mul_f32", Y[j], Y[j], GBr[j >> 3][0][j & 7])
    for j in range(8): p.I("v_cvt_pk_bf16_f32", TM[j], Y[2 * j], Y[2 * j + 1])
    for j in range(8): unpack(p, Y[2 * j:2 * j + 2], TM[j], SM)
    for j in range(16): p.I("v_add_f32", Y[j], Y[j], XF_[j])
    for j in range(8): p.I("v_cvt_pk_bf16_f32", TM[j], Y[2 * j], Y[2 * j + 1])
    p.I("buffer_store_dwordx4", TM[0:4], vo2, so, S(64), mods="offen")
    p.I("buffer_store_dwordx4", TM[4:8], vo2, so, S(64), mods="offen offset:32")
    stamp_out(p, 8, sws, 2)
    p.I("s_endpgm")
    return p

K5_PR = 64 * 272
K5_XT = 4 * K5_PR
K5_LDS = K5_XT + 8192
def gen_k5():
    p = Prog()
    load_kernargs(p)
    stamp(p, 0, False)
    p.I("s_cmp_ge_u32", S(2), 224)
    p.I("s_cbranch_scc1", "L_k5_exit")
    DG = os.environ.get('DIAG', '')
    if DG == 'loop':
        p.I("s_mov_b32", S(70), 0)
        p.label("L_diag")
        for i in range(8): p.I("v_mov_b32", V(20 + i), V(0))
        p.I("s_add_u32", S(70), S(70), 1); p.I("s_cmp_lt_u32", S(70), 256); p.I("s_cbranch_scc1", "L_diag")
    if DG == 'line':
        for i in range(2048): p.I("v_mov_b32", V(20 + (i & 7)), V(0))
    SM = S(6)
    p.I("s_mov_b32", SM, 0xffff0000)
    p.I("s_lshr_b32", S(4), S(2), 3); p.I("s_mul_hi_u32", S(3), S(4), 613566757); p.I("s_mul_i32", S(5), S(3), 7); p.I("s_sub_u32", S(5), S(4), S(5))
    p.I("s_and_b32", S(4), S(2), 7); p.I("s_lshl_b32", S(4), S(4), 2); p.I("s_add_u32", S(3), S(3), S(4))
    vlane = V(1); vw = V(2); vh = V(3); vt = V(4); vaa = V(5); vwa = V(6); vxa = V(7); vgb = V(8)
    p.I("v_and_b32", vlane, 63, V(0)); p.I("v_lshrrev_b32", vw, 6, V(0)); p.I("v_readfirstlane_b32", S(4), vw)
    p.I("v_lshrrev_b32", vh, 5, vlane)
    p.I("v_and_b32", vaa, 31, vlane); p.I("v_lshlrev_b32", vaa, 4, vaa); p.I("v_mul_u32_u24", vt, ACP, vh); p.I("v_add_u32", vaa, vaa, vt)
    p.I("v_lshlrev_b32", vwa, 4, vlane)
    p.I("v_lshrrev_b32", vt, 3, vlane); p.I("v_mul_u32_u24", vxa, X1P, vt); p.I("v_and_b32", vt, 7, vlane); p.I("v_lshl_add_u32", vxa, vt, 4, vxa)
    p.I("v_lshrrev_b32", vgb, 4, vlane); p.I("v_lshlrev_b32", vgb, 5, vgb)
    p.I("s_mul_i32", S(7), S(4), 56 * ACP); p.I("s_lshl_b32", S(8), S(3), 10); p.I("s_add_u32", S(7), S(7), S(8)); p.I("s_add_u32", S(7), S(7), WS_ACT)
    p.I("s_mul_i32", S(8), S(5), 229376); p.I("s_mul_i32", S(9), S(4), 28 * 2048); p.I("s_add_u32", S(8), S(8), S(9)); p.I("s_add_u32", S(8), S(8), WS_WD)
    p.I("s_mul_i32", S(9), S(5), 64 * X1P); p.I("s_mul_i32", S(10), S(4), 16 * X1P); p.I("s_add_u32", S(9), S(9), S(10)); p.I("s_lshl_b32", S(10), S(3), 7)
    p.I("s_add_u32", S(9), S(9), S(10)); p.I("s_add_u32", S(9), S(9), WS_X1)
    p.I("s_lshl_b32", S(10), S(4), 11); p.I("s_add_u32", S(10), S(10), K5_XT)
    p.I("s_lshl_b32", S(11), S(5), 8); p.I("s_add_u32", S(11), S(11), WS_MOD + 5 * D * 4)
    for i in range(64): p.I("v_accvgpr_write_b32", A(i), 0)
    p.I("s_waitcnt", "lgkmcnt(0)")
    sws = srd(p, 52, P_WS, WS_SIZE); so = srd(p, 48, P_OUT, ARR)
    stamp(p, 1, False)
    NB = 13; LA = 12
    BUF = [V(40 + 16 * b, 16) for b in range(NB)]
    ACC = [[A(32 * dl + 16 * th, 16) for th in range(2)] for dl in range(2)]
    tk = {}
    def issue(n):
        bf_ = BUF[n % NB]
        p.I("s_add_u32", S(12), S(7), n * 2 * ACP); p.I("s_add_u32", S(13), S(8), n * 2048)
        p.I("buffer_load_dwordx4", bf_[0:4], vwa, sws, S(13), mods="offen")
        p.I("buffer_load_dwordx4", bf_[8:12], vaa, sws, S(12), mods="offen " + K5_LD)
        t1 = p.I("buffer_load_dwordx4", bf_[12:16], vaa, sws, S(12), mods="offen offset:512 " + K5_LD)
        t2 = p.I("buffer_load_dwordx4", bf_[4:8], vwa, sws, S(13), mods="offen offset:1024")
        tk[n] = (t1, t2)
    for n in range(LA): issue(n)
    stamp(p, 2, False)
    GB = [[V(10 + 16 * og + 8 * pp, 8) for pp in range(2)] for og in range(2)]
    GB = [[A(64 + 16 * og + 8 * pp, 8) for pp in range(2)] for og in range(2)]
    tgb = None
    for n in range(28):
        bf_ = BUF[n % NB]
        p.wait_vm(tk[n][0])
        if n == 0: stamp(p, 3, False)
        p.I("v_mfma_f32_32x32x16_bf16", ACC[0][0], bf_[0:4], bf_[8:12], ACC[0][0])
        p.I("v_mfma_f32_32x32x16_bf16", ACC[0][1], bf_[0:4], bf_[12:16], ACC[0][1])
        p.wait_vm(tk[n][1])
        p.I("v_mfma_f32_32x32x16_bf16", ACC[1][0], bf_[4:8], bf_[8:12], ACC[1][0])
        p.I("v_mfma_f32_32x32x16_bf16", ACC[1][1], bf_[4:8], bf_[12:16], ACC[1][1])
        if n + LA < 28: issue(n + LA)
        if n == 16:
            for i in range(2):
                p.I("s_add_u32", M0, S(10), i * 1024); p.I("s_add_u32", S(12), S(9), i * 8 * X1P)
                p.I("buffer_load_dwordx4", vxa, sws, S(12), mods="offen lds")
            for og in range(2):
                for pp in range(2):
                    p.I("s_add_u32", S(12), S(11), pp * MODP)
                    for k_ in range(2):
                        tgb = p.I("buffer_load_dwordx4", GB[og][pp][4 * k_:4 * k_ + 4], vgb, sws, S(12), mods=f"offen offset:{128*og + 16*k_}")
    stamp(p, 4)
    vpw = V(9)
    p.I("v_and_b32", vt, 31, vlane); p.I("v_mul_u32_u24", vpw, 272, vt); p.I("v_lshl_add_u32", vpw, vh, 4, vpw)
    p.I("s_mul_i32", S(12), S(4), K5_PR); p.I("v_add_u32", vpw, S(12), vpw)
    for dl in range(2):
        for th in range(2):
            for j in range(4):
                p.I("ds_write_b128", vpw, ACC[dl][th][4 * j:4 * j + 4], mods=f"offset:{th*32*272 + dl*128 + j*32}")
    vq = V(10); vtk = V(11); vpr = V(12); vxr = V(13); voo = V(14)
    p.I("v_lshrrev_b32", vq, 4, vlane); p.I("v_and_b32", vtk, 15, vlane); p.I("s_lshl_b32", S(12), S(4), 4); p.I("v_add_u32", vtk, S(12), vtk)
    p.I("v_mul_u32_u24", vpr, 272, vtk); p.I("v_lshl_add_u32", vpr, vq, 5, vpr)
    p.I("v_bfe_u32", vt, vlane, 2, 2); p.I("v_lshl_add_u32", vt, vq, 3, vt); p.I("v_lshlrev_b32", vxr, 7, vt)
    p.I("v_and_b32", vt, 3, vlane); p.I("v_lshl_add_u32", vxr, vt, 3, vxr); p.I("s_lshl_b32", S(12), S(4), 5); p.I("s_add_u32", S(12), S(12), K5_XT); p.I("v_add_u32", vxr, S(12), vxr)
    p.I("v_mul_u32_u24", voo, ROWB, vtk); p.I("v_lshl_add_u32", voo, vq, 4, voo)
    p.I("s_mul_i32", S(12), S(3), 64 * ROWB); p.I("s_lshl_b32", S(13), S(5), 7); p.I("s_add_u32", S(12), S(12), S(13))
    G = [V(16 + 8 * og, 8) for og in range(2)]; TM = V(32, 4); G2 = V(40, 8)
    p.wait_vm(tgb)
    for og in range(2):
        for j in range(8): p.I("v_accvgpr_read_b32", G[og][j], GB[og][0][j]); p.I("v_accvgpr_read_b32", G2[j], GB[og][1][j])
        for j in range(8): p.I("v_add_f32", G[og][j], G[og][j], G2[j])
        for j in range(4): p.I("v_cvt_pk_bf16_f32", TM[j], G[og][2 * j], G[og][2 * j + 1])
        for j in range(4): unpack(p, G[og][2 * j:2 * j + 2], TM[j], SM)
    p.wait_lg0()
    p.I("s_barrier")
    stamp(p, 5)
    for og in range(2):
        PPs = [V(48 + 40 * og + 8 * w, 8) for w in range(4)]; XR = V(80 + 40 * og, 4); XF = V(128 + 8 * og, 8)
        tx = [p.I("ds_read_b64_tr_b16", XR[2 * s_:2 * s_ + 2], vxr, mods=f"offset:{4096*og + 512*s_}") for s_ in range(2)]
        tp = [p.I("ds_read_b128", PPs[w][4 * k_:4 * k_ + 4], vpr, mods=f"offset:{w*K5_PR + 128*og + 16*k_}") for w in range(4) for k_ in range(2)]
        p.wait_lg(tx[-1])
        for j in range(4): unpack(p, XF[2 * j:2 * j + 2], XR[j], SM)
        p.wait_lg(tp[3])
        for j in range(8): p.I("v_add_f32", PPs[0][j], PPs[0][j], PPs[1][j])
        p.wait_lg(tp[7])
        for j in range(8): p.I("v_add_f32", PPs[2][j], PPs[2][j], PPs[3][j])
        Y = PPs[0]
        for j in range(8): p.I("v_add_f32", Y[j], Y[j], PPs[2][j])
        for j in range(4): p.I("v_cvt_pk_bf16_f32", TM[j], Y[2 * j], Y[2 * j + 1])
        for j in range(4): unpack(p, Y[2 * j:2 * j + 2], TM[j], SM)
        for j in range(8): p.I("v_mul_f32", Y[j], Y[j], G[og][j])
        for j in range(4): p.I("v_cvt_pk_bf16_f32", TM[j], Y[2 * j], Y[2 * j + 1])
        for j in range(4): unpack(p, Y[2 * j:2 * j + 2], TM[j], SM)
        for j in range(8): p.I("v_add_f32", Y[j], Y[j], XF[j])
        O = PPs[1][0:4]
        for j in range(4): p.I("v_cvt_pk_bf16_f32", O[j], Y[2 * j], Y[2 * j + 1])
        p.I("buffer_store_dwordx4", O, voo, so, S(12), mods=f"offen offset:{64*og}")
    stamp(p, 6)
    stamp_out(p, 7, sws, 3)
    p.label("L_k5_exit")
    p.I("s_endpgm")
    return p

HEADER = open("adaLN_cond__ssm_conv_h3__swiglu_ffn__prompt.s.ref").read().split("; Override")[0]

def build(kernels):
    s = HEADER
    for name, p, grid, block, lds in kernels:
        s += f"; @launch kernel={name} grid=({grid},1,1) block=({block},1,1) lds={lds}\n"
    s += '.amdgcn_target "amdgcn-amd-amdhsa--gfx950"\n.text\n'
    for name, p, grid, block, lds in kernels:
        s += kernel_header(name) + p.finalize()
        s += kernel_desc(name, p.maxv + 1, p.maxa + 1, max(p.maxs + 1, 16))
    s += "L_code_end:\n    s_endpgm\n"
    return s

if __name__ == "__main__":
    ks = [("k1_kernel", gen_k1(), NMOD + NTR + NST + NWD + 8 * CPF, 256, 16384), ("k2_kernel", gen_k2(), NCONV, 512, K2_LDS),
          ("k4_kernel", gen_k4(), 256, 512, K4_LDS)]
    for i in range(int(os.environ.get('EXTRA', '0'))):
        pe = Prog(); pe.I("v_mov_b32", V(1), 0); pe.I("s_endpgm"); ks.append((f"e{i}_kernel", pe, 256, 256, 0))
    open(sys.argv[1] if len(sys.argv) > 1 else "out.s", "w").write(build(ks))
```

```python
import sys, os
from asmgen import *

S_TOK = 2048; D = 448; F = 1792
ROWB = D * 2
TBB = D * 16
ARR = S_TOK * D * 2
WS_KV = 0x000000
WS_X = 0x200000
WS_X1 = 0x400000
X1P = 4096 + 256
ACP = 32768 + 1024
WS_ST1 = 0x600000
WS_MOD = 0x610000
MODP = 2688 * 4
WS_CS = 0x620000
WS_BI = 0x640000
WS_FLAG = 0x680000
WS_ACT = 0x800000
WS_WP = 0x1000000
WS_WD = 0x1400000
WS_SIZE = 0x1400000 + 1792 * 448 * 2
ST_WT = os.environ.get('ST_WT', 'sc1')
ST_ALL = os.environ.get('ST_ALL', '')

P_Q, P_K, P_V, P_SH, P_SK, P_SD, P_BX, P_WG, P_WU, P_WD, P_C, P_WM, P_OUT, P_DBG, P_WS = [16 + 2 * i for i in range(15)]

STAMP = int(os.environ.get('STAMP', '0'))
WS_DBG = 0x700000
def stamp(p, k, wait=True):
    if not STAMP: return
    p.I("s_memrealtime" if STAMP == 2 else "s_memtime", S(76 + 2 * k, 2))
    if wait:
        p.I("s_waitcnt", "lgkmcnt(0)"); p.lg_done = p.lg_issued
def stamp_out(p, n, sws, kern):
    if not STAMP: return
    if STAMP == 2:
        p.wait_vm0(); stamp(p, 7); n = 8
    for k in range(n): p.I("v_mov_b32", V(8 + k), S(76 + 2 * k))
    for k in range(n, 8): p.I("v_mov_b32", V(8 + k), 0)
    p.I("v_lshrrev_b32", V(16), 6, V(0)); p.I("v_lshlrev_b32", V(16), 5, V(16))
    p.I("s_lshl_b32", S(74), S(2), 8); p.I("s_add_u32", S(74), S(74), WS_DBG + kern * 0x20000)
    p.I("v_and_b32", V(17), 63, V(0)); p.I("v_cmp_eq_u32", VCC, 0, V(17))
    p.I("s_and_saveexec_b64", S(72, 2), VCC)
    p.I("buffer_store_dwordx4", V(8, 4), V(16), sws, S(74), mods="offen")
    p.I("buffer_store_dwordx4", V(12, 4), V(16), sws, S(74), mods="offen offset:16")
    p.I("s_mov_b64", EXEC, S(72, 2))

STAMP_GROUPS = {0: [(0, 88), (88, 216), (216, 440)], 1: [(0, 224)], 2: [(0, 256)], 3: [(0, 224)]}
def load_kernargs(p):
    p.I("s_load_dwordx16", S(16, 16), S(0, 2), 0)
    p.I("s_load_dwordx8", S(32, 8), S(0, 2), 64)
    p.I("s_load_dwordx4", S(40, 4), S(0, 2), 96)
    p.I("s_load_dwordx2", S(44, 2), S(0, 2), 112)

def srd(p, dst, ptr, size, off=0):
    if isinstance(off, int) and off == 0:
        p.I("s_mov_b32", S(dst), S(ptr)); p.I("s_mov_b32", S(dst + 1), S(ptr + 1))
    else:
        p.I("s_add_u32", S(dst), S(ptr), off); p.I("s_addc_u32", S(dst + 1), S(ptr + 1), 0)
    p.I("s_mov_b32", S(dst + 2), size); p.I("s_mov_b32", S(dst + 3), 0x20000)
    return S(dst, 4)

def unpack(p, dst_pair, src, smask):
    p.I("v_lshlrev_b32", dst_pair[0], 16, src)
    p.I("v_and_b32", dst_pair[1], smask, src)

def rnd_pair(p, pair, tmp, smask):
    p.I("v_cvt_pk_bf16_f32", tmp, pair[0], pair[1])
    unpack(p, pair, tmp, smask)

def rnd1(p, r, smask=None):
    p.I("v_cvt_pk_bf16_f32", r, r, r)
    p.I("v_lshlrev_b32", r, 16, r)

def xrow_sum(p, x, t):
    p.I("v_mov_b32", t, x); p.I("v_permlane16_swap_b32", t, x); p.I("v_add_f32", x, x, t)
    p.I("v_mov_b32", t, x); p.I("v_permlane32_swap_b32", t, x); p.I("v_add_f32", x, x, t)

def wave_sum_multi(p, xs, ts):
    for m in ("quad_perm:[1,0,3,2]", "quad_perm:[2,3,0,1]", "row_half_mirror", "row_mirror"):
        for x in xs:
            p.I("v_add_f32_dpp", x, x, x, mods=m + " row_mask:0xf bank_mask:0xf")
    for swap in ("v_permlane16_swap_b32", "v_permlane32_swap_b32"):
        for x, t in zip(xs, ts): p.I("v_mov_b32", t, x)
        for x, t in zip(xs, ts): p.I(swap, t, x)
        for x, t in zip(xs, ts): p.I("v_add_f32", x, x, t)

def gemv64(p, wsrd, rowbytes, colbyte_s, ncoef, coef_fn, out_fn, tag, swsx, fl=''):
    SM = S(6)
    stamp(p, 1, False)
    p.I("s_mov_b32", SM, 0xffff0000)
    vco = V(1); vrg = V(2); voff = V(3)
    p.I("v_and_b32", vco, 7, V(0))
    p.I("v_lshrrev_b32", vrg, 3, V(0))
    p.I("s_mov_b32", S(7), rowbytes)
    p.I("v_mul_lo_u32", voff, vrg, S(7))
    p.I("v_lshl_add_u32", voff, vco, 4, voff)
    W = [V(8 + 4 * i, 4) for i in range(7)]
    tk = []
    tc = coef_fn[0](p, vrg)
    for i in range(7):
        p.I("s_add_u32", S(8), colbyte_s, i * 32 * rowbytes)
        tk.append(p.I("buffer_load_dwordx4", W[i], voff, wsrd, S(8), mods="offen " + fl))
    coefs = coef_fn[1](p, tc)
    stamp(p, 2, False)
    ACC = [V(108 + 8 * c, 8) for c in range(ncoef)]
    for c in range(ncoef):
        for j in range(8): p.I("v_mov_b32", ACC[c][j], 0)
    for i in range(7):
        U = V(124 + 8 * (i & 1), 8)
        p.wait_vm(tk[i])
        for j in range(4): unpack(p, U[2 * j:2 * j + 2], W[i][j], SM)
        for c in range(ncoef):
            for j in range(8):
                p.I("v_fmac_f32", ACC[c][j], coefs[c][i], U[j])
    stamp(p, 3, False)
    allacc = [ACC[c][j] for c in range(ncoef) for j in range(8)]
    for x in allacc:
        p.I("v_add_f32_dpp", x, x, x, mods="row_ror:8 row_mask:0xf bank_mask:0xf")
    T = [V(8 + i) for i in range(len(allacc))]
    for swap in ("v_permlane16_swap_b32", "v_permlane32_swap_b32"):
        for x, t in zip(allacc, T): p.I("v_mov_b32", t, x)
        for x, t in zip(allacc, T): p.I(swap, t, x)
        for x, t in zip(allacc, T): p.I("v_add_f32", x, x, t)
    vw = V(4); va = V(5)
    p.I("v_lshrrev_b32", vw, 6, V(0))
    p.I("v_lshlrev_b32", va, 8, vw)
    p.I("v_lshl_add_u32", va, vco, 5, va)
    p.I("v_and_b32", V(6), 63, V(0))
    p.I("v_cmp_gt_u32", VCC, 8, V(6))
    p.I("s_and_saveexec_b64", S(10, 2), VCC)
    for c in range(ncoef):
        p.I("ds_write_b128", va, ACC[c][0:4], mods=f"offset:{c*1024}")
        p.I("ds_write_b128", va, ACC[c][4:8], mods=f"offset:{c*1024+16}")
    p.I("s_mov_b64", EXEC, S(10, 2))
    p.wait_lg0()
    p.I("s_barrier")
    stamp(p, 4)
    stamp_out(p, 5, swsx, 0 if tag == "k1mod" else 1)
    p.I("v_readfirstlane_b32", S(10), vw)
    p.I("s_cmp_lg_u32", S(10), 0)
    p.I("s_cbranch_scc1", f"L_{tag}_done")
    p.I("v_lshlrev_b32", va, 2, V(0))
    res = []
    for c in range(ncoef):
        Rr = V(8 + 4 * c, 4)
        for w in range(4):
            p.I("ds_read_b32", Rr[w], va, mods=f"offset:{c*1024 + w*256}")
        res.append(Rr)
    p.wait_lg0()
    for c in range(ncoef):
        Rr = res[c]
        p.I("v_add_f32", Rr[0], Rr[0], Rr[1]); p.I("v_add_f32", Rr[2], Rr[2], Rr[3]); p.I("v_add_f32", Rr[0], Rr[0], Rr[2])
    out_fn(p, [r[0] for r in res], va)
    p.label(f"L_{tag}_done")
    p.I("s_endpgm")

NMOD = 88; NTR = 224; NST = 128; NWD = 196
NT_IN = os.environ.get('NT_IN', 'nt')
CPF = int(os.environ.get('CPF', '1'))
def gen_k1():
    p = Prog()
    if CPF:
        p.I("s_cmp_ge_u32", S(2), 8)
        p.I("s_cbranch_scc1", "L_k1_main")
        p.I("s_getpc_b64", S(4, 2))
        p.raw("L_k1_pc:")
        p.I("v_lshlrev_b32", V(1), 7, V(0))
        p.raw("    v_cmp_gt_u32 vcc, (L_code_end - L_k1_pc), v1")
        p.I("s_and_saveexec_b64", S(6, 2), VCC)
        p.I("global_load_dword", V(2), V(1), S(4, 2))
        p.I("v_add_u32", V(1), 32768, V(1))
        p.raw("    v_cmp_gt_u32 vcc, (L_code_end - L_k1_pc), v1")
        p.I("s_and_saveexec_b64", S(6, 2), VCC)
        p.I("s_cbranch_execz", "L_k1_pfdone")
        p.I("global_load_dword", V(3), V(1), S(4, 2))
        p.label("L_k1_pfdone")
        p.I("s_waitcnt", "vmcnt(0)")
        p.I("s_endpgm")
        p.label("L_k1_main")
        p.reset_counters()
        p.I("s_sub_u32", S(2), S(2), 8)
    load_kernargs(p)
    stamp(p, 0, False)
    p.I("s_cmp_lt_u32", S(2), NMOD)
    p.I("s_cbranch_scc1", "L_k1_mod")
    p.I("s_sub_u32", S(3), S(2), NMOD)
    p.I("s_cmp_lt_u32", S(3), NST)
    p.I("s_cbranch_scc1", "L_k1_stats")
    p.I("s_sub_u32", S(3), S(3), NST)
    p.I("s_cmp_ge_u32", S(3), NTR)
    p.I("s_cbranch_scc1", "L_k1_exit")
    p.I("s_mul_hi_u32", S(4), S(3), 613566757)
    p.I("s_mul_i32", S(5), S(4), 7); p.I("s_sub_u32", S(5), S(3), S(5))
    SM = S(6)
    p.I("s_mov_b32", SM, 0xffff0000)
    p.I("s_mul_i32", S(7), S(4), 64 * ROWB); p.I("s_lshl_b32", S(8), S(5), 7); p.I("s_add_u32", S(7), S(7), S(8))
    vo = V(1); vo2 = V(2); voh = V(3); vsh = V(4); vcp = V(5); vtg = V(6)
    p.I("v_and_b32", vcp, 31, V(0)); p.I("v_lshrrev_b32", vtg, 5, V(0))
    p.I("v_mul_u32_u24", vo, 8 * ROWB, vtg); p.I("v_lshl_add_u32", vo, vcp, 2, vo); p.I("v_add_u32", vo, S(7), vo)
    p.I("v_add_u32", vo2, 4480, vo)
    p.I("v_subrev_u32", voh, 2688, vo)
    p.I("s_lshl_b32", S(8), S(5), 9)
    p.I("v_lshl_add_u32", vsh, vcp, 4, S(8))
    p.I("s_waitcnt", "lgkmcnt(0)")
    sq = srd(p, 48, P_Q, ARR); sk = srd(p, 52, P_K, ARR); sv = srd(p, 56, P_V, ARR)
    ssh = srd(p, 60, P_SH, D * 8); sws = srd(p, 64, P_WS, WS_SIZE)
    stamp(p, 1, False)
    KR = [V(8 + j) for j in range(11)]
    VR = [V(20 + j) for j in range(8)]
    QR = [V(28 + j) for j in range(8)]
    SH = V(36, 4)
    def rowload(dst, srdx, j, fl):
        if j < 5: return p.I("buffer_load_dword", dst, vo, srdx, 0, mods=f"offen offset:{j*896} {fl}")
        return p.I("buffer_load_dword", dst, vo2, srdx, 0, mods=f"offen offset:{(j-5)*896} {fl}")
    tsh = p.I("buffer_load_dwordx4", SH, vsh, ssh, 0, mods="offen")
    tk = []
    for j in range(3): tk.append(p.I("buffer_load_dword", KR[j], voh, sk, 0, mods=f"offen offset:{j*896} {NT_IN}"))
    for j in range(8): tk.append(rowload(KR[3 + j], sk, j, NT_IN))
    tv = [rowload(VR[j], sv, j, NT_IN) for j in range(8)]
    tq = [rowload(QR[j], sq, j, "") for j in range(8)]
    vlw = V(40); vlr = V(41); vgo = V(42); vt = V(43)
    p.I("v_and_b32", vt, 7, vcp); p.I("v_xor_b32", vt, vt, vtg)
    p.I("v_lshlrev_b32", vlw, 8, vcp); p.I("v_lshl_add_u32", vlw, vt, 4, vlw)
    p.I("v_lshrrev_b32", vt, 4, V(0)); p.I("v_xor_b32", vt, vt, V(0)); p.I("v_and_b32", vt, 7, vt)
    p.I("v_lshrrev_b32", vlr, 3, V(0)); p.I("v_lshlrev_b32", vgo, 12, vlr)
    p.I("v_lshlrev_b32", vlr, 7, vlr); p.I("v_lshl_add_u32", vlr, vt, 4, vlr)
    p.I("v_and_b32", vt, 7, V(0)); p.I("v_lshl_add_u32", vgo, vt, 4, vgo)
    p.I("s_lshl_b32", S(7), S(5), 18); p.I("s_lshl_b32", S(8), S(4), 7); p.I("s_add_u32", S(7), S(7), S(8))
    stamp(p, 2, False)
    Wt = [V(48 + 2 * t, 2) for t in range(4)]
    p.wait_vm(tsh)
    p.I("v_lshlrev_b32", Wt[0][0], 16, SH[0]); p.I("v_and_b32", Wt[1][0], SM, SH[0])
    p.I("v_lshlrev_b32", Wt[2][0], 16, SH[1]); p.I("v_and_b32", Wt[3][0], SM, SH[1])
    p.I("v_lshlrev_b32", Wt[0][1], 16, SH[2]); p.I("v_and_b32", Wt[1][1], SM, SH[2])
    p.I("v_lshlrev_b32", Wt[2][1], 16, SH[3]); p.I("v_and_b32", Wt[3][1], SM, SH[3])
    KF = [V(56 + 2 * j, 2) for j in range(11)]
    p.wait_vm(tk[-1])
    stamp(p, 3, False)
    for j in range(11): unpack(p, KF[j], KR[j], SM)
    ACC = [V(78 + 2 * s, 2) for s in range(8)]
    PR = [V(94 + 2 * s, 2) for s in range(8)]
    TM = [V(110 + s) for s in range(8)]
    for s in range(8): p.I("v_pk_mul_f32", ACC[s], KF[s], Wt[3])
    for s in range(8): p.I("v_cvt_pk_bf16_f32", TM[s], ACC[s][0], ACC[s][1])
    for s in range(8): unpack(p, ACC[s], TM[s], SM)
    for step in (1, 2, 3):
        for s in range(8): p.I("v_pk_mul_f32", PR[s], KF[s + step], Wt[3 - step])
        for s in range(8): p.I("v_cvt_pk_bf16_f32", TM[s], PR[s][0], PR[s][1])
        for s in range(8): unpack(p, PR[s], TM[s], SM)
        for s in range(8): p.I("v_pk_add_f32", ACC[s], ACC[s], PR[s])
        for s in range(8): p.I("v_cvt_pk_bf16_f32", TM[s], ACC[s][0], ACC[s][1])
        for s in range(8): unpack(p, ACC[s], TM[s], SM)
    stamp(p, 4, False)
    p.wait_vm(tv[-1])
    for s in range(8): unpack(p, PR[s], VR[s], SM)
    for s in range(8): p.I("v_pk_mul_f32", ACC[s], ACC[s], PR[s])
    G = [V(8, 4), V(12, 4)]
    for ch in range(2):
        for e2 in range(4):
            p.I("v_cvt_pk_bf16_f32", G[ch][e2], ACC[7 - 2 * e2][ch], ACC[6 - 2 * e2][ch])
    p.I("ds_write_b128", vlw, G[0]); p.I("ds_write_b128", vlw, G[1], mods="offset:128")
    p.I("s_mov_b32", S(9), 0x05040100); p.I("s_mov_b32", S(10), 0x07060302)
    XG = [V(20, 4), V(24, 4)]
    p.wait_vm(tq[-1])
    for e2 in range(4):
        p.I("v_perm_b32", XG[0][e2], QR[2 * e2 + 1], QR[2 * e2], S(9))
        p.I("v_perm_b32", XG[1][e2], QR[2 * e2 + 1], QR[2 * e2], S(10))
    p.I("ds_write_b128", vlw, XG[0], mods="offset:8192"); p.I("ds_write_b128", vlw, XG[1], mods="offset:8320")
    p.wait_lg0()
    stamp(p, 5)
    p.I("s_barrier")
    O = [V(56 + 4 * i, 4) for i in range(4)]
    to = [p.I("ds_read_b128", O[i], vlr, mods=f"offset:{4096*i}") for i in range(4)]
    for i in range(4):
        p.I("s_add_u32", S(8), S(7), (WS_X if i >= 2 else WS_KV) + (i & 1) * 32 * 4096)
        p.wait_lg(to[i])
        p.I("buffer_store_dwordx4", O[i], vgo, sws, S(8), mods="offen " + ST_ALL)
    stamp(p, 6)
    if STAMP:
        p.wait_vm0(); stamp(p, 7)
    stamp_out(p, 8, sws, 0)
    p.I("s_endpgm")
    p.label("L_k1_stats")
    p.reset_counters()
    SM = S(6)
    p.I("s_mov_b32", SM, 0xffff0000)
    vlane = V(6); vst = V(5)
    p.I("v_and_b32", vlane, 63, V(0))
    p.I("v_lshrrev_b32", vst, 6, V(0))
    p.I("v_mul_u32_u24", vst, 4 * ROWB, vst)
    p.I("v_lshl_add_u32", vst, vlane, 4, vst)
    p.I("s_mul_i32", S(4), S(3), 16 * ROWB)
    p.I("v_cmp_gt_u32", S(14, 2), 56, vlane)
    p.I("s_mov_b64", S(10, 2), EXEC)
    p.I("s_waitcnt", "lgkmcnt(0)")
    sq = srd(p, 48, P_Q, ARR); sws = srd(p, 64, P_WS, WS_SIZE)
    stamp(p, 1, False)
    XS = [V(8 + 4 * i, 4) for i in range(4)]
    SU = [V(24 + i) for i in range(4)]; TT = [V(28 + i) for i in range(4)]; VA = [V(32 + i) for i in range(4)]
    for i in range(4): p.I("v_mov_b32", SU[i], 0); p.I("v_mov_b32", VA[i], 0)
    p.I("s_mov_b32", S(7), 0x3f803f80)
    p.I("s_mov_b64", EXEC, S(14, 2))
    tx = [p.I("buffer_load_dwordx4", XS[i], vst, sq, S(4), mods=f"offen offset:{i*896}") for i in range(4)]
    for i in range(4):
        p.wait_vm(tx[i])
        for j in range(4): p.I("v_dot2_f32_bf16", SU[i], XS[i][j], S(7), SU[i])
    stamp(p, 2, False)
    p.I("s_mov_b64", EXEC, S(10, 2))
    wave_sum_multi(p, SU, TT)
    p.I("s_mov_b32", S(8), 0x3b124925)
    for i in range(4): p.I("v_mul_f32", SU[i], S(8), SU[i])
    p.I("s_mov_b64", EXEC, S(14, 2))
    for i in range(4):
        U = V(40 + 8 * i, 8)
        for j in range(4): unpack(p, U[2 * j:2 * j + 2], XS[i][j], SM)
        for j in range(8): p.I("v_sub_f32", U[j], U[j], SU[i])
    for j in range(8):
        for i in range(4):
            U = V(40 + 8 * i, 8)
            p.I("v_fmac_f32", VA[i], U[j], U[j])
    p.I("s_mov_b64", EXEC, S(10, 2))
    wave_sum_multi(p, VA, TT)
    O = V(36, 4)
    p.I("s_mov_b32", S(9), 0x3727c5ac)
    for i in range(4): p.I("v_mul_f32", VA[i], S(8), VA[i])
    for i in range(4): rnd1(p, VA[i])
    for i in range(4): p.I("v_add_f32", VA[i], S(9), VA[i])
    for i in range(4): rnd1(p, VA[i])
    for i in range(4): p.I("v_sqrt_f32", VA[i], VA[i])
    for i in range(4): p.I("v_cvt_pk_bf16_f32", O[i], SU[i], VA[i])
    p.I("v_lshrrev_b32", V(1), 6, V(0))
    p.I("v_lshlrev_b32", V(1), 4, V(1))
    p.I("s_lshl_b32", S(4), S(3), 6)
    p.I("s_add_u32", S(4), S(4), WS_ST1)
    p.I("v_cmp_eq_u32", VCC, 0, vlane)
    p.I("s_and_saveexec_b64", S(10, 2), VCC)
    p.I("buffer_store_dwordx4", O, V(1), sws, S(4), mods="offen")
    p.I("s_mov_b64", EXEC, S(10, 2))
    stamp(p, 3)
    stamp_out(p, 4, sws, 0)
    p.label("L_k1_exit")
    p.I("s_endpgm")
    p.label("L_k1_mod")
    p.reset_counters()
    p.I("s_cmp_ge_u32", S(2), 84)
    p.I("s_cbranch_scc1", "L_k1_exit")
    p.I("s_lshr_b32", S(3), S(2), 1); p.I("s_and_b32", S(5), S(2), 1)
    p.I("s_waitcnt", "lgkmcnt(0)")
    swm = srd(p, 48, P_WM, D * 6 * D * 2); sc = srd(p, 52, P_C, D * 2); sws = srd(p, 64, P_WS, WS_SIZE)
    p.I("s_lshl_b32", S(4), S(3), 7); p.I("s_mul_i32", S(12), S(5), 224 * 6 * D * 2); p.I("s_add_u32", S(4), S(4), S(12))
    p.I("s_mul_i32", S(12), S(5), 448)
    def coef_ld(p, vrg):
        C = [V(64 + i) for i in range(7)]
        p.I("v_lshlrev_b32", V(92), 1, vrg)
        return [p.I("buffer_load_ushort", C[i], V(92), sc, S(12), mods=f"offen offset:{i*64}") for i in range(7)]
    def coef(p, t):
        C = [V(64 + i) for i in range(7)]; E = [V(78 + i) for i in range(7)]
        p.I("s_mov_b32", S(9), 0xbfb8aa3b)
        p.wait_vm(t[-1])
        for i in range(7): p.I("v_lshlrev_b32", C[i], 16, C[i])
        for i in range(7): p.I("v_mul_f32", E[i], S(9), C[i])
        for i in range(7): p.I("v_exp_f32", E[i], E[i])
        for i in range(7): p.I("v_add_f32", E[i], 1.0, E[i])
        for i in range(7): p.I("v_rcp_f32", E[i], E[i])
        for i in range(7): p.I("v_mul_f32", C[i], C[i], E[i])
        for i in range(7): rnd1(p, C[i])
        return [C]
    def outf(p, res, va):
        p.I("s_lshl_b32", S(4), S(3), 8); p.I("s_mul_i32", S(12), S(5), MODP); p.I("s_add_u32", S(4), S(4), S(12))
        p.I("s_add_u32", S(4), S(4), WS_MOD)
        p.I("buffer_store_dword", res[0], va, sws, S(4), mods="offen")
    gemv64(p, swm, 6 * D * 2, S(4), 1, (coef_ld, coef), outf, "k1mod", sws, NT_IN)
    return p

KC0 = 0; KCS = 4160; KCC = 4 * KCS
KV0 = 2 * KCC; KVC = 6144; KVPAD = 2048
P0 = KV0 + 2 * KVC; PS = 9216
SIDE0 = P0 + 4 * PS
HK0 = SIDE0 + 4096
FLG0 = HK0
K2_LDS = HK0 + 64
NCONV = 224
SIDE_ORDER = int(os.environ.get('SIDE_ORDER', '0'))
def k2_post(p, c, SM, sws, X, H, KVD, GA2, base):
    vr = V(base); vt = V(base + 1); PPa = V(base + 2, 8); PPb = V(base + 10, 8); TM = V(base + 18, 4)
    def pr(R_, j): return R_[2 * j:2 * j + 2]
    tp = []
    for h, PPx in enumerate((PPa, PPb)):
        for k_ in range(2):
            tp.append(p.I("ds_read_b128", PPx[4 * k_:4 * k_ + 4], vr, mods=f"offset:{(2*c+h)*PS + 16*k_}"))
    def rnd8(R_):
        for j in range(4): p.I("v_cvt_pk_bf16_f32", TM[j], R_[2 * j], R_[2 * j + 1])
        for j in range(4): unpack(p, pr(R_, j), TM[j], SM)
    Y = PPa
    p.wait_lg(tp[-1])
    for j in range(4): p.I("v_pk_add_f32", pr(Y, j), pr(PPa, j), pr(PPb, j))
    rnd8(Y)
    for j in range(4): p.I("v_pk_add_f32", pr(Y, j), pr(Y, j), pr(KVD, j))
    rnd8(Y)
    for j in range(4): p.I("v_pk_mul_f32", pr(Y, j), pr(Y, j), pr(H, j))
    rnd8(Y)
    for j in range(4): p.I("v_pk_mul_f32", pr(Y, j), pr(Y, j), GA2)
    rnd8(Y)
    for j in range(4): p.I("v_pk_add_f32", pr(Y, j), pr(Y, j), pr(X, j))
    for j in range(4): p.I("v_cvt_pk_bf16_f32", TM[j], Y[2 * j], Y[2 * j + 1])
    p.I("buffer_store_dwordx4", TM, vt, sws, S(12), mods="offen " + ST_ALL)

def k2_post_addr(p, c, base, vtid):
    vr = V(base); vt = V(base + 1)
    p.I("v_lshrrev_b32", vr, 2, vtid); p.I("v_lshlrev_b32", vr, 4, vr); p.I("v_lshl_add_u32", vr, vtid, 5, vr); p.I("v_add_u32", vr, P0, vr)
    p.I("v_lshlrev_b32", vt, 4, vtid)
    p.I("s_mul_i32", S(12), S(3), 2 * X1P); p.I("s_add_u32", S(12), S(12), WS_X1 + c * X1P)

def k2_pre_ops(SM, XG, SPk, KG, X, H, KVD, M_, R_, TM, ca1, sa, dd):
    L = []
    def F_(*a, **k): L.append((a, k))
    for j in range(4): F_("v_lshlrev_b32", X[2 * j], 16, XG[j]); F_("v_and_b32", X[2 * j + 1], SM, XG[j])
    for i in range(8): F_("v_and_b32", R_[i], SM, SPk[i]); F_("v_lshlrev_b32", M_[i], 16, SPk[i])
    for i in range(8): F_("v_rcp_f32", R_[i], R_[i]); F_("v_sub_f32", H[i], X[i], M_[i])
    def rnd(R__):
        for j in range(4): F_("v_cvt_pk_bf16_f32", TM[j], R__[2 * j], R__[2 * j + 1])
        for j in range(4): F_("v_lshlrev_b32", R__[2 * j], 16, TM[j]); F_("v_and_b32", R__[2 * j + 1], SM, TM[j])
    rnd(H)
    for i in range(8): F_("v_mul_f32", H[i], H[i], R_[i])
    rnd(H)
    for i in range(8): F_("v_mul_f32", H[i], H[i], ca1)
    rnd(H)
    for i in range(8): F_("v_add_f32", H[i], H[i], sa)
    rnd(H)
    F_("KGWAIT")
    for e2 in range(4): F_("v_lshlrev_b32", KVD[7 - 2 * e2], 16, KG[e2]); F_("v_and_b32", KVD[6 - 2 * e2], SM, KG[e2])
    for i in range(8): F_("v_mul_f32", KVD[i], KVD[i], dd)
    rnd(KVD)
    return L

def k2_consts(p, SM, c, ca1, sa, dd, GA2, tmp):
    P_ = V(ca1.n, 2)
    p.I("v_mov_b32", ca1, S(61)); p.I("v_mov_b32", sa, S(60)); p.I("v_mov_b32", GA2[0], S(62))
    p.I("v_add_f32", ca1, S(64), ca1); p.I("v_add_f32", sa, S(63), sa); p.I("v_add_f32", GA2[0], S(65), GA2[0])
    rnd_pair(p, P_, tmp, SM); rnd1(p, GA2[0]); p.I("v_mov_b32", GA2[1], GA2[0])
    p.I("v_add_f32", ca1, 1.0, ca1); rnd1(p, ca1)
    p.I("v_mov_b32", dd, S(66))
    if c == 0: p.I("v_lshlrev_b32", dd, 16, dd)
    else: p.I("v_and_b32", dd, SM, dd)

def k2_const_loads(p, c):
    p.I("s_add_u32", S(98), S(P_WS), S(9)); p.I("s_addc_u32", S(99), S(P_WS + 1), 0)
    for i in range(3):
        p.I("s_load_dword", S(60 + i), S(98, 2), i * D * 4 + 4 * c); p.I("s_load_dword", S(63 + i), S(98, 2), MODP + i * D * 4 + 4 * c)
    p.I("s_lshl_b32", S(9), S(3), 2)
    p.I("s_add_u32", S(58), S(P_SD), S(9)); p.I("s_addc_u32", S(59), S(P_SD + 1), 0)
    p.I("s_load_dword", S(66), S(58, 2), 0)

def k2_kvaddr(p, vk, vt, vtid, c):
    p.I("v_and_b32", vk, 3, vtid); p.I("v_lshlrev_b32", vk, 8, vk)
    p.I("v_bfe_u32", vt, vtid, 2, 4); p.I("v_lshl_add_u32", vk, vt, 4, vk)
    p.I("v_lshrrev_b32", vt, 6, vtid); p.I("v_lshl_add_u32", vk, vt, 10, vk)

def gen_k2():
    p = Prog()
    load_kernargs(p)
    stamp(p, 0, False)
    p.I("s_cmp_ge_u32", S(2), NCONV)
    p.I("s_cbranch_scc1", "L_k2_exit")
    SM = S(6)
    p.I("s_mov_b32", SM, 0xffff0000)
    p.I("s_and_b32", S(3), S(2), 7); p.I("s_mul_i32", S(3), S(3), 28); p.I("s_lshr_b32", S(4), S(2), 3)
    p.I("s_add_u32", S(3), S(3), S(4))
    vlane = V(1); vw = V(2)
    p.I("v_and_b32", vlane, 63, V(0))
    p.I("v_lshrrev_b32", vw, 6, V(0))
    p.I("v_readfirstlane_b32", S(4), vw)
    p.I("s_lshl_b32", S(9), S(3), 3); p.I("s_add_u32", S(9), S(9), WS_MOD)
    vfl = V(54); vfd = V(55)
    p.I("v_mov_b32", vfl, FLG0); p.I("v_mov_b32", vfd, 0)
    p.I("ds_write_b32", vfl, vfd); p.I("ds_write_b32", vfl, vfd, mods="offset:4")
    p.I("ds_write_b32", vfl, vfd, mods="offset:8"); p.I("ds_write_b32", vfl, vfd, mods="offset:12")
    p.I("s_waitcnt", "lgkmcnt(0)"); p.lg_done = p.lg_issued
    p.I("s_barrier")
    def flagwait(tag, R4):
        p.label(f"L_k2_fw{tag}")
        p.raw(f"    ds_read_b128 {R4}, {vfl}")
        p.raw("    s_waitcnt lgkmcnt(0)")
        p.I("v_and_b32", R4[0], R4[0], R4[1]); p.I("v_and_b32", R4[2], R4[2], R4[3]); p.I("v_and_b32", R4[0], R4[0], R4[2])
        p.I("v_readfirstlane_b32", S(70), R4[0])
        p.I("s_cmp_eq_u32", S(70), 0)
        p.I("s_cbranch_scc1", f"L_k2_fw{tag}")
    p.I("s_cmp_ge_u32", S(4), 4)
    p.I("s_cbranch_scc1", "L_k2_side")
    p.I("s_lshr_b32", S(5), S(4), 1)
    p.I("s_and_b32", S(7), S(4), 1)
    p.I("s_lshl_b32", S(8), S(3), 1); p.I("s_add_u32", S(8), S(8), S(5))
    p.I("s_lshl_b32", S(10), S(8), 12)
    KW = [V(88 + 6 * i, 6) for i in range(2)]
    vkl = V(3); vd = V(32); vd2 = V(33); vxo = V(6)
    p.I("s_lshl_b32", S(12), S(7), 11)
    p.I("v_lshl_add_u32", vkl, vlane, 4, S(12))
    p.I("v_and_b32", vd, 15, vlane); p.I("v_lshlrev_b32", vd, 6, vd)
    p.I("v_lshrrev_b32", vd2, 4, vlane); p.I("v_lshl_add_u32", vd, vd2, 4, vd)
    p.I("s_add_u32", S(13), S(12), S(10))
    p.I("s_mul_i32", S(14), S(5), KVC); p.I("s_add_u32", S(14), S(14), KV0)
    p.I("s_add_u32", S(15), S(12), S(14))
    p.I("s_lshl_b32", S(11), S(3), 13); p.I("s_add_u32", S(11), S(11), WS_X + 4096)
    p.I("v_lshlrev_b32", vxo, 4, V(0))
    p.I("s_waitcnt", "lgkmcnt(0)")
    ssk = srd(p, 48, P_SK, ARR); sws = srd(p, 52, P_WS, WS_SIZE)
    stamp(p, 1, False)
    tkw = []
    for i in range(2):
        p.I("buffer_load_dwordx4", KW[i][0:4], vkl, ssk, S(10), mods=f"offen offset:{1024*i} {NT_IN}")
        tkw.append(p.I("buffer_load_dwordx2", KW[i][4:6], vkl, ssk, S(10), mods=f"offen offset:{1024*i+16} {NT_IN}"))
    for qq in range(2):
        p.I("s_add_u32", M0, S(15), KVPAD + qq * 1024)
        p.I("s_add_u32", S(70), S(13), WS_KV + qq * 1024)
        tdma = p.I("buffer_load_dwordx4", vd, sws, S(70), mods="offen lds")
    XG = V(8, 4); SPk = V(16, 8); vso = V(7)
    p.I("v_lshlrev_b32", vso, 5, V(0)); p.I("s_mov_b32", S(71), WS_ST1)
    txg = p.I("buffer_load_dwordx4", XG, vxo, sws, S(11), mods="offen")
    for i in range(2): txg = p.I("buffer_load_dwordx4", SPk[4 * i:4 * i + 4], vso, sws, S(71), mods=f"offen offset:{16*i}")
    k2_const_loads(p, 1)
    stamp(p, 2, False)
    p.I("s_mul_i32", S(15), S(5), KCC)
    Z = V(36, 4); va = V(35); vb = V(40)
    for i in range(4): p.I("v_mov_b32", Z[i], 0)
    p.I("s_lshl_b32", S(12), S(7), 10); p.I("s_add_u32", S(12), S(12), S(14))
    p.I("v_lshl_add_u32", va, vlane, 4, S(12))
    p.I("ds_write_b128", va, Z)
    p.I("v_bfe_u32", vb, vlane, 2, 2); p.I("v_mul_u32_u24", vb, KCS, vb)
    p.I("v_and_b32", V(41), 3, vlane); p.I("v_lshl_add_u32", vb, V(41), 4, vb); p.I("v_add_u32", vb, S(15), vb)
    p.I("s_lshl_b32", S(13), S(7), 4); p.I("s_sub_u32", S(13), 16, S(13))
    p.I("v_cmp_gt_u32", VCC, S(13), vlane)
    p.I("s_and_saveexec_b64", S(68, 2), VCC)
    p.I("ds_write_b128", vb, Z)
    p.I("s_mov_b64", EXEC, S(68, 2))
    vA = V(42); vB = V(43); vi = V(44); vq = V(45); vt = V(46); vp = V(47); vk = V(49)
    p.I("v_and_b32", vi, 31, vlane); p.I("v_lshrrev_b32", vq, 5, vlane)
    p.I("v_add_u32", vt, 1, vi)
    p.I("v_and_b32", vA, 3, vt); p.I("v_mul_u32_u24", vA, KCS, vA)
    p.I("v_and_b32", vt, 60, vt); p.I("v_lshl_add_u32", vA, vt, 1, vA)
    p.I("v_lshlrev_b32", vt, 4, vq); p.I("v_sub_u32", vA, vA, vt)
    p.I("s_lshl_b32", S(13), S(7), 10); p.I("s_add_u32", S(12), S(15), S(13))
    p.I("s_add_u32", S(12), S(12), KC0 + 64 - 16 - 32)
    p.I("v_add_u32", vA, S(12), vA)
    VB = [V(24 + r) for r in range(4)]
    p.I("s_lshl_b32", S(12), S(7), 4); p.I("s_sub_u32", S(12), 32, S(12))
    p.I("v_lshl_add_u32", vB, vq, 8, S(14))
    va0 = V(48)
    p.I("v_add_u32", va0, S(12), vi)
    def vb_ops(r):
        d_ = VB[r & 3]
        return [(("v_subrev_u32", vt, r, va0), {}), (("v_and_b32", d_, 15, vt), {}), (("v_lshl_add_u32", d_, d_, 4, vB), {}),
                (("v_lshrrev_b32", vt, 4, vt), {}), (("v_lshl_add_u32", d_, vt, 10, d_), {})]
    for r in range(3):
        for a_, k_ in vb_ops(r): p.I(*a_)
    p.I("v_mul_u32_u24", vp, 144, vi); p.I("v_lshl_add_u32", vp, vq, 4, vp)
    p.I("s_mul_i32", S(12), S(4), PS); p.I("s_add_u32", S(12), S(12), P0)
    p.I("v_add_u32", vp, S(12), vp)
    k2_kvaddr(p, vk, vt, V(0), 1)
    k2_post_addr(p, 1, 120, V(0))
    vcw = V(34); FX = V(4, 2)
    p.I("v_add_u32", vcw, S(15), vkl)
    p.I("v_lshlrev_b32", vb, 4, vlane); p.I("v_sub_u32", vb, 48, vb)
    p.I("v_mul_u32_u24", va, KCS, vlane); p.I("v_add_u32", va, S(15), va)
    p.I("s_lshl_b32", S(13), S(7), 2); p.I("s_sub_u32", S(13), 4, S(13))
    p.I("v_cmp_gt_u32", S(72, 2), S(13), vlane)
    ACC = [A(0, 16), A(16, 16)]
    for i in range(2):
        AL = V(100 + 6 * i, 6)
        p.wait_vm(tkw[i])
        if i == 0: stamp(p, 3, False)
        o = KC0 + 64 + 1024 * i
        p.I("ds_write_b128", vcw, KW[i][0:4], mods=f"offset:{o}")
        for j in range(5): p.I("v_alignbit_b32", AL[j], KW[i][j + 1], KW[i][j], 16)
        p.I("ds_write_b128", vcw, AL[0:4], mods=f"offset:{o + KCS}")
        C2 = V(112, 4); C3 = V(116, 4)
        for j in range(4): p.I("v_mov_b32", C2[j], KW[i][j + 1])
        p.I("ds_write_b128", vcw, C2, mods=f"offset:{o + 2*KCS}")
        for j in range(4): p.I("v_mov_b32", C3[j], AL[j + 1])
        p.I("ds_write_b128", vcw, C3, mods=f"offset:{o + 3*KCS}")
    p.I("v_readfirstlane_b32", S(70), KW[0][0]); p.I("v_readfirstlane_b32", S(71), KW[0][1])
    p.I("v_mov_b32", FX[0], S(70)); p.I("v_mov_b32", FX[1], S(71))
    p.I("v_lshlrev_b64", FX, vb, FX)
    p.I("v_lshlrev_b64", FX, 16, FX)
    p.I("s_mov_b64", EXEC, S(72, 2))
    p.I("ds_write_b64", va, FX, mods="offset:56")
    p.I("s_mov_b64", EXEC, S(68, 2))
    stamp(p, 4, False)
    p.I("s_waitcnt", "lgkmcnt(0)"); p.lg_done = p.lg_issued
    ca1 = V(50); sa = V(51); dd = V(52); GA2 = V(12, 2)
    k2_consts(p, SM, 1, ca1, sa, dd, GA2, V(53))
    X = V(144, 8); H = V(152, 8); KVD = V(160, 8); M_ = V(168, 8); R_ = V(176, 8); TMf = V(184, 4); KG = V(188, 4)
    fill = k2_pre_ops(SM, XG, SPk, KG, X, H, KVD, M_, R_, TMf, ca1, sa, dd)
    p.wait_vm(tdma)
    stamp(p, 5)
    p.I("s_lshl_b32", S(70), S(4), 2); p.I("v_add_u32", V(53), S(70), vfl); p.I("v_mov_b32", vfd, 1)
    p.I("ds_write_b32", V(53), vfd)
    flagwait("c", V(56, 4))
    p.lg_done = p.lg_issued
    stamp(p, 6)
    BR = [V(56 + 4 * i, 4) for i in range(8)]
    AR = [V(88 + 4 * i, 4) for i in range(8)]
    loads = []; mf = []
    for rp in range(16):
        idx = {}
        def addA(dl, kp):
            ar = AR[(4 * rp + 2 * dl + kp) % 8]; off = 64 * rp + 2048 * dl + 32 * (1 - kp)
            loads.append(("b64", ar[0:2], vA, off, None)); loads.append(("b64", ar[2:4], vA, off + 8, None)); idx[("A", dl, kp)] = (len(loads) - 1, ar)
        def addB(t, kp):
            br = BR[(4 * rp + 2 * t + kp) % 8]
            loads.append(("b128", br, VB[rp & 3], 2048 * t + 512 * kp, rp)); idx[("B", t, kp)] = (len(loads) - 1, br)
        addA(0, 0); addB(0, 0); addB(1, 0); addA(1, 0); addA(0, 1); addB(0, 1); addB(1, 1); addA(1, 1)
        for kp in range(2):
            for (J, dl, t) in ((0, 0, 0), (1, 0, 1), (1, 1, 0)):
                ia, ar = idx[("A", dl, kp)]; ib, br = idx[("B", t, kp)]
                mf.append((ACC[J], ar, br, max(ia, ib), rp == 0 and kp == 0 and dl == 0, rp))
    LOOK = 12
    tick = {}
    lastuse = {}
    for mi, (acc, a_, b_, need, z, rp) in enumerate(mf):
        for rr in a_.regs() + b_.regs(): lastuse.setdefault(rr, []).append((mi, need))
    vbdone = {0, 1, 2}
    def issue(li, mi_done):
        kind, dst, va_, off, rp = loads[li]
        for rr in dst.regs():
            for (mi, need) in lastuse[rr]:
                if need < li and mi >= mi_done: raise AssertionError(("WAR", li, mi, rr))
        if rp is not None: assert rp in vbdone, rp
        tick[li] = p.I("ds_read_b128" if kind == "b128" else "ds_read_b64", dst, va_, mods=f"offset:{off}")
    nl = 0
    tkg = p.I("ds_read_b128", KG, vk, mods=f"offset:{KV0 + KVC + KVPAD}")
    while nl < LOOK: issue(nl, 0); nl += 1
    p.wait_vm(txg)
    def emitf():
        a, k = fill.pop(0)
        if a[0] == "KGWAIT": p.wait_lg(tkg)
        else: p.I(*a, **k)
    for mi, (acc, a_, b_, need, z, rp) in enumerate(mf):
        assert need < nl
        p.wait_lg(tick[need])
        p.I("v_mfma_f32_32x32x16_bf16", acc, a_, b_, 0 if z else acc)
        for _ in range(2):
            if nl < len(loads): issue(nl, mi + 1); nl += 1
        if mi % 6 == 5 and rp + 3 < 16:
            for o_, k_ in vb_ops(rp + 3): p.I(*o_)
            vbdone.add(rp + 3)
        else:
            for _ in range(2):
                if fill: emitf()
    while fill: emitf()
    stamp(p, 7)
    for J in range(2):
        for j in range(4):
            p.I("ds_write_b128", vp, ACC[J][4 * j:4 * j + 4], mods=f"offset:{4608*J + 32*j}")
    p.wait_lg0()
    p.I("s_barrier")
    k2_post(p, 1, SM, sws, X, H, KVD, GA2, 120)
    stamp_out(p, 8, sws, 1)
    p.I("s_endpgm")
    p.label("L_k2_side")
    p.reset_counters()
    p.I("s_sub_u32", S(4), S(4), 4)
    p.I("s_mul_hi_u32", S(7), S(2), 153391690); p.I("s_mul_i32", S(8), S(7), 28); p.I("s_sub_u32", S(8), S(2), S(8))
    vtt = V(3); vt = V(6); vo = V(7); vco = V(8); vst = V(9); vt2 = V(10); vxo = V(4); vso = V(5); vk = V(11); vhk = V(12)
    p.I("v_subrev_u32", vtt, 256, V(0))
    p.I("v_lshlrev_b32", vo, 2, vlane)
    p.I("v_and_b32", vco, 7, vlane); p.I("v_lshlrev_b32", vco, 2, vco)
    p.I("s_cmp_ge_u32", S(8), 14)
    p.I("s_cselect_b32", S(13), 14, 0); p.I("s_cselect_b32", S(10), 256, 0)
    p.I("s_sub_u32", S(13), S(8), S(13))
    p.I("s_lshl_b32", S(11), S(13), 3)
    p.I("v_lshrrev_b32", vt, 3, vlane); p.I("v_add_u32", vt, S(11), vt)
    p.I("s_mov_b32", S(11), 28672)
    p.I("v_mul_lo_u32", vst, vt, S(11))
    p.I("v_and_b32", vt, 1, vlane); p.I("v_lshl_add_u32", vst, vt, 5, vst)
    p.I("v_bfe_u32", vt, vlane, 1, 1); p.I("v_lshl_add_u32", vst, vt, 7, vst)
    p.I("v_bfe_u32", vt, vlane, 2, 1); p.I("v_lshl_add_u32", vst, vt, 6, vst)
    p.I("s_mul_i32", S(14), S(7), 7); p.I("s_add_u32", S(14), S(14), S(4))
    p.I("s_lshl_b32", S(11), S(14), 9); p.I("s_add_u32", S(11), S(11), S(10)); p.I("s_add_u32", S(11), S(11), WS_WP)
    p.I("s_mul_i32", S(56), S(14), 8 * 3584); p.I("s_lshl_b32", S(57), S(13), 8); p.I("s_add_u32", S(56), S(56), S(57))
    p.I("s_lshl_b32", S(57), S(14), 5); p.I("s_add_u32", S(57), S(57), WS_MOD + 3 * D * 4)
    p.I("s_lshl_b32", S(15), S(3), 13); p.I("s_add_u32", S(15), S(15), WS_X)
    p.I("v_lshlrev_b32", vxo, 4, vtt); p.I("v_lshlrev_b32", vso, 5, vtt)
    k2_kvaddr(p, vk, vt, vtt, 0)
    p.I("s_mul_hi_u32", S(72), S(2), 613566757); p.I("s_mul_i32", S(73), S(72), 7); p.I("s_sub_u32", S(73), S(2), S(73))
    vdg = V(13); vds = V(14); vt3 = V(15)
    p.I("v_lshrrev_b32", vt, 5, vtt); p.I("v_and_b32", vt2, 31, vtt)
    p.I("v_mul_u32_u24", vdg, 8 * ROWB, vt); p.I("v_lshl_add_u32", vdg, vt2, 2, vdg)
    p.I("v_lshlrev_b32", vds, 9, vt); p.I("v_and_b32", vds, 512, vds)
    p.I("v_lshrrev_b32", vt, 1, vt); p.I("v_lshl_add_u32", vds, vt, 11, vds)
    p.I("v_and_b32", vt3, 1, vt2); p.I("v_lshl_add_u32", vds, vt3, 5, vds)
    p.I("v_bfe_u32", vt3, vt2, 1, 1); p.I("v_lshl_add_u32", vds, vt3, 7, vds)
    p.I("v_bfe_u32", vt3, vt2, 2, 1); p.I("v_lshl_add_u32", vds, vt3, 6, vds)
    p.I("v_bfe_u32", vt3, vt2, 3, 1); p.I("v_lshl_add_u32", vds, vt3, 8, vds)
    p.I("v_lshrrev_b32", vt3, 4, vt2); p.I("v_lshl_add_u32", vds, vt3, 10, vds)
    p.I("s_mul_i32", S(74), S(72), 64 * ROWB); p.I("s_lshl_b32", S(75), S(73), 7); p.I("s_add_u32", S(74), S(74), S(75))
    p.I("s_mul_i32", S(75), S(73), 229376); p.I("s_lshl_b32", S(72), S(72), 13); p.I("s_add_u32", S(75), S(75), S(72)); p.I("s_add_u32", S(75), S(75), WS_WD)
    p.I("s_cmp_ge_u32", S(2), 196); p.I("s_cselect_b32", S(75), 0xfffffff0, S(75))
    p.I("s_waitcnt", "lgkmcnt(0)")
    stamp(p, 1, False)
    p.I("s_cmp_ge_u32", S(8), 14)
    p.I("s_cselect_b32", S(46), S(P_WU), S(P_WG)); p.I("s_cselect_b32", S(47), S(P_WU + 1), S(P_WG + 1))
    sw = srd(p, 48, 46, D * F * 2); sws = srd(p, 52, P_WS, WS_SIZE)
    k2_const_loads(p, 0)
    WR = [[V(16 + 8 * ps + j) for j in range(8)] for ps in range(2)]
    CF = [V(32 + 4 * ps, 4) for ps in range(2)]
    tw = {}; tcf = {}
    XG = V(40, 4); SPk = V(48, 8)
    p.I("s_mov_b32", S(71), WS_ST1)
    p.I("buffer_load_dwordx4", XG, vxo, sws, S(15), mods="offen")
    for i in range(2): tst = p.I("buffer_load_dwordx4", SPk[4 * i:4 * i + 4], vso, sws, S(71), mods=f"offen offset:{16*i}")
    for ps in range(2):
        for a_ in range(4):
            p.I("s_add_u32", S(70), S(57), (a_ & 1) * D * 4 + (a_ >> 1) * MODP + ps * 128)
            tcf[ps] = p.I("buffer_load_dword", CF[ps][a_], vco, sws, S(70), mods="offen")
    def wloads(ps):
        for j in range(8):
            p.I("s_add_u32", S(70), S(56), (32 * ps + j) * 3584)
            tw[ps] = p.I("buffer_load_dword", WR[ps][j], vo, sw, S(70), mods=f"offen {NT_IN}")
    if SIDE_ORDER == 1:
        wloads(0)
        swd = srd(p, 92, P_WD, D * F * 2)
        WDR = [V(128 + i) for i in range(8)]
        AS = V(96, 4); AS2 = V(124, 4)
        for i in range(4): p.I("v_mov_b32", AS[i], 0); p.I("v_mov_b32", AS2[i], 0)
        k2_post_addr(p, 0, 144, vtt)
        p.I("s_mov_b32", S(97), S(12))
        stamp(p, 2, False)
        KG = V(44, 4)
        p.I("s_waitcnt", "lgkmcnt(0)"); p.lg_done = p.lg_issued
        vfl = V(12)
        p.I("v_mov_b32", vfl, FLG0)
        ca1 = V(166); sa = V(167); dd = V(168); GA2 = V(170, 2)
        k2_consts(p, SM, 0, ca1, sa, dd, GA2, V(169))
        X = V(72, 8); H = V(88, 8); KVD = V(172, 8)
        p.wait_vm(tst)
        stamp(p, 3, False)
        for a_, k_ in k2_pre_ops(SM, XG, SPk, KG, X, H, KVD, V(56, 8), V(64, 8), V(80, 4), ca1, sa, dd):
            if a_[0] == "KGWAIT":
                wloads(1)
                for j in range(8):
                    p.I("s_add_u32", S(70), S(74), j * ROWB)
                    twd = p.I("buffer_load_dword", WDR[j], vdg, swd, S(70), mods=f"offen {NT_IN}")
                p.label("L_k2_fws")
                p.raw(f"    ds_read_b128 {KG}, {vfl}")
                p.raw("    s_waitcnt lgkmcnt(0)")
                p.I("v_and_b32", KG[0], KG[0], KG[1]); p.I("v_and_b32", KG[2], KG[2], KG[3]); p.I("v_and_b32", KG[0], KG[0], KG[2])
                p.I("v_readfirstlane_b32", S(70), KG[0])
                p.I("s_cmp_eq_u32", S(70), 0)
                p.I("s_cbranch_scc1", "L_k2_fws")
                tkg = p.I("ds_read_b128", KG, vk, mods=f"offset:{KV0 + KVPAD}")
                p.wait_lg(tkg)
            else: p.I(*a_, **k_)
        stamp(p, 4, False)
        for ps in range(2):
            cf = CF[ps]
            p.wait_vm(tcf[ps])
            p.I("v_add_f32", cf[0], cf[0], cf[2]); p.I("v_add_f32", cf[1], cf[1], cf[3])
            rnd_pair(p, cf[0:2], cf[2], SM)
            p.I("v_add_f32", cf[1], 1.0, cf[1]); rnd1(p, cf[1])
        for ps in range(2):
            if ps == 1:
                p.I("s_cmp_eq_u32", S(4), 3); p.I("s_cbranch_scc1", "L_k2_skip1")
            cf = CF[ps]
            for j in range(8): p.I("v_readlane_b32", S(16 + j), cf[0], j); p.I("v_readlane_b32", S(24 + j), cf[1], j)
            U0 = V(100, 8); U1 = V(108, 8); O = [V(116, 4), V(120, 4)]
            p.wait_vm(tw[ps])
            for j in range(8): p.I("v_lshlrev_b32", U0[j], 16, WR[ps][j]); p.I("v_and_b32", U1[j], SM, WR[ps][j])
            for j in range(8):
                A_ = AS if j & 1 else AS2
                p.I("v_fmac_f32", A_[2], S(16 + j), U0[j]); p.I("v_fmac_f32", A_[3], S(16 + j), U1[j])
                p.I("v_mul_f32", U0[j], S(24 + j), U0[j]); p.I("v_mul_f32", U1[j], S(24 + j), U1[j])
            for j in range(4): p.I("v_cvt_pk_bf16_f32", O[0][j], U0[2 * j], U0[2 * j + 1]); p.I("v_cvt_pk_bf16_f32", O[1][j], U1[2 * j], U1[2 * j + 1])
            p.I("s_add_u32", S(70), S(11), ps * 2048)
            if ps == 0:
                p.wait_vm(twd)
                p.I("buffer_store_dwordx4", O[0], vst, sws, S(70), mods=f"offen {ST_WT}")
                p.I("buffer_store_dwordx4", O[1], vst, sws, S(70), mods=f"offen offset:16 {ST_WT}")
            else:
                p.raw(f"    buffer_store_dwordx4 {O[0]}, {vst}, {sws}, s70 offen {ST_WT}")
                p.raw(f"    buffer_store_dwordx4 {O[1]}, {vst}, {sws}, s70 offen offset:16 {ST_WT}")
                p.I("s_nop", 1)
            for j in range(4):
                unpack(p, U0[2 * j:2 * j + 2], O[0][j], SM); unpack(p, U1[2 * j:2 * j + 2], O[1][j], SM)
            for j in range(4):
                p.I("v_add_f32", U0[j], U0[j], U0[4 + j]); p.I("v_add_f32", U1[j], U1[j], U1[4 + j])
            for j in range(2):
                p.I("v_add_f32", U0[j], U0[j], U0[2 + j]); p.I("v_add_f32", U1[j], U1[j], U1[2 + j])
            p.I("v_add_f32", AS[0], AS[0], U0[0]); p.I("v_add_f32", AS[1], AS[1], U1[0]); p.I("v_add_f32", AS2[0], AS2[0], U0[1]); p.I("v_add_f32", AS2[1], AS2[1], U1[1])
        p.label("L_k2_skip1")
        p.I("s_nop", 4)
        for i in range(4):
            p.I("v_add_f32", AS[i], AS[i], AS2[i])
        p.I("s_lshl_b32", S(70), S(4), 10); p.I("s_add_u32", S(70), S(70), SIDE0)
        p.I("v_lshl_add_u32", vt, vlane, 4, S(70))
        p.I("ds_write_b128", vt, AS)
        stamp(p, 5, False)
        p.I("s_mov_b32", S(72), 0x05040100); p.I("s_mov_b32", S(73), 0x07060302)
        p.wait_vm(twd)
        OGW = [V(136, 4), V(140, 4)]
        for e2 in range(4):
            p.I("v_perm_b32", OGW[0][e2], WDR[2 * e2 + 1], WDR[2 * e2], S(72)); p.I("v_perm_b32", OGW[1][e2], WDR[2 * e2 + 1], WDR[2 * e2], S(73))
        p.I("buffer_store_dwordx4", OGW[0], vds, sws, S(75), mods="offen " + ST_WT)
        p.I("buffer_store_dwordx4", OGW[1], vds, sws, S(75), mods="offen offset:16 " + ST_WT)
    else:
        wloads(0)
        swd = srd(p, 92, P_WD, D * F * 2)
        WDR = [V(128 + i) for i in range(8)]
        wloads(1)
        for j in range(8):
            p.I("s_add_u32", S(70), S(74), j * ROWB)
            twd = p.I("buffer_load_dword", WDR[j], vdg, swd, S(70), mods=f"offen {NT_IN}")
        AS = V(96, 4); AS2 = V(124, 4)
        for i in range(4): p.I("v_mov_b32", AS[i], 0); p.I("v_mov_b32", AS2[i], 0)
        k2_post_addr(p, 0, 144, vtt)
        p.I("s_mov_b32", S(97), S(12))
        stamp(p, 2, False)
        p.I("s_mov_b32", S(72), 0x05040100); p.I("s_mov_b32", S(73), 0x07060302)
        p.wait_vm(twd)
        OGW = [V(136, 4), V(140, 4)]
        for e2 in range(4):
            p.I("v_perm_b32", OGW[0][e2], WDR[2 * e2 + 1], WDR[2 * e2], S(72)); p.I("v_perm_b32", OGW[1][e2], WDR[2 * e2 + 1], WDR[2 * e2], S(73))
        p.I("buffer_store_dwordx4", OGW[0], vds, sws, S(75), mods="offen " + ST_WT)
        p.I("buffer_store_dwordx4", OGW[1], vds, sws, S(75), mods="offen offset:16 " + ST_WT)
        for ps in range(2):
            cf = CF[ps]
            p.wait_vm(tcf[ps])
            p.I("v_add_f32", cf[0], cf[0], cf[2]); p.I("v_add_f32", cf[1], cf[1], cf[3])
            rnd_pair(p, cf[0:2], cf[2], SM)
            p.I("v_add_f32", cf[1], 1.0, cf[1]); rnd1(p, cf[1])
        for ps in range(2):
            if ps == 1:
                p.I("s_cmp_eq_u32", S(4), 3); p.I("s_cbranch_scc1", "L_k2_skip1")
            cf = CF[ps]
            for j in range(8): p.I("v_readlane_b32", S(16 + j), cf[0], j); p.I("v_readlane_b32", S(24 + j), cf[1], j)
            U0 = V(100, 8); U1 = V(108, 8); O = [V(116, 4), V(120, 4)]
            p.wait_vm(tw[ps])
            for j in range(8): p.I("v_lshlrev_b32", U0[j], 16, WR[ps][j]); p.I("v_and_b32", U1[j], SM, WR[ps][j])
            for j in range(8):
                A_ = AS if j & 1 else AS2
                p.I("v_fmac_f32", A_[2], S(16 + j), U0[j]); p.I("v_fmac_f32", A_[3], S(16 + j), U1[j])
                p.I("v_mul_f32", U0[j], S(24 + j), U0[j]); p.I("v_mul_f32", U1[j], S(24 + j), U1[j])
            for j in range(4): p.I("v_cvt_pk_bf16_f32", O[0][j], U0[2 * j], U0[2 * j + 1]); p.I("v_cvt_pk_bf16_f32", O[1][j], U1[2 * j], U1[2 * j + 1])
            p.I("s_add_u32", S(70), S(11), ps * 2048)
            if ps == 0:
                p.I("buffer_store_dwordx4", O[0], vst, sws, S(70), mods=f"offen {ST_WT}")
                p.I("buffer_store_dwordx4", O[1], vst, sws, S(70), mods=f"offen offset:16 {ST_WT}")
            else:
                p.raw(f"    buffer_store_dwordx4 {O[0]}, {vst}, {sws}, s70 offen {ST_WT}")
                p.raw(f"    buffer_store_dwordx4 {O[1]}, {vst}, {sws}, s70 offen offset:16 {ST_WT}")
                p.I("s_nop", 1)
            for j in range(4):
                unpack(p, U0[2 * j:2 * j + 2], O[0][j], SM); unpack(p, U1[2 * j:2 * j + 2], O[1][j], SM)
            for j in range(4):
                p.I("v_add_f32", U0[j], U0[j], U0[4 + j]); p.I("v_add_f32", U1[j], U1[j], U1[4 + j])
            for j in range(2):
                p.I("v_add_f32", U0[j], U0[j], U0[2 + j]); p.I("v_add_f32", U1[j], U1[j], U1[2 + j])
            p.I("v_add_f32", AS[0], AS[0], U0[0]); p.I("v_add_f32", AS[1], AS[1], U1[0]); p.I("v_add_f32", AS2[0], AS2[0], U0[1]); p.I("v_add_f32", AS2[1], AS2[1], U1[1])
        p.label("L_k2_skip1")
        p.I("s_nop", 4)
        for i in range(4):
            p.I("v_add_f32", AS[i], AS[i], AS2[i])
        p.I("s_lshl_b32", S(70), S(4), 10); p.I("s_add_u32", S(70), S(70), SIDE0)
        p.I("v_lshl_add_u32", vt, vlane, 4, S(70))
        p.I("ds_write_b128", vt, AS)
        stamp(p, 5, False)
        KG = V(44, 4)
        p.I("s_waitcnt", "lgkmcnt(0)"); p.lg_done = p.lg_issued
        vfl = V(12)
        p.I("v_mov_b32", vfl, FLG0)
        ca1 = V(166); sa = V(167); dd = V(168); GA2 = V(170, 2)
        k2_consts(p, SM, 0, ca1, sa, dd, GA2, V(169))
        X = V(72, 8); H = V(88, 8); KVD = V(172, 8)
        p.wait_vm(tst)
        stamp(p, 3, False)
        for a_, k_ in k2_pre_ops(SM, XG, SPk, KG, X, H, KVD, V(56, 8), V(64, 8), V(80, 4), ca1, sa, dd):
            if a_[0] == "KGWAIT":
                p.label("L_k2_fws")
                p.raw(f"    ds_read_b128 {KG}, {vfl}")
                p.raw("    s_waitcnt lgkmcnt(0)")
                p.I("v_and_b32", KG[0], KG[0], KG[1]); p.I("v_and_b32", KG[2], KG[2], KG[3]); p.I("v_and_b32", KG[0], KG[0], KG[2])
                p.I("v_readfirstlane_b32", S(70), KG[0])
                p.I("s_cmp_eq_u32", S(70), 0)
                p.I("s_cbranch_scc1", "L_k2_fws")
                tkg = p.I("ds_read_b128", KG, vk, mods=f"offset:{KV0 + KVPAD}")
                p.wait_lg(tkg)
            else: p.I(*a_, **k_)
        stamp(p, 4, False)
    p.wait_lg0()
    stamp(p, 6)
    p.I("s_barrier")
    p.I("s_mov_b32", S(12), S(97))
    k2_post(p, 0, SM, sws, X, H, KVD, GA2, 144)
    stamp(p, 7)
    stamp_out(p, 8, sws, 1)
    p.I("s_cmp_lg_u32", S(4), 0)
    p.I("s_cbranch_scc1", "L_k2_exit")
    p.I("v_lshlrev_b32", vt, 4, vlane); p.I("v_add_u32", vt, SIDE0, vt)
    RR = [V(16 + 4 * w, 4) for w in range(4)]
    for w in range(4): p.I("ds_read_b128", RR[w], vt, mods=f"offset:{1024*w}")
    p.wait_lg0()
    for i in range(4):
        p.I("v_add_f32", RR[0][i], RR[0][i], RR[1][i]); p.I("v_add_f32", RR[2][i], RR[2][i], RR[3][i]); p.I("v_add_f32", RR[0][i], RR[0][i], RR[2][i])
    p.I("s_mul_i32", S(58), S(7), 3584 * 4); p.I("s_lshl_b32", S(59), S(8), 9); p.I("s_add_u32", S(58), S(58), S(59))
    p.I("s_add_u32", S(59), S(58), WS_BI); p.I("s_add_u32", S(58), S(58), WS_CS)
    p.I("v_lshlrev_b32", vt, 3, vlane)
    p.I("buffer_store_dwordx2", RR[0][0:2], vt, sws, S(58), mods="offen")
    p.I("buffer_store_dwordx2", RR[0][2:4], vt, sws, S(59), mods="offen")
    p.I("s_cmp_lg_u32", S(2), 0)
    p.I("s_cbranch_scc1", "L_k2_exit")
    p.I("v_lshlrev_b32", vt, 7, vlane); p.I("v_mov_b32", V(16), 0); p.I("s_mov_b32", S(58), WS_FLAG)
    p.I("buffer_store_dword", V(16), vt, sws, S(58), mods="offen")
    p.label("L_k2_exit")
    p.I("s_endpgm")
    return p

WA = 126976
WSLOT = [WA, 0, 32768, 65536, 98304, WA, 0]
TAB0 = 155648
K4_LDS = TAB0 + 7168
EMU = int(os.environ.get('EMU', '0'))
K4MAP = int(os.environ.get('K4MAP', '0'))
PER = int(os.environ.get('PER', '3'))
TOUCH = int(os.environ.get('TOUCH', '0'))
XP = os.environ.get('XP', '')
ACT_ST = os.environ.get('ACT_ST', 'sc1')
K5_LD = os.environ.get('K5_LD', '')
K4_LD = os.environ.get('K4_LD', '')
def gen_k4():
    p = Prog()
    load_kernargs(p)
    stamp(p, 0, False)
    p.I("s_cmp_ge_u32", S(2), 256)
    p.I("s_cbranch_scc1", "L_k4_exit")
    SM = S(6)
    p.I("s_mov_b32", SM, 0xffff0000)
    if K4MAP == 0:
        p.I("s_bfe_u32", S(3), S(2), 0x10002); p.I("s_lshl_b32", S(3), S(3), 3); p.I("s_lshr_b32", S(4), S(2), 5); p.I("s_add_u32", S(3), S(3), S(4))
        p.I("s_and_b32", S(5), S(2), 3); p.I("s_lshl_b32", S(5), S(5), 2); p.I("s_bfe_u32", S(4), S(2), 0x20003); p.I("s_add_u32", S(5), S(5), S(4))
    elif K4MAP == 1:
        p.I("s_and_b32", S(3), S(2), 7); p.I("s_lshl_b32", S(3), S(3), 1); p.I("s_lshr_b32", S(4), S(2), 7); p.I("s_add_u32", S(3), S(3), S(4))
        p.I("s_bfe_u32", S(5), S(2), 0x40003)
    else:
        p.I("s_bfe_u32", S(3), S(2), 0x20001); p.I("s_lshl_b32", S(3), S(3), 2); p.I("s_lshr_b32", S(4), S(2), 6); p.I("s_add_u32", S(3), S(3), S(4))
        p.I("s_and_b32", S(5), S(2), 1); p.I("s_lshl_b32", S(5), S(5), 3); p.I("s_bfe_u32", S(4), S(2), 0x30003); p.I("s_add_u32", S(5), S(5), S(4))
    vlane = V(1); vw = V(2)
    p.I("v_and_b32", vlane, 63, V(0))
    p.I("v_lshrrev_b32", vw, 6, V(0))
    p.I("v_readfirstlane_b32", S(4), vw)
    p.I("s_cmp_ge_u32", S(4), 4)
    p.I("s_cbranch_scc1", "L_k4_load")
    vr = V(4); vc = V(5); vt = V(6); vh = V(7)
    p.I("v_bfe_u32", vr, vlane, 2, 2); p.I("v_and_b32", vc, 3, vlane); p.I("v_lshrrev_b32", vh, 5, vlane)
    VA0 = V(8); VA1 = V(9); VX0 = V(10); VX1 = V(11); vtab = V(12); vo = V(13)
    p.I("v_lshlrev_b32", VA0, 4, vlane); p.I("v_add_u32", VA1, 98304, VA0); VAm = V(3); p.I("v_add_u32", VAm, 65536, VA0)
    p.I("v_lshl_add_u32", vt, vh, 3, vr); p.I("v_lshlrev_b32", VX0, 8, vt)
    p.I("v_xor_b32", vt, S(4), vr); p.I("v_lshl_add_u32", VX0, vt, 6, VX0)
    p.I("v_bfe_u32", vt, vlane, 4, 1); p.I("v_lshl_add_u32", VX0, vt, 5, VX0)
    p.I("v_lshl_add_u32", VX0, vc, 3, VX0); p.I("v_add_u32", VX1, 65536, VX0)
    p.I("v_add_u32", vtab, TAB0, VA0)
    p.I("v_cmp_gt_u32", S(88, 2), 32, vlane)
    p.I("v_and_b32", vo, 31, vlane); p.I("v_lshlrev_b32", vo, 4, vo); p.I("v_mul_u32_u24", vt, ACP, vh); p.I("v_add_u32", vo, vo, vt)
    p.I("s_mul_i32", S(7), S(5), 14 * ACP); p.I("s_lshl_b32", S(13), S(3), 11); p.I("s_add_u32", S(7), S(7), S(13))
    p.I("s_lshl_b32", S(13), S(4), 9); p.I("s_add_u32", S(7), S(7), S(13)); p.I("s_add_u32", S(7), S(7), WS_ACT)
    p.I("s_mov_b32", S(8), 0x3b124925); p.I("s_mov_b32", S(9), 0x3727c5ac); p.I("s_mov_b32", S(10), 0xbfb8aa3b)
    XF = [V(96 + 4 * n, 4) for n in range(28)]
    ACC = [V(208, 16), V(224, 16)]
    ONES = V(14, 4)
    for i in range(4): p.I("v_mov_b32", ONES[i], 0x3f803f80)
    GRAM = V(64, 16); OSUM = V(80, 16)
    vi_ = V(18); ve_ = V(19)
    p.I("v_and_b32", vi_, 31, vlane); p.I("v_lshrrev_b32", ve_, 3, vi_); p.I("v_lshlrev_b32", ve_, 2, ve_); p.I("v_and_b32", vt, 3, vi_); p.I("v_add_u32", ve_, ve_, vt)
    p.I("v_bfe_u32", vt, vi_, 2, 1); p.I("v_xor_b32", vt, vt, vh); p.I("v_lshl_add_u32", ve_, vt, 4, ve_)
    for e in range(16): p.I("v_cmp_eq_u32", S(56 + 2 * e, 2), e, ve_)
    p.I("s_waitcnt", "lgkmcnt(0)")
    sws = srd(p, 52, P_WS, WS_SIZE)
    stamp(p, 1, False)
    if TOUCH:
        p.I("s_lshr_b32", S(12), S(2), 3); p.I("s_lshl_b32", S(12), S(12), 2); p.I("s_add_u32", S(12), S(12), S(4))
        p.I("v_lshlrev_b32", V(20), 7, vlane)
        p.I("s_mul_i32", S(13), S(12), 49 * 128); p.I("s_and_b32", S(14), S(2), 3); p.I("s_mul_i32", S(14), S(14), 4 * 200704)
        p.I("s_add_u32", S(13), S(13), S(14)); p.I("s_add_u32", S(13), S(13), WS_WP)
        p.I("buffer_load_dword", V(21), V(20), sws, S(13), mods="offen")
        p.I("s_mul_i32", S(13), S(12), 98 * 128); p.I("s_add_u32", S(13), S(13), WS_WD); p.I("s_add_u32", S(14), S(13), 34 * 128)
        p.I("buffer_load_dword", V(22), V(20), sws, S(13), mods="offen")
        p.I("buffer_load_dword", V(23), V(20), sws, S(14), mods="offen")
    def areads(addr):
        return (VA0, addr) if addr < 65536 else ((VAm, addr - 65536) if addr < 98304 else (VA1, addr - 98304))
    def xaddr(n, s_):
        ad = n * 4096 + s_ * 1024
        return (VX0, ad) if ad < 65536 else (VX1, ad - 65536)
    FW = [[V(32 + 16 * b_ + 4 * k_, 4) for k_ in range(4)] for b_ in range(2)]
    def procA(c):
        for k_ in range(4):
            n = 4 * c + k_
            p.I("v_mfma_f32_32x32x16_bf16", ACC[0], FW[c & 1][k_], XF[n], 0 if n == 0 else ACC[0])
            p.I("v_mfma_f32_32x32x16_bf16", GRAM, XF[n], XF[n], 0 if n == 0 else GRAM)
            p.I("v_mfma_f32_32x32x16_bf16", OSUM, ONES, XF[n], 0 if n == 0 else OSUM)
    for c in range(7):
        p.I("s_barrier")
        if c == 0: stamp(p, 2)
        for k_ in range(4):
            n = 4 * c + k_
            for s_ in range(2):
                vb, im = xaddr(n, s_); p.I("ds_read_b64_tr_b16", XF[n][2 * s_:2 * s_ + 2], vb, mods=f"offset:{im}")
            vb, im = areads(WA + n * 1024); tl = p.I("ds_read_b128", FW[c & 1][k_], vb, mods=f"offset:{im}")
        if c > 0: procA(c - 1)
        p.wait_lg(tl)
    AR = [V(48, 4), V(52, 4), V(56, 4), V(60, 4), V(240, 4), V(244, 4), V(248, 4), V(252, 4)]
    TB = [V(64, 8), V(72, 8), V(80, 8), V(88, 8)]; E = V(40, 8); TMp = V(28, 4)
    NR = 8; LA = int(os.environ.get('LA', '7'))
    vm = V(18); vv = V(19); vrr = V(20); vrm = V(21); SP = V(22, 2); TT = V(24, 2); vden = V(26); vd2 = V(27); vlr = V(14); vnm = V(15)
    vone = V(16); vsig = V(17)
    BT = V(32, 4)
    TA = [V(64, 4), V(68, 4)]
    def stats_ops():
        L = []
        def F_(*a, **k): L.append((a, k))
        F_("v_mov_b32", SP[1], 0)
        for e in range(16): F_("v_cndmask_b32", SP[1], SP[1], GRAM[e], S(56 + 2 * e, 2))
        F_("v_mul_f32", vm, S(8), OSUM[0])
        F_("TABREAD", 0)
        F_("v_mov_b32", TT[1], SP[1]); F_("s_nop", 0); F_("v_permlane32_swap_b32", TT[1], SP[1]); F_("v_add_f32", SP[1], SP[1], TT[1])
        F_("v_mul_f32", vv, S(8), SP[1])
        F_("v_fma_f32", vv, Neg(vm), vm, vv); F_("v_max_f32", vv, 0, vv)
        def r1(r): F_("v_cvt_pk_bf16_f32", r, r, r); F_("v_lshlrev_b32", r, 16, r)
        r1(vv); F_("v_add_f32", vv, S(9), vv); r1(vv); F_("v_sqrt_f32", vden, vv); F_("v_sub_f32", vnm, 0, vm)
        F_("v_cvt_pk_bf16_f32", BT[0], vden, vden); F_("v_cvt_pk_bf16_f32", BT[1], vnm, vnm)
        F_("v_lshlrev_b32", vden, 16, BT[0]); F_("v_mov_b32", BT[2], 0); F_("v_mov_b32", BT[3], 0)
        F_("v_rcp_f32", vrr, vden); F_("v_mul_f32", vd2, vden, vden)
        F_("v_cndmask_b32", BT[0], 0, BT[0], S(88, 2)); F_("v_cndmask_b32", BT[1], 0, BT[1], S(88, 2))
        F_("v_mul_f32", vlr, S(10), vrr)
        return L
    def epi_ops(T):
        L = []
        def F_(*a, **k): L.append((a, k))
        acc = ACC[T & 1]; Gs = acc[0:8]; Us = acc[8:16]
        if T == 0:
            F_("TABWAIT"); F_("v_mfma_f32_32x32x16_bf16", acc, TA[0], BT, acc); F_("TABREAD", 1)
            F_("DELAY")
        for j in range(8): F_("v_mul_f32", E[j], vlr, Gs[j])
        for j in range(8): F_("v_exp_f32", E[j], E[j]); F_("v_mul_f32", Gs[j], Gs[j], Us[j])
        for j in range(8): F_("v_fma_f32", E[j], E[j], vd2, vd2)
        for j in range(8): F_("v_rcp_f32", E[j], E[j])
        for j in range(8): F_("v_mul_f32", Gs[j], Gs[j], E[j])
        for j in range(4): F_("v_cvt_pk_bf16_f32", TMp[j], Gs[2 * j], Gs[2 * j + 1])
        if T == 4: F_("SIG1")
        F_("s_add_u32", S(13), S(7), T * 2 * ACP)
        F_("buffer_store_dwordx4", TMp, vo, sws, S(13), mods="offen " + ACT_ST)
        return L
    tabt = [None]; tabi = [None]
    def tabread(T):
        tabt[0] = p.I("ds_read_b128", TA[T & 1], vtab, mods=f"offset:{T*1024}"); tabi[0] = T
    def emit(op):
        a_, k_ = op
        if a_[0] == "TABWAIT": p.wait_lg(tabt[0])
        elif a_[0] == "TABREAD": tabread(a_[1])
        elif a_[0] == "DELAY": pass
        elif a_[0] == "SIG1":
            p.wait_vm0()
            p.I("buffer_atomic_add", vone, vsig, sws, S(90), mods="offen sc1")
        elif 'nofill' in XP and a_[0].startswith("v_"): pass
        elif 'notrans' in XP and a_[0] in TRANS: p.I("v_mov_b32", a_[1], a_[2])
        elif 'nofma' in XP and a_[0] == "v_fma_f32": p.I("v_mov_b32", a_[1], a_[3])
        else: p.I(*a_, **k_)
    p.I("s_barrier")
    stamp(p, 3)
    p.I("s_setprio", int(os.environ.get('PRIO', '2')))
    p.wait_vm0()
    seq = [(t, n) for t in range(1, 7) for n in range(28)]
    tick = {}
    def rdA(i):
        t, n = seq[i]
        if 'nord' in XP and i > 8:
            tick[i] = p.lg_issued; return
        vb, im = areads(WSLOT[t] + n * 1024)
        tick[i] = p.I("ds_read_b128", AR[i % NR], vb, mods=f"offset:{im}")
    for i in range(LA): rdA(i)
    procA(6)
    p.I("v_mov_b32", vone, 1); p.I("v_lshlrev_b32", vsig, 28, vlane)
    p.I("v_lshl_add_u32", vsig, vlane, 25, vsig)
    p.I("s_lshl_b32", S(90), S(3), 8); p.I("s_add_u32", S(90), S(90), WS_FLAG); p.I("s_add_u32", S(91), S(90), 4096)
    fill = stats_ops() + epi_ops(0)
    nxt = LA; hold = [0]
    for i, (t, n) in enumerate(seq):
        if n == 0 and t > 1:
            while fill: emit(fill.pop(0))
            fill = epi_ops(t - 1)
        p.wait_lg(tick[i])
        if 'alt' in XP: p.I("v_mfma_f32_32x32x16_bf16", ACC[n & 1], AR[i % NR], XF[n], ACC[n & 1])
        else: p.I("v_mfma_f32_32x32x16_bf16", ACC[t & 1], AR[i % NR], XF[n], 0 if n == 0 else ACC[t & 1])
        if nxt < len(seq):
            if seq[nxt][1] == 0 and seq[nxt][0] in (2, 4):
                p.wait_lg(tick[nxt - 1])
                p.I("s_barrier")
            rdA(nxt); nxt += 1
        if n == 27:
            while tabi[0] != t: emit(fill.pop(0))
            p.wait_lg(tabt[0])
            p.I("v_mfma_f32_32x32x16_bf16", ACC[t & 1], TA[t & 1], BT, ACC[t & 1])
            if t < 6: tabread(t + 1)
        per = PER if n >= 2 else 0
        if hold[0] > 0: hold[0] -= 1; per = 0
        cost = 0
        while fill and cost < per:
            op = fill.pop(0); emit(op)
            if op[0][0] == "DELAY": hold[0] = 2; break
            cost += 2 if op[0][0] in TRANS else 1
    while fill: emit(fill.pop(0))
    stamp(p, 4)
    for op in epi_ops(6): emit(op)
    p.wait_vm0()
    stamp(p, 5)
    p.I("buffer_atomic_add", vone, vsig, sws, S(91), mods="offen sc1")
    stamp_out(p, 6, sws, 2)
    p.label("L_k4_exit")
    p.I("s_endpgm")
    p.label("L_k4_load")
    p.reset_counters()
    p.I("s_sub_u32", S(4), S(4), 4)
    vL = V(3); vt = V(6); vt2 = V(7); vwl = V(8); vxg = V(9)
    p.I("v_subrev_u32", vL, 256, V(0))
    p.I("v_lshlrev_b32", vwl, 4, vlane)
    p.I("v_lshrrev_b32", vt, 4, vlane); p.I("v_mul_u32_u24", vxg, X1P, vt)
    p.I("v_bfe_u32", vt2, vlane, 2, 2); p.I("v_xor_b32", vt, vt, vt2); p.I("v_lshl_add_u32", vxg, vt, 6, vxg)
    p.I("v_and_b32", vt, 3, vlane); p.I("v_lshl_add_u32", vxg, vt, 4, vxg)
    p.I("s_lshl_b32", S(7), S(3), 8); p.I("s_mul_i32", S(8), S(4), 16 * X1P); p.I("s_add_u32", S(7), S(7), S(8)); p.I("s_add_u32", S(7), S(7), WS_X1)
    p.I("s_lshl_b32", S(10), S(4), 10)
    p.I("s_mul_i32", S(12), S(5), 200704); p.I("s_add_u32", S(12), S(12), S(10)); p.I("s_add_u32", S(12), S(12), WS_WP)
    p.I("s_lshl_b32", S(11), S(4), 12)
    vtg = V(10); vtl = V(11)
    p.I("v_cmp_le_u32", VCC, 112, vL)
    p.I("v_mov_b32", vt, 0); p.I("v_mov_b32", vt2, (1792 - 112) * 4); p.I("v_cndmask_b32", vt, vt, vt2, VCC)
    p.I("v_lshl_add_u32", vtg, vL, 2, vt)
    p.I("v_mov_b32", vt, 0); p.I("v_mov_b32", vt2, 256 - 7 * 1024); p.I("v_cndmask_b32", vtl, vt, vt2, VCC)
    p.I("v_lshrrev_b32", vt, 4, vL); p.I("v_lshl_add_u32", vtl, vt, 10, vtl)
    p.I("v_and_b32", vt, 3, vL); p.I("v_lshl_add_u32", vtl, vt, 4, vtl)
    p.I("v_bfe_u32", vt, vL, 2, 1); p.I("v_lshl_add_u32", vtl, vt, 7, vtl)
    p.I("v_bfe_u32", vt, vL, 3, 1); p.I("v_lshl_add_u32", vtl, vt, 6, vtl)
    p.I("v_add_u32", vtl, TAB0, vtl)
    p.I("s_mul_i32", S(13), S(5), 448); p.I("s_add_u32", S(13), S(13), WS_CS)
    p.I("v_cmp_gt_u32", VCC, 224, vL); p.I("s_mov_b64", S(60, 2), VCC)
    p.I("s_lshr_b32", S(58), S(2), 3); p.I("s_mul_hi_u32", S(56), S(58), 613566757); p.I("s_mul_i32", S(57), S(56), 7); p.I("s_sub_u32", S(57), S(58), S(57))
    p.I("s_and_b32", S(58), S(2), 7); p.I("s_lshl_b32", S(58), S(58), 2); p.I("s_add_u32", S(56), S(56), S(58))
    p.I("s_mul_i32", S(62), S(57), 229376); p.I("s_mul_i32", S(58), S(4), 28 * 2048); p.I("s_add_u32", S(62), S(62), S(58)); p.I("s_add_u32", S(62), S(62), WS_WD)
    p.I("s_lshr_b32", S(58), S(4), 1); p.I("s_lshl_b32", S(58), S(58), 10)
    p.I("s_add_u32", S(63), S(62), 1024); p.I("s_sub_u32", S(63), S(63), S(58)); p.I("s_add_u32", S(62), S(62), S(58))
    p.I("s_waitcnt", "lgkmcnt(0)")
    stamp(p, 1, False)
    sws = srd(p, 52, P_WS, WS_SIZE)
    def issueX(c):
        for i in range(4):
            p.I("s_add_u32", M0, S(11), c * 16384 + i * 1024)
            p.I("s_add_u32", S(15), S(7), (64 * c + 4 * i) * X1P)
            p.I("buffer_load_dwordx4", vxg, sws, S(15), mods="offen lds")
        p.I("s_add_u32", M0, S(10), WA + c * 4096)
        p.I("s_add_u32", S(15), S(12), c * 4096)
        return p.I("buffer_load_dwordx4", vwl, sws, S(15), mods="offen lds")
    def issueW(t):
        for i in range(7):
            p.I("s_add_u32", M0, S(10), WSLOT[t] + i * 4096)
            p.I("s_add_u32", S(15), S(12), t * 28672 + i * 4096)
            tk_ = p.I("buffer_load_dwordx4", vwl, sws, S(15), mods="offen lds")
        return tk_
    tX = {}; tW = {}
    for c in range(3): tX[c] = issueX(c)
    stamp(p, 2, False)
    TBL = [V(48 + i) for i in range(16)]; WDR = [V(24 + i) for i in range(8)]
    for c in range(7):
        p.wait_vm(tX[c])
        if c == 0: stamp(p, 3, False)
        p.I("s_barrier")
        if c + 3 < 7: tX[c + 3] = issueX(c + 3)
        if c == 3:
            p.I("s_mov_b64", S(68, 2), EXEC); p.I("s_mov_b64", EXEC, S(60, 2))
            for i in range(16):
                p.I("s_add_u32", S(15), S(13), (i & 7) * 3584 * 4 + (i >> 3) * (WS_BI - WS_CS))
                ttb = p.I("buffer_load_dword", TBL[i], vtg, sws, S(15), mods="offen")
            p.I("s_mov_b64", EXEC, S(68, 2))
        if c >= 4: tW[c - 3] = issueW(c - 3)
        if c == 5:
            p.wait_vm(ttb)
            for st_ in (1, 2, 4):
                for i in range(0, 16, 2 * st_): p.I("v_add_f32", TBL[i], TBL[i], TBL[i + st_])
            TQ = V(64, 4); ZQ = V(68, 4)
            p.I("v_cvt_pk_bf16_f32", TBL[1], TBL[8], TBL[0])
            p.I("v_lshlrev_b32", TBL[2], 16, TBL[1]); p.I("v_and_b32", TBL[3], SM, TBL[1])
            p.I("v_sub_f32", TBL[8], TBL[8], TBL[2]); p.I("v_sub_f32", TBL[0], TBL[0], TBL[3])
            p.I("v_cvt_pk_bf16_f32", TQ[0], TBL[2], TBL[8]); p.I("v_cvt_pk_bf16_f32", TQ[1], TBL[3], TBL[0])
            p.I("v_mov_b32", TQ[2], 0); p.I("v_mov_b32", TQ[3], 0)
            for i in range(4): p.I("v_mov_b32", ZQ[i], 0)
            p.I("s_mov_b64", EXEC, S(60, 2))
            p.I("ds_write_b128", vtl, TQ); p.I("ds_write_b128", vtl, ZQ, mods="offset:512")
            p.I("s_mov_b64", EXEC, S(68, 2))
            p.wait_lg0()
    KS = [7 * i + T for T in range(7) for i in range(4)]
    WRG = [V(16 + 8 * n, 8) for n in range(16)]
    ACC2 = [[V(144 + 32 * a_ + 16 * b_, 16) for b_ in range(2)] for a_ in range(2)]
    WDL = 32768
    def wd_reg(reg8, n):
        p.I("s_add_u32", S(15), S(62), KS[n] * 2048); p.I("s_add_u32", S(14), S(63), KS[n] * 2048)
        p.I("buffer_load_dwordx4", reg8[0:4], vwl, sws, S(15), mods="offen")
        return p.I("buffer_load_dwordx4", reg8[4:8], vwl, sws, S(14), mods="offen")
    for t in (1, 2, 4):
        p.wait_vm(tW[{1: 1, 2: 3, 4: 6}[t]])
        p.I("s_barrier")
        if t == 1:
            tW[4] = issueW(4)
            for n in range(0, 6): wd_reg(WRG[n], n)
        if t == 2:
            tW[5] = issueW(5); tW[6] = issueW(6)
        if t == 4:
            for n in range(6, 16): wd_reg(WRG[n], n)
            p.I("s_lshl_b32", S(58), S(4), 14); p.I("s_add_u32", S(58), S(58), WDL)
            for n in range(16, 24):
                for a_ in range(2):
                    p.I("s_add_u32", M0, S(58), (n - 16) * 2048 + a_ * 1024)
                    p.I("s_add_u32", S(15), S(62 + a_), KS[n] * 2048)
                    p.I("buffer_load_dwordx4", vwl, sws, S(15), mods="offen lds")
    vh = V(4); vaa0 = V(5); vaa1 = V(9); vxa = V(10); vgb = V(11); vwr = V(12); vz = V(13); vF = V(14); vo2 = V(15); vxr = V(3); vpr = V(2)
    p.I("v_lshrrev_b32", vh, 5, vlane)
    p.I("v_and_b32", vt, 31, vlane); p.I("v_lshlrev_b32", vaa0, 4, vt); p.I("v_mul_u32_u24", vt2, ACP, vh); p.I("v_add_u32", vaa0, vaa0, vt2)
    p.I("s_and_b32", S(58), S(4), 1); p.I("s_lshl_b32", S(58), S(58), 9)
    p.I("v_add_u32", vaa1, 512, vaa0); p.I("v_subrev_u32", vaa1, S(58), vaa1); p.I("v_add_u32", vaa0, S(58), vaa0)
    p.I("s_mul_i32", S(7), S(4), 56 * ACP); p.I("s_lshl_b32", S(8), S(56), 10); p.I("s_add_u32", S(7), S(7), S(8)); p.I("s_add_u32", S(7), S(7), WS_ACT)
    p.I("v_mul_u32_u24", vo2, ROWB, vt); p.I("v_lshl_add_u32", vo2, vh, 4, vo2)
    p.I("s_and_b32", S(58), S(4), 1); p.I("s_mul_i32", S(64), S(58), 32 * ROWB); p.I("s_mul_i32", S(59), S(56), 64 * ROWB); p.I("s_add_u32", S(64), S(64), S(59))
    p.I("s_lshl_b32", S(59), S(57), 7); p.I("s_add_u32", S(64), S(64), S(59)); p.I("s_lshr_b32", S(59), S(4), 1); p.I("s_lshl_b32", S(59), S(59), 6); p.I("s_add_u32", S(64), S(64), S(59))
    p.I("v_lshlrev_b32", vgb, 5, vh)
    p.I("s_lshl_b32", S(65), S(57), 8); p.I("s_lshl_b32", S(59), S(59), 1); p.I("s_add_u32", S(65), S(65), S(59)); p.I("s_add_u32", S(65), S(65), WS_MOD + 5 * D * 4)
    p.I("v_lshrrev_b32", vt, 2, vlane); p.I("v_mul_u32_u24", vxa, X1P, vt); p.I("v_and_b32", vt, 3, vlane); p.I("v_lshl_add_u32", vxa, vt, 4, vxa)
    p.I("s_mul_i32", S(9), S(57), 64 * X1P); p.I("s_lshr_b32", S(10), S(4), 1); p.I("s_mul_i32", S(10), S(10), 32 * X1P); p.I("s_add_u32", S(9), S(9), S(10))
    p.I("s_lshl_b32", S(10), S(56), 7); p.I("s_add_u32", S(9), S(9), S(10)); p.I("s_and_b32", S(10), S(4), 1); p.I("s_lshl_b32", S(10), S(10), 6)
    p.I("s_add_u32", S(9), S(9), S(10)); p.I("s_add_u32", S(9), S(9), WS_X1)
    p.I("s_lshl_b32", S(10), S(4), 11)
    p.I("v_bfe_u32", vt, vlane, 2, 2); p.I("v_lshl_add_u32", vt, vh, 3, vt); p.I("v_lshlrev_b32", vxr, 6, vt)
    p.I("v_bfe_u32", vt, vlane, 4, 1); p.I("v_lshl_add_u32", vxr, vt, 5, vxr); p.I("v_and_b32", vt, 3, vlane); p.I("v_lshl_add_u32", vxr, vt, 3, vxr)
    p.I("v_add_u32", vxr, S(10), vxr)
    p.I("s_lshl_b32", S(58), S(4), 14); p.I("s_add_u32", S(58), S(58), WDL); p.I("v_add_u32", vwr, S(58), vwl)
    PB = 98304
    p.I("s_mul_i32", S(58), S(4), 12288); p.I("s_add_u32", S(58), S(58), PB); p.I("v_add_u32", vpr, S(58), vwl)
    p.I("v_mov_b32", vz, 0)
    sdb = sws; so = srd(p, 68, P_OUT, ARR)
    p.I("s_lshr_b32", S(66), S(56), 1); p.I("s_lshl_b32", S(66), S(66), 8); p.I("s_add_u32", S(66), S(66), WS_FLAG)
    stamp(p, 4)
    p.I("s_cmp_ge_u32", S(2), 224)
    p.I("s_cbranch_scc1", "L_k4_exit")
    def poll(tag, off):
        p.I("s_mov_b32", S(67), 0)
        p.label(f"L_k4_poll{tag}")
        p.raw(f"    buffer_load_dword {vF}, {vz}, {sdb}, s66 offen offset:{off} sc1")
        p.raw("    s_waitcnt vmcnt(0)")
        p.vm_done = p.vm_issued
        p.I("v_readfirstlane_b32", S(58), vF)
        p.I("s_add_u32", S(67), S(67), 1)
        p.I("s_cmp_ge_u32", S(58), 64)
        p.I("s_cbranch_scc1", f"L_k4_go{tag}")
        p.I("s_sleep", int(os.environ.get('SLP', '2')))
        p.I("s_cmp_lt_u32", S(67), 0x40000)
        p.I("s_cbranch_scc1", f"L_k4_poll{tag}")
        p.label(f"L_k4_go{tag}")
    poll(1, 0)
    stamp(p, 5)
    pool = [V(208 + 8 * i, 8) for i in range(6)]
    pend = [("A", n) for n in range(16)] + [("W", n) for n in range(24, 28)] + [("A", n) for n in range(16, 28)]
    gate = [False]
    slotA = {}; slotW = {n: WRG[n] for n in range(16)}; tA = {}; tWg = {}; tWl = {}
    def issue_pending():
        while pool and pend:
            k_, n = pend[0]
            if k_ == "A" and n >= 16 and not gate[0]: break
            pend.pop(0); sl = pool.pop(0)
            if k_ == "A":
                p.I("s_add_u32", S(15), S(7), KS[n] * 2 * ACP)
                p.I("buffer_load_dwordx4", sl[0:4], vaa0, sws, S(15), mods="offen sc1")
                tA[n] = p.I("buffer_load_dwordx4", sl[4:8], vaa1, sws, S(15), mods="offen sc1")
                slotA[n] = sl
            else:
                tWg[n] = wd_reg(sl, n); slotW[n] = sl
    issue_pending()
    LW = [WRG[12], WRG[13]]
    GBr = [[WRG[2 + 2 * u_ + pp] for pp in range(2)] for u_ in range(2)]
    def ldsW(n):
        sl = LW[n & 1]
        p.I("ds_read_b128", sl[0:4], vwr, mods=f"offset:{(n-16)*2048}")
        tWl[n] = p.I("ds_read_b128", sl[4:8], vwr, mods=f"offset:{(n-16)*2048 + 1024}"); slotW[n] = sl
    for n in range(28):
        p.wait_vm(tA[n])
        if n in tWg: p.wait_vm(tWg[n])
        if n in tWl: p.wait_lg(tWl[n])
        if n == 0: stamp(p, 6)
        w = slotW[n]; a_ = slotA[n]
        for aa in range(2):
            for bb in range(2):
                p.I("v_mfma_f32_32x32x16_bf16", ACC2[aa][bb], w[4 * aa:4 * aa + 4], a_[4 * bb:4 * bb + 4], 0 if n == 0 else ACC2[aa][bb])
        pool.append(a_)
        if n < 16 and n not in (12, 13) and not (2 <= n <= 5): pool.append(w)
        if n >= 24: pool.append(w)
        if 14 <= n <= 21: ldsW(n + 2)
        if n == 12:
            assert all(("A", m) not in pend for m in range(16))
            p.I("s_add_u32", S(66), S(66), 2048)
            poll(2, 2048)
            gate[0] = True
            p.I("s_barrier")
            for i in range(2):
                p.I("s_add_u32", M0, S(10), i * 1024); p.I("s_add_u32", S(15), S(9), i * 16 * X1P)
                txd = p.I("buffer_load_dwordx4", vxa, sws, S(15), mods="offen lds")
        issue_pending()
        if n == 8:
            for u_ in range(2):
                for pp in range(2):
                    p.I("s_add_u32", S(15), S(65), pp * MODP)
                    for k_ in range(2):
                        tgb = p.I("buffer_load_dwordx4", GBr[u_][pp][4 * k_:4 * k_ + 4], vgb, sws, S(15), mods=f"offen offset:{64*u_ + 16*k_}")
        if n == 20:
            TM = V(16, 4)
            p.wait_vm(tgb)
            for u_ in range(2):
                G = GBr[u_][0]
                for j in range(8): p.I("v_add_f32", G[j], G[j], GBr[u_][1][j])
                for j in range(4): p.I("v_cvt_pk_bf16_f32", GBr[u_][1][j], G[2 * j], G[2 * j + 1])
                for j in range(4): unpack(p, G[2 * j:2 * j + 2], GBr[u_][1][j], SM)
    assert not pend
    stamp(p, 7)
    for ab in (1, 2, 3):
        p.I("s_xor_b32", S(58), S(4), ab); p.I("s_mul_i32", S(58), S(58), 12288); p.I("s_add_u32", S(58), S(58), PB + (ab - 1) * 4096)
        va_ = V(5 + (ab > 1) * 3 + (ab > 2))
        va_ = {1: V(5), 2: V(9), 3: V(10)}[ab]
        p.I("v_add_u32", va_, S(58), vwl)
        for j in range(4):
            p.I("ds_write_b128", va_, ACC2[ab >> 1][ab & 1][4 * j:4 * j + 4], mods=f"offset:{1024*j}")
    XR = V(96, 8); XF_ = V(104, 16)
    p.wait_vm(txd)
    tx = [p.I("ds_read_b64_tr_b16", XR[4 * u_ + 2 * s_:4 * u_ + 2 * s_ + 2], vxr, mods=f"offset:{1024*u_ + 256*s_}") for u_ in range(2) for s_ in range(2)]
    p.wait_lg(tx[-1])
    for j in range(8): unpack(p, XF_[2 * j:2 * j + 2], XR[j], SM)
    p.wait_lg0()
    p.I("s_barrier")
    PQ = [V(208 + 16 * i, 16) for i in range(3)]
    tp = [p.I("ds_read_b128", PQ[i][4 * j:4 * j + 4], vpr, mods=f"offset:{4096*i + 1024*j}") for i in range(3) for j in range(4)]
    Y = ACC2[0][0]; TM = V(96, 8)
    p.wait_lg(tp[3])
    for j in range(16): p.I("v_add_f32", Y[j], Y[j], PQ[0][j])
    p.wait_lg(tp[11])
    for j in range(16): p.I("v_add_f32", PQ[1][j], PQ[1][j], PQ[2][j])
    for j in range(16): p.I("v_add_f32", Y[j], Y[j], PQ[1][j])
    for j in range(8): p.I("v_cvt_pk_bf16_f32", TM[j], Y[2 * j], Y[2 * j + 1])
    for j in range(8): unpack(p, Y[2 * j:2 * j + 2], TM[j], SM)
    for j in range(16): p.I("v_mul_f32", Y[j], Y[j], GBr[j >> 3][0][j & 7])
    for j in range(8): p.I("v_cvt_pk_bf16_f32", TM[j], Y[2 * j], Y[2 * j + 1])
    for j in range(8): unpack(p, Y[2 * j:2 * j + 2], TM[j], SM)
    for j in range(16): p.I("v_add_f32", Y[j], Y[j], XF_[j])
    for j in range(8): p.I("v_cvt_pk_bf16_f32", TM[j], Y[2 * j], Y[2 * j + 1])
    p.I("buffer_store_dwordx4", TM[0:4], vo2, so, S(64), mods="offen " + ST_ALL)
    p.I("buffer_store_dwordx4", TM[4:8], vo2, so, S(64), mods="offen offset:32 " + ST_ALL)
    stamp_out(p, 8, sws, 2)
    p.I("s_endpgm")
    return p

K5_PR = 64 * 272
K5_XT = 4 * K5_PR
K5_LDS = K5_XT + 8192
def gen_k5():
    p = Prog()
    load_kernargs(p)
    stamp(p, 0, False)
    p.I("s_cmp_ge_u32", S(2), 224)
    p.I("s_cbranch_scc1", "L_k5_exit")
    DG = os.environ.get('DIAG', '')
    if DG == 'loop':
        p.I("s_mov_b32", S(70), 0)
        p.label("L_diag")
        for i in range(8): p.I("v_mov_b32", V(20 + i), V(0))
        p.I("s_add_u32", S(70), S(70), 1); p.I("s_cmp_lt_u32", S(70), 256); p.I("s_cbranch_scc1", "L_diag")
    if DG == 'line':
        for i in range(2048): p.I("v_mov_b32", V(20 + (i & 7)), V(0))
    SM = S(6)
    p.I("s_mov_b32", SM, 0xffff0000)
    p.I("s_lshr_b32", S(4), S(2), 3); p.I("s_mul_hi_u32", S(3), S(4), 613566757); p.I("s_mul_i32", S(5), S(3), 7); p.I("s_sub_u32", S(5), S(4), S(5))
    p.I("s_and_b32", S(4), S(2), 7); p.I("s_lshl_b32", S(4), S(4), 2); p.I("s_add_u32", S(3), S(3), S(4))
    vlane = V(1); vw = V(2); vh = V(3); vt = V(4); vaa = V(5); vwa = V(6); vxa = V(7); vgb = V(8)
    p.I("v_and_b32", vlane, 63, V(0)); p.I("v_lshrrev_b32", vw, 6, V(0)); p.I("v_readfirstlane_b32", S(4), vw)
    p.I("v_lshrrev_b32", vh, 5, vlane)
    p.I("v_and_b32", vaa, 31, vlane); p.I("v_lshlrev_b32", vaa, 4, vaa); p.I("v_mul_u32_u24", vt, ACP, vh); p.I("v_add_u32", vaa, vaa, vt)
    p.I("v_lshlrev_b32", vwa, 4, vlane)
    p.I("v_lshrrev_b32", vt, 3, vlane); p.I("v_mul_u32_u24", vxa, X1P, vt); p.I("v_and_b32", vt, 7, vlane); p.I("v_lshl_add_u32", vxa, vt, 4, vxa)
    p.I("v_lshrrev_b32", vgb, 4, vlane); p.I("v_lshlrev_b32", vgb, 5, vgb)
    p.I("s_mul_i32", S(7), S(4), 56 * ACP); p.I("s_lshl_b32", S(8), S(3), 10); p.I("s_add_u32", S(7), S(7), S(8)); p.I("s_add_u32", S(7), S(7), WS_ACT)
    p.I("s_mul_i32", S(8), S(5), 229376); p.I("s_mul_i32", S(9), S(4), 28 * 2048); p.I("s_add_u32", S(8), S(8), S(9)); p.I("s_add_u32", S(8), S(8), WS_WD)
    p.I("s_mul_i32", S(9), S(5), 64 * X1P); p.I("s_mul_i32", S(10), S(4), 16 * X1P); p.I("s_add_u32", S(9), S(9), S(10)); p.I("s_lshl_b32", S(10), S(3), 7)
    p.I("s_add_u32", S(9), S(9), S(10)); p.I("s_add_u32", S(9), S(9), WS_X1)
    p.I("s_lshl_b32", S(10), S(4), 11); p.I("s_add_u32", S(10), S(10), K5_XT)
    p.I("s_lshl_b32", S(11), S(5), 8); p.I("s_add_u32", S(11), S(11), WS_MOD + 5 * D * 4)
    for i in range(64): p.I("v_accvgpr_write_b32", A(i), 0)
    p.I("s_waitcnt", "lgkmcnt(0)")
    sws = srd(p, 52, P_WS, WS_SIZE); so = srd(p, 48, P_OUT, ARR)
    stamp(p, 1, False)
    NB = 13; LA = 12
    BUF = [V(40 + 16 * b, 16) for b in range(NB)]
    ACC = [[A(32 * dl + 16 * th, 16) for th in range(2)] for dl in range(2)]
    tk = {}
    def issue(n):
        bf_ = BUF[n % NB]
        p.I("s_add_u32", S(12), S(7), n * 2 * ACP); p.I("s_add_u32", S(13), S(8), n * 2048)
        p.I("buffer_load_dwordx4", bf_[0:4], vwa, sws, S(13), mods="offen")
        p.I("buffer_load_dwordx4", bf_[8:12], vaa, sws, S(12), mods="offen " + K5_LD)
        t1 = p.I("buffer_load_dwordx4", bf_[12:16], vaa, sws, S(12), mods="offen offset:512 " + K5_LD)
        t2 = p.I("buffer_load_dwordx4", bf_[4:8], vwa, sws, S(13), mods="offen offset:1024")
        tk[n] = (t1, t2)
    for n in range(LA): issue(n)
    stamp(p, 2, False)
    GB = [[V(10 + 16 * og + 8 * pp, 8) for pp in range(2)] for og in range(2)]
    GB = [[A(64 + 16 * og + 8 * pp, 8) for pp in range(2)] for og in range(2)]
    tgb = None
    for n in range(28):
        bf_ = BUF[n % NB]
        p.wait_vm(tk[n][0])
        if n == 0: stamp(p, 3, False)
        p.I("v_mfma_f32_32x32x16_bf16", ACC[0][0], bf_[0:4], bf_[8:12], ACC[0][0])
        p.I("v_mfma_f32_32x32x16_bf16", ACC[0][1], bf_[0:4], bf_[12:16], ACC[0][1])
        p.wait_vm(tk[n][1])
        p.I("v_mfma_f32_32x32x16_bf16", ACC[1][0], bf_[4:8], bf_[8:12], ACC[1][0])
        p.I("v_mfma_f32_32x32x16_bf16", ACC[1][1], bf_[4:8], bf_[12:16], ACC[1][1])
        if n + LA < 28: issue(n + LA)
        if n == 16:
            for i in range(2):
                p.I("s_add_u32", M0, S(10), i * 1024); p.I("s_add_u32", S(12), S(9), i * 8 * X1P)
                p.I("buffer_load_dwordx4", vxa, sws, S(12), mods="offen lds")
            for og in range(2):
                for pp in range(2):
                    p.I("s_add_u32", S(12), S(11), pp * MODP)
                    for k_ in range(2):
                        tgb = p.I("buffer_load_dwordx4", GB[og][pp][4 * k_:4 * k_ + 4], vgb, sws, S(12), mods=f"offen offset:{128*og + 16*k_}")
    stamp(p, 4)
    vpw = V(9)
    p.I("v_and_b32", vt, 31, vlane); p.I("v_mul_u32_u24", vpw, 272, vt); p.I("v_lshl_add_u32", vpw, vh, 4, vpw)
    p.I("s_mul_i32", S(12), S(4), K5_PR); p.I("v_add_u32", vpw, S(12), vpw)
    for dl in range(2):
        for th in range(2):
            for j in range(4):
                p.I("ds_write_b128", vpw, ACC[dl][th][4 * j:4 * j + 4], mods=f"offset:{th*32*272 + dl*128 + j*32}")
    vq = V(10); vtk = V(11); vpr = V(12); vxr = V(13); voo = V(14)
    p.I("v_lshrrev_b32", vq, 4, vlane); p.I("v_and_b32", vtk, 15, vlane); p.I("s_lshl_b32", S(12), S(4), 4); p.I("v_add_u32", vtk, S(12), vtk)
    p.I("v_mul_u32_u24", vpr, 272, vtk); p.I("v_lshl_add_u32", vpr, vq, 5, vpr)
    p.I("v_bfe_u32", vt, vlane, 2, 2); p.I("v_lshl_add_u32", vt, vq, 3, vt); p.I("v_lshlrev_b32", vxr, 7, vt)
    p.I("v_and_b32", vt, 3, vlane); p.I("v_lshl_add_u32", vxr, vt, 3, vxr); p.I("s_lshl_b32", S(12), S(4), 5); p.I("s_add_u32", S(12), S(12), K5_XT); p.I("v_add_u32", vxr, S(12), vxr)
    p.I("v_mul_u32_u24", voo, ROWB, vtk); p.I("v_lshl_add_u32", voo, vq, 4, voo)
    p.I("s_mul_i32", S(12), S(3), 64 * ROWB); p.I("s_lshl_b32", S(13), S(5), 7); p.I("s_add_u32", S(12), S(12), S(13))
    G = [V(16 + 8 * og, 8) for og in range(2)]; TM = V(32, 4); G2 = V(40, 8)
    p.wait_vm(tgb)
    for og in range(2):
        for j in range(8): p.I("v_accvgpr_read_b32", G[og][j], GB[og][0][j]); p.I("v_accvgpr_read_b32", G2[j], GB[og][1][j])
        for j in range(8): p.I("v_add_f32", G[og][j], G[og][j], G2[j])
        for j in range(4): p.I("v_cvt_pk_bf16_f32", TM[j], G[og][2 * j], G[og][2 * j + 1])
        for j in range(4): unpack(p, G[og][2 * j:2 * j + 2], TM[j], SM)
    p.wait_lg0()
    p.I("s_barrier")
    stamp(p, 5)
    for og in range(2):
        PPs = [V(48 + 40 * og + 8 * w, 8) for w in range(4)]; XR = V(80 + 40 * og, 4); XF = V(128 + 8 * og, 8)
        tx = [p.I("ds_read_b64_tr_b16", XR[2 * s_:2 * s_ + 2], vxr, mods=f"offset:{4096*og + 512*s_}") for s_ in range(2)]
        tp = [p.I("ds_read_b128", PPs[w][4 * k_:4 * k_ + 4], vpr, mods=f"offset:{w*K5_PR + 128*og + 16*k_}") for w in range(4) for k_ in range(2)]
        p.wait_lg(tx[-1])
        for j in range(4): unpack(p, XF[2 * j:2 * j + 2], XR[j], SM)
        p.wait_lg(tp[3])
        for j in range(8): p.I("v_add_f32", PPs[0][j], PPs[0][j], PPs[1][j])
        p.wait_lg(tp[7])
        for j in range(8): p.I("v_add_f32", PPs[2][j], PPs[2][j], PPs[3][j])
        Y = PPs[0]
        for j in range(8): p.I("v_add_f32", Y[j], Y[j], PPs[2][j])
        for j in range(4): p.I("v_cvt_pk_bf16_f32", TM[j], Y[2 * j], Y[2 * j + 1])
        for j in range(4): unpack(p, Y[2 * j:2 * j + 2], TM[j], SM)
        for j in range(8): p.I("v_mul_f32", Y[j], Y[j], G[og][j])
        for j in range(4): p.I("v_cvt_pk_bf16_f32", TM[j], Y[2 * j], Y[2 * j + 1])
        for j in range(4): unpack(p, Y[2 * j:2 * j + 2], TM[j], SM)
        for j in range(8): p.I("v_add_f32", Y[j], Y[j], XF[j])
        O = PPs[1][0:4]
        for j in range(4): p.I("v_cvt_pk_bf16_f32", O[j], Y[2 * j], Y[2 * j + 1])
        p.I("buffer_store_dwordx4", O, voo, so, S(12), mods=f"offen offset:{64*og}")
    stamp(p, 6)
    stamp_out(p, 7, sws, 3)
    p.label("L_k5_exit")
    p.I("s_endpgm")
    return p

HEADER = open("adaLN_cond__ssm_conv_h3__swiglu_ffn__prompt.s.ref").read().split("; Override")[0]

def build(kernels):
    s = HEADER
    for name, p, grid, block, lds in kernels:
        s += f"; @launch kernel={name} grid=({grid},1,1) block=({block},1,1) lds={lds}\n"
    s += '.amdgcn_target "amdgcn-amd-amdhsa--gfx950"\n.text\n'
    for name, p, grid, block, lds in kernels:
        s += kernel_header(name) + p.finalize()
        s += kernel_desc(name, p.maxv + 1, p.maxa + 1, max(p.maxs + 1, 16))
    s += "L_code_end:\n    s_endpgm\n"
    return s

if __name__ == "__main__":
    ks = [("k1_kernel", gen_k1(), NMOD + NTR + NST + 8 * CPF, 256, 16384), ("k2_kernel", gen_k2(), NCONV, 512, K2_LDS),
          ("k4_kernel", gen_k4(), 256, 512, K4_LDS)]
    for i in range(int(os.environ.get('EXTRA', '0'))):
        pe = Prog(); pe.I("v_mov_b32", V(1), 0); pe.I("s_endpgm"); ks.append((f"e{i}_kernel", pe, 256, 256, 0))
    open(sys.argv[1] if len(sys.argv) > 1 else "out.s", "w").write(build(ks))
```
